```python
import torch

def _softmax(x, axis=-1):
    return torch.softmax(x, dim=axis)

def _gelu(x):
    return torch.nn.functional.gelu(x, approximate='tanh')

def _silu(x):
    return torch.nn.functional.silu(x)

def _sigmoid(x):
    return torch.sigmoid(x)

def _layernorm(x, axis=-1, eps=1e-05):
    m = x.mean(dim=axis, keepdim=True)
    v = x.var(dim=axis, keepdim=True, unbiased=False)
    return (x - m) / torch.sqrt(v + eps)

def _scatter_add(tgt, idx, src, axis=0):
    return tgt.clone().index_add_(axis, idx, src)

def _segment_sum(src, seg, n):
    out = torch.zeros((n,) + src.shape[1:], dtype=src.dtype)
    return out.index_add_(0, seg, src)

def _pad(x, pw):
    flat = tuple((v for pair in reversed(pw) for v in pair))
    return torch.nn.functional.pad(x, flat)
kernel_name = 'adaLN_cond__sliding_local_dilated__glu_gated_swiglu__prompt'

def setup_inputs():

    _w = lambda a: (lambda t: t.to(torch.bfloat16) if t.is_floating_point() else t)(torch.as_tensor(a))

    def _A_setup():
        B, S, D = (1, 2048, 512)
        return {'x': _w((lambda *s: torch.randn(*s, dtype=torch.bfloat16) * 0.05)(B, S, D)), 'wqkv': _w((lambda *s: torch.randn(*s, dtype=torch.bfloat16) * 0.1)(D, 3 * D)), 'wo': _w((lambda *s: torch.randn(*s, dtype=torch.bfloat16) * 0.1)(D, D))}
    _A_in = _A_setup()

    def _B_setup():
        B, S, D, F = (1, 2048, 512, 1376)
        return {'x': _w((lambda *s: torch.randn(*s, dtype=torch.bfloat16) * 0.05)(B, S, D)), 'w1': _w((lambda *s: torch.randn(*s, dtype=torch.bfloat16) * 1.6)(D, F) * (2.0 / D) ** 0.5), 'w3': _w((lambda *s: torch.randn(*s, dtype=torch.bfloat16) * 1.6)(D, F) * (2.0 / D) ** 0.5), 'w2': _w((lambda *s: torch.randn(*s, dtype=torch.bfloat16) * 1.6)(F, D) * (2.0 / F) ** 0.5)}
    _B_in = _B_setup()
    return {'A_x': _A_in['x'], 'A_wqkv': _A_in['wqkv'], 'A_wo': _A_in['wo'], 'B_x': _B_in['x'], 'B_w1': _B_in['w1'], 'B_w3': _B_in['w3'], 'B_w2': _B_in['w2'], 'c': _w((lambda *s: torch.randn(*s, dtype=torch.bfloat16) * 0.2)(1, 512) * 8.0), 'w_mod': _w((lambda *s: torch.randn(*s, dtype=torch.bfloat16) * 0.2)(512, 6 * 512) * 512 ** (-0.5) * 8.0)}

def reference(A_x, A_wqkv, A_wo, B_x, B_w1, B_w3, B_w2, c, w_mod):

    def _A_ref(x, wqkv, wo):
        B, S, D = x.shape
        H = 32
        Dh = D // H
        W, dil = (8, 2)
        qkv = (lambda x, *d: x.permute(*d))((x @ wqkv).reshape(B, S, 3, H, Dh), 2, 0, 3, 1, 4)
        q, k, v = (qkv[0], qkv[1], qkv[2])
        scale = Dh ** (-0.5)
        pos = torch.arange(S)
        off = torch.arange(W) * dil
        idx = pos[:, None] - off[None, :]
        mask = idx >= 0
        idx_c = torch.where(mask, idx, 0).reshape(-1)
        kg = k[:, :, idx_c, :].reshape(B, H, S, W, Dh)
        vg = v[:, :, idx_c, :].reshape(B, H, S, W, Dh)
        logits = torch.einsum('bhsd,bhswd->bhsw', q, kg) * scale
        logits = torch.where(mask[None, None, :, :], logits, -1000000000.0)
        attn = _softmax(logits, axis=-1)
        o = torch.einsum('bhsw,bhswd->bhsd', attn, vg)
        return (lambda x, *d: x.permute(*d))(o, 0, 2, 1, 3).reshape(B, S, D) @ wo

    def _B_ref(x, w1, w3, w2):
        gate = torch.einsum('bsd,df->bsf', x, w1)
        up = torch.einsum('bsd,df->bsf', x, w3)
        h = _silu(gate) * up
        out = torch.einsum('bsf,fd->bsd', h, w2)
        return out
    x = A_x
    mod = (_silu(c) @ w_mod).reshape(c.shape[0], 6, 1, -1)
    sa, ca, ga, sb, cb, gb = (mod[:, 0].clone(), mod[:, 1].clone(), mod[:, 2].clone(), mod[:, 3].clone(), mod[:, 4].clone(), mod[:, 5].clone())
    h = _layernorm(x, axis=-1) * (1 + ca) + sa
    x = x + ga * _A_ref(h, A_wqkv, A_wo)
    h = _layernorm(x, axis=-1) * (1 + cb) + sb
    x = x + gb * _B_ref(h, B_w1, B_w3, B_w2)
    return x
```

```python
import re

TRANS = ('v_exp_f32', 'v_log_f32', 'v_rcp_f32', 'v_rsq_f32', 'v_sqrt_f32', 'v_sin_f32', 'v_cos_f32', 'v_rcp_iflag_f32')

_reg_re = re.compile(r'^(-|abs\()?([vas])(\d+)\)?$')
_rng_re = re.compile(r'^(-|abs\()?([vas])\[(\d+):(\d+)\]\)?$')


def regs_of(op):
    op = op.strip()
    m = _reg_re.match(op)
    if m:
        return {(m.group(2), int(m.group(3)))}
    m = _rng_re.match(op)
    if m:
        return {(m.group(2), i) for i in range(int(m.group(3)), int(m.group(4)) + 1)}
    if op in ('vcc', 'vcc_lo', 'vcc_hi'):
        return {('vcc',)}
    if op in ('exec', 'exec_lo', 'exec_hi'):
        return {('exec',)}
    if op == 'm0':
        return {('m0',)}
    return set()


def split_ops(s):
    out, depth, cur = [], 0, ''
    for ch in s:
        if ch in '[(':
            depth += 1
        if ch in '])':
            depth -= 1
        if ch == ',' and depth == 0:
            out.append(cur.strip()); cur = ''
        else:
            cur += ch
    if cur.strip():
        out.append(cur.strip())
    return out


class Ins:
    __slots__ = ('text', 'mn', 'kind', 'wr', 'rd', 'srcc', 'srcab', 'passes', 'dpp', 'states', 'wide_store', 'ldsdma', 'dreg')


def parse(text):
    t = text.split(';')[0].strip()
    parts = t.split(None, 1)
    mn = parts[0]
    rest = parts[1] if len(parts) > 1 else ''
    ops_all = split_ops(rest)
    ops, mods = [], []
    for o in ops_all:
        toks = o.split()
        if toks:
            ops.append(toks[0]); mods += toks[1:]
    I = Ins()
    I.text = text; I.mn = mn; I.wr = set(); I.rd = set(); I.srcc = set(); I.srcab = set(); I.passes = 0
    I.dpp = any(m.startswith(('row_', 'quad_perm', 'wave_')) for m in mods) or mn.endswith('_dpp')
    I.states = 1; I.wide_store = False; I.ldsdma = False; I.dreg = None
    R = [regs_of(o) for o in ops]
    if mn.startswith('v_mfma') or mn.startswith('v_smfmac'):
        I.kind = 'mfma'
        I.wr = R[0]; I.srcab = R[1] | R[2]; I.srcc = R[3]; I.rd = I.srcab | I.srcc
        I.passes = 8 if '32x32' in mn else 4
        I.dreg = ops[0]
    elif mn.startswith('v_'):
        I.kind = 'trans' if mn.replace('_e32', '').replace('_e64', '') in TRANS else 'valu'
        if mn.startswith('v_cmp'):
            I.wr = R[0]; I.rd = set().union(*R[1:]) if len(R) > 1 else set()
            if mn.startswith('v_cmpx'):
                I.wr |= {('exec',)}
        elif mn.startswith('v_permlane') and 'swap' in mn:
            I.wr = R[0] | R[1]; I.rd = R[0] | R[1]
        elif re.match(r'v_(add|sub|subrev|addc|subb|subbrev)_co_', mn) or mn.startswith('v_div_scale') or mn.startswith('v_mad_u64'):
            I.wr = R[0] | R[1]; I.rd = set().union(*R[2:])
        elif mn in ('v_nop',):
            pass
        else:
            I.wr = R[0]; I.rd = set().union(*R[1:]) if len(R) > 1 else set()
            if mn.startswith(('v_fmac', 'v_dot2c', 'v_mac', 'v_pk_fmac', 'v_writelane')) or I.dpp:
                I.rd |= R[0]
            if mn.startswith('v_cndmask') and len(ops) == 3:
                I.rd |= {('vcc',)}
    elif mn.startswith(('buffer_', 'global_', 'flat_', 'scratch_')):
        I.kind = 'vmem'
        if 'lds' in mods or mn.startswith('global_load_lds'):
            I.ldsdma = True
            I.rd = set().union(*R) | {('m0',)}
        elif '_load' in mn:
            I.wr = R[0]; I.rd = set().union(*R[1:])
        elif '_atomic' in mn:
            I.rd = set().union(*R)
            if 'sc0' in mods:
                I.wr = R[0]
        else:
            I.rd = set().union(*R)
            if mn.endswith(('x3', 'x4')):
                I.wide_store = True
    elif mn.startswith('ds_'):
        I.kind = 'ds'
        if mn.startswith(('ds_read', 'ds_bpermute', 'ds_permute', 'ds_swizzle')):
            I.wr = R[0]; I.rd = set().union(*R[1:]) if len(R) > 1 else set()
        else:
            I.rd = set().union(*R)
    elif mn.startswith('s_'):
        I.kind = 'salu'
        if mn == 's_nop':
            I.states = int(ops[0], 0) + 1
        elif mn.startswith(('s_cmp', 's_waitcnt', 's_barrier', 's_branch', 's_cbranch', 's_endpgm', 's_setprio', 's_sleep', 's_setpc')):
            I.rd = set().union(*R) if R else set()
        elif mn.startswith(('s_load', 's_buffer_load', 's_memtime', 's_memrealtime')):
            I.kind = 'smem'
            I.wr = R[0]; I.rd = set().union(*R[1:]) if len(R) > 1 else set()
        else:
            I.wr = R[0] if R else set(); I.rd = set().union(*R[1:]) if len(R) > 1 else set()
            if 'saveexec' in mn:
                I.wr |= {('exec',)}; I.rd |= {('exec',)}
    else:
        raise ValueError('unknown instr ' + text)
    return I


def isv(r):
    return r[0] in ('v', 'a')


def need(prev, cur):
    n = 0
    pv = prev.kind in ('valu', 'trans')
    cv = cur.kind in ('valu', 'trans')
    if pv:
        wv = {r for r in prev.wr if isv(r)}
        ws = {r for r in prev.wr if not isv(r)}
        if cur.kind == 'mfma' and wv & cur.rd:
            n = max(n, 2)
        if cur.kind == 'mfma' and ('exec',) in ws:
            n = max(n, 4)
        if cur.kind == 'vmem' and ws & cur.rd:
            n = max(n, 5)
        if cv and ws & cur.rd:
            n = max(n, 4 if cur.mn.startswith(('v_readlane', 'v_writelane')) else 2)
        if cv and ('exec',) in ws and (cur.dpp or cur.mn.startswith(('v_permlane', 'v_readlane', 'v_readfirstlane', 'v_writelane'))):
            n = max(n, 5)
        if cv and wv & cur.rd:
            if cur.mn.startswith(('v_readlane', 'v_readfirstlane')):
                n = max(n, 1)
            if cur.dpp or cur.mn.startswith('v_permlane'):
                n = max(n, 2)
            if prev.kind == 'trans' and cur.kind != 'trans':
                n = max(n, 1)
        if cur.kind == 'salu' and ws & cur.rd:
            n = max(n, 1)
    if prev.kind == 'mfma':
        big = {2: 5, 4: 8, 8: 12, 16: 20}[prev.passes]
        mid = {2: 4, 4: 6, 8: 10, 16: 18}[prev.passes]
        war = {2: 1, 4: 3, 8: 7, 16: 15}[prev.passes]
        if cur.kind == 'mfma':
            if prev.wr & cur.srcab:
                n = max(n, big)
            if prev.wr & cur.srcc:
                if not (prev.wr == cur.srcc and prev.passes == cur.passes):
                    n = max(n, mid)
            elif prev.wr & cur.wr:
                n = max(n, mid)
        else:
            if prev.wr & (cur.rd | cur.wr):
                n = max(n, big)
            if cv and prev.srcc & cur.wr:
                n = max(n, war)
    if prev.kind == 'salu' and ('m0',) in prev.wr and cur.ldsdma:
        n = max(n, 1)
    if prev.wide_store and {r for r in prev.rd if isv(r)} & cur.wr:
        n = max(n, 2)
    return n


class Emitter:
    def __init__(self):
        self.lines = []
        self.hist = []
        self.nins = 0

    def raw(self, s):
        self.lines.append(s)

    def label(self, name):
        self.flush()
        self.lines.append(name + ':')

    def flush(self):
        d = 0
        worst = 0
        for p in reversed(self.hist[-24:]):
            if p.kind == 'mfma':
                worst = max(worst, {4: 8, 8: 12}[p.passes] - d)
            elif p.kind in ('valu', 'trans'):
                worst = max(worst, 5 - d)
            elif p.kind == 'salu' or p.wide_store:
                worst = max(worst, 2 - d)
            d += p.states
        if worst > 0:
            self._nop(worst)
        self.hist = []

    def _nop(self, n):
        while n > 0:
            k = min(n, 16)
            I = parse('s_nop %d' % (k - 1))
            self.lines.append('    s_nop %d' % (k - 1)); self.hist.append(I); self.nins += 1
            n -= k

    def __call__(self, text):
        for line in text.split('\n'):
            line = line.strip()
            if not line:
                continue
            if line.startswith(';'):
                self.lines.append('    ' + line); continue
            if line.endswith(':'):
                self.label(line[:-1]); continue
            I = parse(line)
            if I.mn.startswith(('s_branch', 's_cbranch', 's_setpc')):
                self.flush()
            d = 0
            pad = 0
            for p in reversed(self.hist[-24:]):
                n = need(p, I)
                if n - d > pad:
                    pad = n - d
                d += p.states
                if d >= 24:
                    break
            if pad > 0:
                self._nop(pad)
            self.lines.append('    ' + line)
            self.hist.append(I)
            self.nins += 1
            if I.mn.startswith(('s_branch', 's_cbranch', 's_setpc')):
                pass

    def text(self):
        return '\n'.join(self.lines) + '\n'
```

```python
import sys
from emit import Emitter

MIMIC_LN1 = int(sys.argv[1]) if len(sys.argv) > 1 else 1
MIMIC_LG = int(sys.argv[2]) if len(sys.argv) > 2 else 1

OFF_MOD = 0x0000000
OFF_CNT = 0x0010000
OFF_H = 0x0100000
OFF_O = 0x0400000
OFF_X1 = 0x0700000
OFF_ST = 0x0A00000
OFF_HH = 0x0B00000
OFF_WF = 0x1100000
OFF_UT = 0x1400000

SRD = dict(X=8, WQKV=12, WO=16, W1=20, W3=24, W2=28, C=32, WMOD=36, OUT=40, DBG=44, WS=48)
PTR = dict(X=64, WQKV=66, WO=68, W1=72, W3=74, W2=76, C=78, WMOD=80, OUT=82, DBG=84, WS=86)
SIZE = dict(X=2048 * 512 * 2, WQKV=512 * 1536 * 2, WO=512 * 512 * 2, W1=512 * 1376 * 2, W3=512 * 1376 * 2,
            W2=1376 * 512 * 2, C=1024, WMOD=512 * 3072 * 2, OUT=2048 * 512 * 2, DBG=256, WS=0x10000000)
LOG2E = 1.4426950408889634


def srd(n):
    return 's[%d:%d]' % (SRD[n], SRD[n] + 3)


def f32(x):
    import struct
    return '0x%08x' % struct.unpack('<I', struct.pack('<f', x))[0]


E = Emitter()
kernels = []


def kernel_begin(name, nwg, bufs):
    E.raw('.globl %s\n.p2align 8\n.type %s,@function\n%s:' % (name, name, name))
    E.hist = []
    E('s_cmp_lt_u32 s2, %d' % nwg)
    E('s_cbranch_scc1 L_%s_go' % name)
    E('s_endpgm')
    E('L_%s_go:' % name)
    E('s_load_dwordx16 s[64:79], s[0:1], 0')
    E('s_load_dwordx8 s[80:87], s[0:1], 64')
    E('v_and_b32 v1, 63, v0')
    E('v_and_b32 v2, 15, v0')
    E('v_bfe_u32 v3, v0, 4, 2')
    E('v_lshrrev_b32 v4, 6, v0')
    E('v_readfirstlane_b32 s3, v4')
    E('s_and_b32 s4, s2, 7\ns_lshl_b32 s4, s4, 1\ns_bfe_u32 s5, s2, 0x10003\ns_or_b32 s4, s4, s5\ns_lshr_b32 s5, s2, 4')
    E('s_waitcnt lgkmcnt(0)')
    for b in bufs:
        r = SRD[b]
        E('s_mov_b32 s%d, s%d\ns_and_b32 s%d, s%d, 0xffff\ns_mov_b32 s%d, 0x%x\ns_mov_b32 s%d, 0x20000' % (
            r, PTR[b], r + 1, PTR[b] + 1, r + 2, SIZE[b], r + 3))


def kernel_end(name, nwg, lds, vgpr=256, agpr=256):
    E('s_endpgm')
    kernels.append((name, nwg, lds, vgpr, agpr))


def allreduce_lg(op, v, tmp):
    E('v_mov_b32 v%d, v%d' % (tmp, v))
    E('v_permlane32_swap_b32 v%d, v%d' % (v, tmp))
    E('%s v%d, v%d, v%d' % (op, v, v, tmp))
    E('v_mov_b32 v%d, v%d' % (tmp, v))
    E('v_permlane16_swap_b32 v%d, v%d' % (v, tmp))
    E('%s v%d, v%d, v%d' % (op, v, v, tmp))


def allreduce_row16(op, v):
    for sh in (1, 2, 4, 8):
        E('%s_dpp v%d, v%d, v%d row_ror:%d row_mask:0xf bank_mask:0xf' % (op, v, v, v, sh))


def round_bf16(dst, src):
    E('v_cvt_pk_bf16_f32 v%d, v%d, v%d' % (dst, src, src))
    E('v_and_b32 v%d, 0xffff0000, v%d' % (dst, dst))


def k_mod():
    name = 'k0mod_kernel'
    kernel_begin(name, 96, ['C', 'WMOD', 'WS'])
    E('v_and_b32 v5, 3, v0')
    E('v_lshrrev_b32 v6, 2, v0')
    E('s_movk_i32 s6, 6144')
    E('v_mul_lo_u32 v7, v6, s6')
    E('v_lshl_add_u32 v7, v5, 4, v7')
    E('v_lshlrev_b32 v8, 1, v6')
    E('s_lshl_b32 s6, s2, 6')
    for it in range(8):
        E('buffer_load_ushort v%d, v8, %s, 0 offen offset:%d' % (10 + it, srd('C'), it * 128))
    for it in range(8):
        E('s_add_u32 s7, s6, %d' % (it * 393216))
        E('buffer_load_dwordx4 v[%d:%d], v7, %s, s7 offen' % (32 + 4 * it, 35 + 4 * it, srd('WMOD')))
    E('s_waitcnt vmcnt(8)')
    for it in range(8):
        v = 10 + it
        E('v_lshlrev_b32 v%d, 16, v%d' % (v, v))
        E('v_mul_f32 v20, %s, v%d' % (f32(-LOG2E), v))
        E('v_exp_f32 v20, v20')
        E('v_add_f32 v20, 1.0, v20')
        E('v_rcp_f32 v20, v20')
        E('v_mul_f32 v%d, v%d, v20' % (v, v))
        round_bf16(v, v)
    for e in range(8):
        E('v_mov_b32 v%d, 0' % (20 + e))
    for it in range(8):
        E('s_waitcnt vmcnt(%d)' % (7 - it))
        for p in range(4):
            w = 32 + 4 * it + p
            E('v_lshlrev_b32 v28, 16, v%d' % w)
            E('v_and_b32 v29, 0xffff0000, v%d' % w)
            E('v_fmac_f32 v%d, v28, v%d' % (20 + 2 * p, 10 + it))
            E('v_fmac_f32 v%d, v29, v%d' % (21 + 2 * p, 10 + it))
    for e in range(8):
        for sh in (4, 8):
            E('v_add_f32_dpp v%d, v%d, v%d row_ror:%d row_mask:0xf bank_mask:0xf' % (20 + e, 20 + e, 20 + e, sh))
    for e in range(4):
        E('v_permlane32_swap_b32 v%d, v%d' % (20 + e, 24 + e))
        E('v_add_f32 v%d, v%d, v%d' % (20 + e, 20 + e, 24 + e))
    for e in range(2):
        E('v_permlane16_swap_b32 v%d, v%d' % (20 + e, 22 + e))
        E('v_add_f32 v%d, v%d, v%d' % (20 + e, 20 + e, 22 + e))
    E('v_lshlrev_b32 v9, 5, v5')
    E('v_lshl_add_u32 v9, v3, 3, v9')
    E('s_lshl_b32 s7, s3, 7')
    E('v_add_u32 v9, s7, v9')
    E('ds_write_b64 v9, v[20:21]')
    E('s_waitcnt lgkmcnt(0)')
    E('s_barrier')
    E('v_lshlrev_b32 v9, 2, v0')
    E('v_cmp_gt_u32 vcc, 32, v0')
    E('s_and_saveexec_b64 s[90:91], vcc')
    E('s_cbranch_execz L_k0_done')
    E('ds_read_b32 v20, v9\nds_read_b32 v21, v9 offset:128\nds_read_b32 v22, v9 offset:256\nds_read_b32 v23, v9 offset:384')
    E('s_waitcnt lgkmcnt(0)')
    E('v_add_f32 v20, v20, v21\nv_add_f32 v22, v22, v23\nv_add_f32 v20, v20, v22')
    round_bf16(20, 20)
    E('s_lshl_b32 s7, s2, 7')
    E('buffer_store_dword v20, v9, %s, s7 offen' % srd('WS'))
    E('s_waitcnt vmcnt(0)')
    E('L_k0_done:')
    kernel_end(name, 96, 512, 64, 0)


def pair_start_s(dst):
    E('s_mul_i32 s%d, s5, 0x5556' % dst)
    E('s_lshr_b32 s%d, s%d, 13' % (dst, dst))


def k_prep():
    name = 'k0prep_kernel'
    kernel_begin(name, 256, ['X', 'W1', 'W3', 'WS'])
    pair_start_s(6)
    E('v_lshrrev_b32 v5, 2, v1')
    E('v_and_b32 v6, 3, v1')
    E('s_movk_i32 s7, 2752')
    E('v_mul_lo_u32 v7, v5, s7')
    E('v_lshl_add_u32 v7, v6, 4, v7')
    E('s_mul_i32 s52, s4, %d' % (32 * 2752))
    E('s_lshl_b32 s53, s6, 6')
    E('s_add_u32 s52, s52, s53')
    E('s_cmp_ge_u32 s3, 2')
    E('s_cselect_b32 s56, %d, %d' % (0, 0))
    E('s_cmp_ge_u32 s3, 2')
    E('s_cselect_b32 s56, s%d, s%d' % (SRD['W3'], SRD['W1']))
    E('s_cselect_b32 s57, s%d, s%d' % (SRD['W3'] + 1, SRD['W1'] + 1))
    E('s_mov_b32 s58, 0x%x\ns_mov_b32 s59, 0x20000' % SIZE['W1'])
    E('s_and_b32 s60, s3, 1')
    E('s_mul_i32 s60, s60, 3')
    for i in range(3):
        E('s_add_u32 s61, s60, %d' % i)
        E('s_lshr_b32 s62, s61, 1')
        E('s_and_b32 s63, s61, 1')
        E('s_lshl_b32 s62, s62, 6')
        E('s_mul_i32 s63, s63, %d' % (16 * 2752))
        E('s_add_u32 s62, s62, s63')
        E('s_add_u32 s62, s62, s52')
        E('s_mul_i32 s63, s3, 3072')
        E('s_add_u32 s63, s63, %d' % (i * 1024))
        E('s_mov_b32 m0, s63')
        E('buffer_load_dwordx4 v7, s[56:59], s62 offen lds')
    E('s_lshl_b32 s52, s2, 3')
    E('s_lshl_b32 s53, s3, 1')
    E('s_add_u32 s52, s52, s53')
    E('s_lshl_b32 s52, s52, 10')
    E('v_lshlrev_b32 v8, 4, v1')
    E('buffer_load_dwordx4 v[16:19], v8, %s, s52 offen' % srd('X'))
    E('buffer_load_dwordx4 v[20:23], v8, %s, s52 offen offset:1024' % srd('X'))
    E('v_lshlrev_b32 v9, 5, v1')
    E('buffer_load_dwordx4 v[24:27], v9, %s, 0 offen offset:%d' % (srd('WS'), OFF_MOD))
    E('buffer_load_dwordx4 v[28:31], v9, %s, 0 offen offset:%d' % (srd('WS'), OFF_MOD + 16))
    E('buffer_load_dwordx4 v[32:35], v9, %s, 0 offen offset:%d' % (srd('WS'), OFF_MOD + 2048))
    E('buffer_load_dwordx4 v[36:39], v9, %s, 0 offen offset:%d' % (srd('WS'), OFF_MOD + 2048 + 16))
    E('v_lshlrev_b32 v10, 5, v3')
    E('s_lshl_b32 s53, s4, 7')
    E('s_add_u32 s53, s53, %d' % (OFF_MOD + 1536 * 4))
    E('buffer_load_dwordx4 v[40:43], v10, %s, s53 offen' % srd('WS'))
    E('buffer_load_dwordx4 v[44:47], v10, %s, s53 offen offset:16' % srd('WS'))
    E('buffer_load_dwordx4 v[48:51], v10, %s, s53 offen offset:2048' % srd('WS'))
    E('buffer_load_dwordx4 v[52:55], v10, %s, s53 offen offset:2064' % srd('WS'))
    E('s_waitcnt vmcnt(0)')
    E('s_barrier')
    for e in range(8):
        E('v_add_f32 v%d, 1.0, v%d' % (32 + e, 32 + e))
        round_bf16(32 + e, 32 + e)
        E('v_add_f32 v%d, 1.0, v%d' % (48 + e, 48 + e))
        round_bf16(48 + e, 48 + e)
    for row in range(2):
        src = 16 + 4 * row
        X = 64
        for p in range(4):
            E('v_lshlrev_b32 v%d, 16, v%d' % (X + 2 * p, src + p))
            E('v_and_b32 v%d, 0xffff0000, v%d' % (X + 2 * p + 1, src + p))
        E('v_add_f32 v72, v64, v65')
        for e in range(2, 8):
            E('v_add_f32 v72, v72, v%d' % (X + e))
        allreduce_row16('v_add_f32', 72)
        allreduce_lg('v_add_f32', 72, 73)
        E('v_mul_f32 v72, %s, v72' % f32(1.0 / 512))
        E('v_mov_b32 v74, 0')
        for e in range(8):
            E('v_sub_f32 v75, v%d, v72' % (X + e))
            E('v_fmac_f32 v74, v75, v75')
        allreduce_row16('v_add_f32', 74)
        allreduce_lg('v_add_f32', 74, 73)
        E('v_mul_f32 v74, %s, v74' % f32(1.0 / 512))
        if MIMIC_LN1:
            round_bf16(72, 72)
            round_bf16(74, 74)
            E('v_add_f32 v74, %s, v74' % f32(1e-5))
            round_bf16(74, 74)
            E('v_sqrt_f32 v74, v74')
            round_bf16(74, 74)
            E('v_rcp_f32 v74, v74')
            for e in range(8):
                x = X + e
                E('v_sub_f32 v%d, v%d, v72' % (x, x))
                round_bf16(x, x)
                E('v_mul_f32 v%d, v%d, v74' % (x, x))
                round_bf16(x, x)
                if MIMIC_LN1 == 1:
                    E('v_mul_f32 v%d, v%d, v%d' % (x, x, 32 + e))
                    round_bf16(x, x)
                    E('v_add_f32 v%d, v%d, v%d' % (x, x, 24 + e))
                else:
                    E('v_fma_f32 v%d, v%d, v%d, v%d' % (x, x, 32 + e, 24 + e))
        else:
            E('v_add_f32 v74, %s, v74' % f32(1e-5))
            E('v_rsq_f32 v74, v74')
            for e in range(8):
                x = X + e
                E('v_sub_f32 v%d, v%d, v72' % (x, x))
                E('v_mul_f32 v%d, v%d, v74' % (x, x))
                E('v_fma_f32 v%d, v%d, v%d, v%d' % (x, x, 32 + e, 24 + e))
        for p in range(4):
            E('v_cvt_pk_bf16_f32 v%d, v%d, v%d' % (76 + p, X + 2 * p, X + 2 * p + 1))
        E('s_add_u32 s53, s52, %d' % (OFF_H + row * 1024))
        E('buffer_store_dwordx4 v[76:79], v8, %s, s53 offen' % srd('WS'))
    E('v_lshrrev_b32 v11, 2, v2')
    E('v_lshl_add_u32 v11, v3, 3, v11')
    E('v_lshlrev_b32 v11, 6, v11')
    E('v_and_b32 v12, 3, v2')
    E('v_lshl_add_u32 v11, v12, 4, v11')
    E('v_lshrrev_b32 v13, 2, v2')
    E('v_lshl_add_u32 v13, v13, 3, v12')
    E('v_lshlrev_b32 v13, 2, v13')
    E('v_lshrrev_b32 v14, 1, v3')
    E('s_movk_i32 s7, 384')
    E('v_mul_lo_u32 v14, v14, s7')
    E('v_add_u32 v13, v13, v14')
    for i in range(3):
        E('s_mul_i32 s60, s3, 3')
        E('s_add_u32 s60, s60, %d' % i)
        E('s_and_b32 s61, s60, 1')
        E('s_andn2_b32 s62, s60, 1')
        E('s_lshl_b32 s62, s62, 10')
        E('s_lshl_b32 s63, s61, 3')
        E('s_add_u32 s62, s62, s63')
        E('v_add_u32 v15, s62, v11')
        E('ds_read_b64_tr_b16 v[80:81], v15')
        E('ds_read_b64_tr_b16 v[82:83], v15 offset:256')
        E('s_waitcnt lgkmcnt(0)')
        X = 64
        for p in range(4):
            E('v_lshlrev_b32 v%d, 16, v%d' % (X + 2 * p, 80 + p))
            E('v_and_b32 v%d, 0xffff0000, v%d' % (X + 2 * p + 1, 80 + p))
        E('v_mul_f32 v73, v64, v40')
        for e in range(1, 8):
            E('v_fmac_f32 v73, v%d, v%d' % (X + e, 40 + e))
        for e in range(8):
            E('v_mul_f32 v%d, v%d, v%d' % (X + e, X + e, 48 + e))
        for p in range(4):
            E('v_cvt_pk_bf16_f32 v%d, v%d, v%d' % (84 + p, X + 2 * p, X + 2 * p + 1))
        E('v_mov_b32 v72, 0')
        for p in range(4):
            E('v_lshlrev_b32 v74, 16, v%d' % (84 + p))
            E('v_add_f32 v72, v72, v74')
            E('v_and_b32 v74, 0xffff0000, v%d' % (84 + p))
            E('v_add_f32 v72, v72, v74')
        E('v_permlane32_swap_b32 v72, v73')
        E('v_add_f32 v72, v72, v73')
        E('v_mov_b32 v73, v72')
        E('v_permlane16_swap_b32 v72, v73')
        E('v_add_f32 v72, v72, v73')
        E('s_cmp_ge_u32 s60, 6')
        E('s_cselect_b32 s62, 1, 0')
        E('s_mul_i32 s63, s62, 6')
        E('s_sub_u32 s63, s60, s63')
        E('s_lshr_b32 s63, s63, 1')
        E('s_add_u32 s54, s6, s63')
        E('s_lshl_b32 s54, s54, 16')
        E('s_lshl_b32 s55, s4, 12')
        E('s_add_u32 s54, s54, s55')
        E('s_lshl_b32 s55, s62, 11')
        E('s_add_u32 s54, s54, s55')
        E('s_lshl_b32 s55, s61, 10')
        E('s_add_u32 s54, s54, s55')
        E('s_add_u32 s54, s54, %d' % OFF_WF)
        E('buffer_store_dwordx4 v[84:87], v8, %s, s54 offen' % srd('WS'))
        E('s_lshl_b32 s54, s5, 4')
        E('s_add_u32 s54, s54, s4')
        E('s_lshl_b32 s54, s54, 1')
        E('s_add_u32 s54, s54, s62')
        E('s_mul_i32 s54, s54, 768')
        E('s_lshl_b32 s55, s63, 7')
        E('s_add_u32 s54, s54, s55')
        E('s_lshl_b32 s55, s61, 4')
        E('s_add_u32 s54, s54, s55')
        E('s_add_u32 s54, s54, %d' % OFF_UT)
        E('buffer_store_dword v72, v13, %s, s54 offen' % srd('WS'))
    E('s_waitcnt vmcnt(0)')
    kernel_end(name, 256, 12288, 96, 0)


def k_qkv():
    name = 'k1qkv_kernel'
    kernel_begin(name, 256, ['WQKV', 'WS'])
    LDS_X = 98304
    E('v_lshrrev_b32 v5, 2, v1')
    E('v_and_b32 v6, 3, v1')
    E('v_lshrrev_b32 v7, 5, v1')
    E('v_lshlrev_b32 v7, 1, v7')
    E('v_xor_b32 v6, v6, v7')
    E('s_movk_i32 s6, 3072')
    E('v_mul_lo_u32 v5, v5, s6')
    E('v_lshl_add_u32 v5, v6, 4, v5')
    E('s_lshl_b32 s6, s4, 7')
    E('s_lshl_b32 s7, s3, 5')
    E('s_add_u32 s6, s6, s7')
    E('v_add_u32 v6, s6, v2')
    E('v_lshlrev_b32 v6, 10, v6')
    E('v_lshl_add_u32 v6, v3, 4, v6')
    E('v_add_u32 v7, 0x4000, v6')
    E('s_lshl_b32 s6, s4, 7')
    E('s_sub_u32 s6, s6, 16')
    E('s_lshl_b32 s6, s6, 10')
    E('s_lshl_b32 s7, s3, 8')
    E('s_add_u32 s6, s6, s7')
    E('s_add_u32 s6, s6, %d' % OFF_H)
    E('s_cmp_eq_u32 s4, 0')
    E('s_cselect_b32 s6, 0x7fff0000, s6')
    E('v_lshlrev_b32 v8, 10, v2')
    E('v_lshl_add_u32 v8, v3, 4, v8')
    E('v_add_u32 v8, s6, v8')
    E('s_mov_b32 s52, %d' % OFF_H)
    E('s_lshl_b32 s53, s5, 6')
    for c in range(4):
        for i in range(6):
            E('s_mul_i32 s54, s3, 6')
            E('s_add_u32 s54, s54, %d' % i)
            E('s_lshr_b32 s55, s54, 3')
            E('s_and_b32 s54, s54, 7')
            E('s_add_u32 s54, s54, %d' % (8 * c))
            E('s_lshl_b32 s56, s55, 15')
            E('s_lshl_b32 s57, s54, 10')
            E('s_add_u32 s56, s56, s57')
            E('s_mov_b32 m0, s56')
            E('s_mul_i32 s57, s54, %d' % (16 * 3072))
            E('s_lshl_b32 s55, s55, 10')
            E('s_add_u32 s57, s57, s55')
            E('s_add_u32 s57, s57, s53')
            E('buffer_load_dwordx4 v5, %s, s57 offen lds' % srd('WQKV'))
        for ks in range(4 * c, 4 * c + 4):
            E('buffer_load_dwordx4 a[%d:%d], v6, %s, s52 offen offset:%d' % (8 * ks, 8 * ks + 3, srd('WS'), 64 * ks))
            E('buffer_load_dwordx4 a[%d:%d], v7, %s, s52 offen offset:%d' % (8 * ks + 4, 8 * ks + 7, srd('WS'), 64 * ks))
    for q in range(4):
        E('buffer_load_dwordx4 a[%d:%d], v8, %s, 0 offen offset:%d' % (128 + 4 * q, 131 + 4 * q, srd('WS'), 64 * q))
    E('v_lshrrev_b32 v9, 2, v2')
    E('v_lshl_add_u32 v9, v3, 3, v9')
    E('v_lshlrev_b32 v9, 6, v9')
    E('v_and_b32 v10, 3, v2')
    E('v_lshl_add_u32 v9, v10, 3, v9')
    E('v_and_b32 v10, 1, v3')
    E('v_lshl_add_u32 v10, v10, 5, v9')
    E('v_xor_b32 v11, 32, v10')
    E('v_add_u32 v12, 0x10000, v10')
    E('v_add_u32 v13, 0x10000, v11')
    E('s_lshl_b32 s6, s3, 13')
    for k in range(4):
        E('v_add_u32 v%d, s6, v%d' % (14 + k, 10 + k))
    ACC = 64
    for r in range(64, 128):
        E('v_mov_b32 v%d, 0' % r)
    BF = 128

    def bread(ks, buf, bases=(10, 11, 12, 13), segs=(0, 1, 2)):
        for seg in segs:
            for hh in range(2):
                t = seg * 2 + hh
                base = bases[hh] if seg < 2 else bases[2 + hh]
                off = (seg % 2) * 32768 + ks * 2048
                d = BF + buf * 24 + t * 4
                E('ds_read_b64_tr_b16 v[%d:%d], v%d offset:%d' % (d, d + 1, base, off))
                E('ds_read_b64_tr_b16 v[%d:%d], v%d offset:%d' % (d + 2, d + 3, base, off + 256))

    def mm(acc, afrag, bfrag, seg):
        if seg < 2:
            E('v_mfma_f32_16x16x32_bf16 v[%d:%d], v[%d:%d], a[%d:%d], v[%d:%d]' % (acc, acc + 3, bfrag, bfrag + 3, afrag, afrag + 3, acc, acc + 3))
        else:
            E('v_mfma_f32_16x16x32_bf16 v[%d:%d], a[%d:%d], v[%d:%d], v[%d:%d]' % (acc, acc + 3, afrag, afrag + 3, bfrag, bfrag + 3, acc, acc + 3))

    for c in range(4):
        E('s_waitcnt vmcnt(%d)' % (60 - 14 * (c + 1)))
        E('s_barrier')
        bread(4 * c, 0)
        for ks in range(4 * c, 4 * c + 4):
            buf = ks & 1
            if ks + 1 < 4 * c + 4:
                bread(ks + 1, buf ^ 1)
                E('s_waitcnt lgkmcnt(12)')
            else:
                E('s_waitcnt lgkmcnt(0)')
            for t in range(6):
                for b in range(2):
                    mm(ACC + (b * 6 + t) * 4, 8 * ks + 4 * b, BF + buf * 24 + t * 4, t // 2)
    E('s_waitcnt vmcnt(0)')
    for q in range(4):
        bread(q, q & 1, bases=(14, 15, 16, 17), segs=(1, 2))
        E('s_waitcnt lgkmcnt(0)')
        for t in range(2, 6):
            mm(112 + (t - 2) * 4, 128 + 4 * q, BF + (q & 1) * 24 + t * 4, t // 2)
    def KP(hh, b): return 176 + hh * 6 + (b + 1) * 2
    def VP(hh, b): return 188 + hh * 6 + (b + 1) * 2
    def QP(hh, b): return 200 + hh * 4 + b * 2
    for b in range(2):
        for hh in range(2):
            for seg, fn in ((0, QP), (1, KP), (2, VP)):
                a = ACC + (b * 6 + seg * 2 + hh) * 4
                d = fn(hh, b)
                E('v_cvt_pk_bf16_f32 v%d, v%d, v%d' % (d, a, a + 1))
                E('v_cvt_pk_bf16_f32 v%d, v%d, v%d' % (d + 1, a + 2, a + 3))
    E('v_lshlrev_b32 v20, 3, v1')
    E('s_lshl_b32 s6, s3, 11')
    E('s_add_u32 s6, s6, %d' % LDS_X)
    E('v_add_u32 v21, s6, v20')
    E('ds_write_b64 v21, v[%d:%d] offset:2048' % (KP(0, 1), KP(0, 1) + 1))
    E('ds_write_b64 v21, v[%d:%d] offset:2560' % (KP(1, 1), KP(1, 1) + 1))
    E('ds_write_b64 v21, v[%d:%d] offset:3072' % (VP(0, 1), VP(0, 1) + 1))
    E('ds_write_b64 v21, v[%d:%d] offset:3584' % (VP(1, 1), VP(1, 1) + 1))
    LDS_HP = LDS_X + 5 * 2048
    E('v_lshlrev_b32 v22, 4, v1')
    E('s_lshl_b32 s6, s3, 12')
    E('s_add_u32 s6, s6, %d' % LDS_HP)
    E('v_add_u32 v23, s6, v22')
    for t in range(4):
        E('ds_write_b128 v23, v[%d:%d] offset:%d' % (112 + 4 * t, 115 + 4 * t, 1024 * t))
    E('s_waitcnt lgkmcnt(0)')
    E('s_barrier')
    E('s_cmp_eq_u32 s3, 0')
    E('s_cbranch_scc1 L_k1_w0')
    E('ds_read_b64 v[%d:%d], v21' % (KP(0, -1), KP(0, -1) + 1))
    E('ds_read_b64 v[%d:%d], v21 offset:512' % (KP(1, -1), KP(1, -1) + 1))
    E('ds_read_b64 v[%d:%d], v21 offset:1024' % (VP(0, -1), VP(0, -1) + 1))
    E('ds_read_b64 v[%d:%d], v21 offset:1536' % (VP(1, -1), VP(1, -1) + 1))
    E('s_waitcnt lgkmcnt(0)')
    E('s_branch L_k1_join')
    E('L_k1_w0:')
    E('v_add_u32 v23, %d, v22' % LDS_HP)
    for w in range(1, 4):
        for t in range(4):
            E('ds_read_b128 v[%d:%d], v23 offset:%d' % (128 + 4 * t, 131 + 4 * t, w * 4096 + t * 1024))
        E('s_waitcnt lgkmcnt(0)')
        for r in range(16):
            E('v_add_f32 v%d, v%d, v%d' % (112 + r, 112 + r, 128 + r))
    for t, d in enumerate((KP(0, -1), KP(1, -1), VP(0, -1), VP(1, -1))):
        E('v_cvt_pk_bf16_f32 v%d, v%d, v%d' % (d, 112 + 4 * t, 113 + 4 * t))
        E('v_cvt_pk_bf16_f32 v%d, v%d, v%d' % (d + 1, 114 + 4 * t, 115 + 4 * t))
    E('L_k1_join:')
    E('v_mov_b32 v36, %s' % f32(-1e30))
    E('s_or_b32 s6, s4, s3')
    E('s_cmp_eq_u32 s6, 0')
    E('s_cselect_b32 s7, 64, 0')
    for r in range(4):
        E('v_lshl_add_u32 v37, v3, 2, %d' % r)
        E('v_sub_u32 v37, v2, v37')
        E('v_and_b32 v38, 0x80000001, v37')
        E('v_cmp_eq_u32 vcc, 0, v38')
        E('v_cndmask_b32 v%d, v36, 0, vcc' % (24 + r))
        E('v_add_u32 v37, 16, v37')
        E('v_and_b32 v38, 1, v37')
        E('v_lshl_add_u32 v38, v38, 6, v37')
        E('v_cmp_gt_u32 vcc, 15, v38')
        E('v_cndmask_b32 v%d, v36, 0, vcc' % (28 + r))
        E('v_add_u32 v38, s7, v38')
        E('v_cmp_gt_u32 vcc, 15, v38')
        E('v_cndmask_b32 v%d, v36, 0, vcc' % (32 + r))
    E('s_mov_b32 s6, %s' % f32(0.25 * LOG2E))
    E('v_and_b32 v37, 1, v3')
    E('v_lshlrev_b32 v37, 5, v37')
    E('v_lshrrev_b32 v38, 1, v3')
    E('v_lshl_add_u32 v37, v38, 4, v37')
    E('v_lshl_add_u32 v37, v2, 10, v37')
    E('s_lshl_b32 s54, s4, 7\ns_lshl_b32 s55, s3, 5\ns_add_u32 s54, s54, s55\ns_lshl_b32 s54, s54, 10')
    E('s_add_u32 s54, s54, s53')
    E('s_add_u32 s54, s54, %d' % OFF_O)
    for b in range(2):
        for hh in range(2):
            S = 128 + hh * 8
            E('v_mfma_f32_16x16x16_bf16 v[%d:%d], v[%d:%d], v[%d:%d], 0' % (S, S + 3, KP(hh, b - 1), KP(hh, b - 1) + 1, QP(hh, b), QP(hh, b) + 1))
            E('v_mfma_f32_16x16x16_bf16 v[%d:%d], v[%d:%d], v[%d:%d], 0' % (S + 4, S + 7, KP(hh, b), KP(hh, b) + 1, QP(hh, b), QP(hh, b) + 1))
        for hh in range(2):
            S = 128 + hh * 8
            M = 144 + hh * 2
            PB = 148 + hh * 4
            for r in range(8):
                if MIMIC_LG:
                    round_bf16(S + r, S + r)
                bias = (32 + r if b == 0 else 28 + r) if r < 4 else 24 + r - 4
                E('v_fma_f32 v%d, v%d, s6, v%d' % (S + r, S + r, bias))
            E('v_max3_f32 v%d, v%d, v%d, v%d' % (M, S, S + 1, S + 2))
            E('v_max3_f32 v%d, v%d, v%d, v%d' % (M, M, S + 3, S + 4))
            E('v_max3_f32 v%d, v%d, v%d, v%d' % (M, M, S + 5, S + 6))
            E('v_max_f32 v%d, v%d, v%d' % (M, M, S + 7))
            allreduce_lg('v_max_f32', M, M + 1)
            for r in range(8):
                E('v_sub_f32 v%d, v%d, v%d' % (S + r, S + r, M))
                E('v_exp_f32 v%d, v%d' % (S + r, S + r))
            E('v_add_f32 v%d, v%d, v%d' % (M, S, S + 1))
            for r in range(2, 8):
                E('v_add_f32 v%d, v%d, v%d' % (M, M, S + r))
            allreduce_lg('v_add_f32', M, M + 1)
            E('v_rcp_f32 v%d, v%d' % (M, M))
            for r in range(8):
                E('v_mul_f32 v%d, v%d, v%d' % (S + r, S + r, M))
            for p in range(4):
                E('v_cvt_pk_bf16_f32 v%d, v%d, v%d' % (PB + p, S + 2 * p, S + 2 * p + 1))
        for hh in range(2):
            PB = 148 + hh * 4
            O = 156 + hh * 4
            E('v_mfma_f32_16x16x32_bf16 v[%d:%d], v[%d:%d], v[%d:%d], 0' % (O, O + 3, VP(hh, b - 1), VP(hh, b - 1) + 3, PB, PB + 3))
        E('v_cvt_pk_bf16_f32 v164, v156, v157')
        E('v_cvt_pk_bf16_f32 v165, v158, v159')
        E('v_cvt_pk_bf16_f32 v166, v160, v161')
        E('v_cvt_pk_bf16_f32 v167, v162, v163')
        E('v_permlane16_swap_b32 v164, v166')
        E('v_permlane16_swap_b32 v165, v167')
        E('s_add_u32 s55, s54, %d' % (b * 16384))
        E('buffer_store_dwordx4 v[164:167], v37, %s, s55 offen' % srd('WS'))
    E('s_waitcnt vmcnt(0)')
    kernel_end(name, 256, LDS_HP + 16384, 256, 256)


def k_splitk(which):
    if which == 2:
        name, WB, NKS, APITCH, AOFF, GOFF = 'k2wo_kernel', 'WO', 4, 1024, OFF_O, 1024
        bufs = ['WO', 'X', 'WS']
    else:
        name, WB, NKS, APITCH, AOFF, GOFF = 'k4w2_kernel', 'W2', 11, 2752, OFF_HH, 2560
        bufs = ['W2', 'OUT', 'WS']
    kernel_begin(name, 256, bufs)
    NSLOT = min(NKS, 9)
    WREG = NSLOT * 4096
    E('s_lshl_b32 s6, s4, 7\ns_lshr_b32 s7, s5, 3\ns_lshl_b32 s7, s7, 6\ns_add_u32 s6, s6, s7')
    E('s_and_b32 s7, s5, 7\ns_lshl_b32 s7, s7, 6')
    E('s_mul_i32 s52, s3, %d' % NKS)
    E('v_lshrrev_b32 v5, 3, v1')
    E('v_and_b32 v6, 7, v1')
    E('v_lshlrev_b32 v5, 10, v5')
    E('v_lshl_add_u32 v8, v6, 4, v5')
    E('v_xor_b32 v9, 64, v8')
    E('s_movk_i32 s53, %d' % APITCH)
    for d in range(4):
        E('s_add_u32 s54, s3, %d\ns_and_b32 s54, s54, 3\ns_lshl_b32 s54, s54, 4\ns_add_u32 s54, s54, s6' % d)
        E('v_add_u32 v10, s54, v2')
        E('v_mul_lo_u32 v10, v10, s53')
        E('v_lshl_add_u32 v%d, v3, 4, v10' % (12 + d))
    E('s_lshl_b32 s54, s52, 6')
    E('s_add_u32 s54, s54, %d' % AOFF)
    E('s_lshl_b32 s55, s52, 15')
    E('s_lshl_b32 s56, s7, 1')
    E('s_add_u32 s55, s55, s56')
    E('s_mul_i32 s57, s3, %d' % WREG)
    last_skip = (which == 4)

    def issue_b(ks):
        for q in range(4):
            E('s_add_u32 s58, s57, %d' % ((ks % NSLOT) * 4096 + q * 1024))
            E('s_mov_b32 m0, s58')
            E('s_add_u32 s59, s55, %d' % (ks * 32768 + q * 8192))
            E('buffer_load_dwordx4 v%d, %s, s59 offen lds' % (8 + (q & 1), srd(WB)))

    def issue_a(ks):
        for d in range(4):
            r = (ks * 4 + d) * 4
            E('buffer_load_dwordx4 a[%d:%d], v%d, %s, s54 offen offset:%d' % (r, r + 3, 12 + d, srd('WS'), 64 * ks))

    issued = []
    npre = min(NKS, 7)
    for ks in range(npre):
        issue_b(ks); issue_a(ks)
    E('v_lshrrev_b32 v16, 2, v2')
    E('v_lshl_add_u32 v16, v3, 3, v16')
    E('v_lshlrev_b32 v16, 7, v16')
    E('v_and_b32 v17, 3, v2')
    E('v_lshl_add_u32 v16, v17, 4, v16')
    E('v_and_b32 v17, 1, v3')
    E('v_lshl_add_u32 v16, v17, 6, v16')
    E('v_add_u32 v16, s57, v16')
    E('v_xor_b32 v17, 64, v16')
    ACC = 64
    for r in range(64, 128):
        E('v_mov_b32 v%d, 0' % r)
    BF = 128

    def bread(ks, buf):
        for ct in range(4):
            base = 16 + (ct >> 1)
            off = (ks % NSLOT) * 4096 + (ct & 1) * 8
            dreg = BF + buf * 16 + ct * 4
            E('ds_read_b64_tr_b16 v[%d:%d], v%d offset:%d' % (dreg, dreg + 1, base, off))
            E('ds_read_b64_tr_b16 v[%d:%d], v%d offset:%d' % (dreg + 2, dreg + 3, base, off + 512))

    nissued = npre
    for ks in range(NKS):
        if last_skip and ks == NKS - 1:
            E('s_cmp_eq_u32 s3, 3')
            E('s_cbranch_scc1 L_%s_skip' % name)
        E('s_waitcnt vmcnt(%d)' % ((nissued - ks - 1) * 8))
        bread(ks, ks & 1)
        E('s_waitcnt lgkmcnt(0)')
        if nissued < NKS:
            assert nissued - NSLOT <= ks
            issue_b(nissued); issue_a(nissued); nissued += 1
        for d in range(4):
            for ct in range(4):
                acc = ACC + (d * 4 + ct) * 4
                bf = BF + (ks & 1) * 16 + ct * 4
                af = (ks * 4 + d) * 4
                E('v_mfma_f32_16x16x32_bf16 v[%d:%d], v[%d:%d], a[%d:%d], v[%d:%d]' % (acc, acc + 3, bf, bf + 3, af, af + 3, acc, acc + 3))
    if last_skip:
        E('L_%s_skip:' % name)
    E('s_waitcnt vmcnt(0)')
    E('s_lshl_b32 s58, s3, 4\ns_add_u32 s58, s58, s6')
    E('v_add_u32 v20, s58, v2')
    E('v_lshlrev_b32 v21, 10, v20')
    E('v_lshl_add_u32 v21, v3, 4, v21')
    E('s_lshl_b32 s59, s7, 1')
    if which == 2:
        E('buffer_load_dwordx4 v[160:163], v21, %s, s59 offen' % srd('X'))
        E('buffer_load_dwordx4 v[164:167], v21, %s, s59 offen offset:64' % srd('X'))
    else:
        E('s_add_u32 s60, s59, %d' % OFF_X1)
        E('buffer_load_dwordx4 v[160:163], v21, %s, s60 offen' % srd('WS'))
        E('buffer_load_dwordx4 v[164:167], v21, %s, s60 offen offset:64' % srd('WS'))
    E('v_lshlrev_b32 v22, 5, v3')
    E('s_lshl_b32 s60, s7, 2')
    E('s_add_u32 s60, s60, %d' % (OFF_MOD + GOFF * 4))
    for c in range(2):
        for hlf in range(2):
            E('buffer_load_dwordx4 v[%d:%d], v22, %s, s60 offen offset:%d' % (168 + c * 8 + hlf * 4, 171 + c * 8 + hlf * 4, srd('WS'), c * 128 + hlf * 16))
    E('s_barrier')
    E('v_lshlrev_b32 v23, 4, v1')
    for d in range(1, 4):
        E('s_add_u32 s58, s3, %d\ns_and_b32 s58, s58, 3\ns_mul_i32 s58, s58, 12288' % d)
        E('v_add_u32 v24, s58, v23')
        for ct in range(4):
            acc = ACC + (d * 4 + ct) * 4
            E('ds_write_b128 v24, v[%d:%d] offset:%d' % (acc, acc + 3, (d - 1) * 4096 + ct * 1024))
    E('s_waitcnt lgkmcnt(0)')
    E('s_barrier')
    E('s_mul_i32 s58, s3, 12288')
    E('v_add_u32 v24, s58, v23')
    for d in range(1, 4):
        for ct in range(4):
            acc = ACC + (d * 4 + ct) * 4
            E('ds_read_b128 v[%d:%d], v24 offset:%d' % (acc, acc + 3, (d - 1) * 4096 + ct * 1024))
    E('s_waitcnt lgkmcnt(0)')
    for d in range(1, 4):
        for r in range(16):
            E('v_add_f32 v%d, v%d, v%d' % (ACC + r, ACC + r, ACC + d * 16 + r))
    E('s_waitcnt vmcnt(0)')
    for i in range(16):
        a = ACC + i
        round_bf16(a, a)
        E('v_mul_f32 v%d, v%d, v%d' % (a, a, 168 + i))
        round_bf16(a, a)
        src = 160 + i // 2
        if i % 2 == 0:
            E('v_lshlrev_b32 v25, 16, v%d' % src)
        else:
            E('v_and_b32 v25, 0xffff0000, v%d' % src)
        E('v_add_f32 v%d, v%d, v25' % (a, a))
    for p in range(8):
        E('v_cvt_pk_bf16_f32 v%d, v%d, v%d' % (184 + p, ACC + 2 * p, ACC + 2 * p + 1))
    if which == 2:
        E('s_add_u32 s60, s59, %d' % OFF_X1)
        E('buffer_store_dwordx4 v[184:187], v21, %s, s60 offen' % srd('WS'))
        E('buffer_store_dwordx4 v[188:191], v21, %s, s60 offen offset:64' % srd('WS'))
        for p in range(8):
            E('v_lshlrev_b32 v%d, 16, v%d' % (ACC + 2 * p, 184 + p))
            E('v_and_b32 v%d, 0xffff0000, v%d' % (ACC + 2 * p + 1, 184 + p))
        E('v_add_f32 v26, v64, v65')
        for i in range(2, 16):
            E('v_add_f32 v26, v26, v%d' % (ACC + i))
        allreduce_lg('v_add_f32', 26, 28)
        E('v_mul_f32 v26, %s, v26' % f32(1.0 / 64))
        E('v_mov_b32 v27, 0')
        for i in range(16):
            E('v_sub_f32 v28, v%d, v26' % (ACC + i))
            E('v_fmac_f32 v27, v28, v28')
        allreduce_lg('v_add_f32', 27, 28)
        E('v_lshlrev_b32 v28, 6, v20')
        E('s_and_b32 s60, s5, 7\ns_lshl_b32 s60, s60, 3\ns_add_u32 s60, s60, %d' % OFF_ST)
        E('buffer_store_dwordx2 v[26:27], v28, %s, s60 offen' % srd('WS'))
    else:
        E('buffer_store_dwordx4 v[184:187], v21, %s, s59 offen' % srd('OUT'))
        E('buffer_store_dwordx4 v[188:191], v21, %s, s59 offen offset:64' % srd('OUT'))
    E('s_waitcnt vmcnt(0)')
    kernel_end(name, 256, max(4 * WREG, 49152), 256, 256)


def k_ffn1():
    name = 'k3ffn_kernel'
    kernel_begin(name, 256, ['WS'])
    NSLOT = 12
    LDS_UT = NSLOT * 12288
    pair_start_s(6)
    E('v_lshlrev_b32 v5, 4, v1')
    E('s_lshl_b32 s7, s4, 7\ns_lshl_b32 s52, s3, 5\ns_add_u32 s7, s7, s52')
    E('v_add_u32 v20, s7, v2')
    E('v_lshlrev_b32 v6, 10, v20')
    E('v_lshl_add_u32 v6, v3, 4, v6')
    E('v_add_u32 v7, 0x4000, v6')
    E('s_mov_b32 s52, %d' % OFF_X1)
    for i in range(3):
        E('s_mul_i32 s53, s3, 3\ns_add_u32 s53, s53, %d' % i)
        E('s_lshr_b32 s54, s53, 2\ns_add_u32 s54, s54, s6\ns_lshl_b32 s54, s54, 16')
        E('s_and_b32 s55, s53, 3\ns_lshl_b32 s55, s55, 10\ns_add_u32 s54, s54, s55')
        E('s_add_u32 s%d, s54, %d' % (56 + i, OFF_WF))
        E('s_lshl_b32 s%d, s53, 10' % (60 + i))

    def issue_b(ks):
        for i in range(3):
            E('s_add_u32 s53, s%d, %d' % (60 + i, (ks % NSLOT) * 12288))
            E('s_mov_b32 m0, s53')
            E('s_add_u32 s54, s%d, %d' % (56 + i, ks * 4096))
            E('buffer_load_dwordx4 v5, %s, s54 offen lds' % srd('WS'))

    def issue_a(ks):
        E('buffer_load_dwordx4 a[%d:%d], v6, %s, s52 offen offset:%d' % (8 * ks, 8 * ks + 3, srd('WS'), 64 * ks))
        E('buffer_load_dwordx4 a[%d:%d], v7, %s, s52 offen offset:%d' % (8 * ks + 4, 8 * ks + 7, srd('WS'), 64 * ks))

    E('v_lshlrev_b32 v8, 4, v0')
    E('s_mul_i32 s53, s5, %d' % (16 * 1536))
    E('s_add_u32 s53, s53, %d' % OFF_UT)
    E('v_cmp_gt_u32 vcc, 96, v0')
    E('s_and_saveexec_b64 s[90:91], vcc')
    E('s_cbranch_execz L_k3_ut')
    for kg in range(16):
        E('s_add_u32 s54, s53, %d' % (kg * 1536))
        E('buffer_load_dwordx4 v[%d:%d], v8, %s, s54 offen' % (128 + 4 * kg, 131 + 4 * kg, srd('WS')))
    E('s_waitcnt vmcnt(0)')
    for kg in range(1, 16):
        for r in range(4):
            E('v_add_f32 v%d, v%d, v%d' % (128 + r, 128 + r, 128 + 4 * kg + r))
    E('v_add_u32 v9, %d, v8' % LDS_UT)
    E('ds_write_b128 v9, v[128:131]')
    E('L_k3_ut:')
    E('s_mov_b64 exec, s[90:91]')
    E('v_lshlrev_b32 v9, 6, v20')
    E('s_mov_b32 s53, %d' % OFF_ST)
    for b in range(2):
        for q in range(4):
            E('buffer_load_dwordx4 v[%d:%d], v9, %s, s53 offen offset:%d' % (192 + b * 16 + q * 4, 195 + b * 16 + q * 4, srd('WS'), b * 1024 + q * 16))
    for ks in range(NSLOT - 1):
        issue_b(ks); issue_a(ks)
    nissued = NSLOT - 1
    E('s_waitcnt vmcnt(55)')
    for b in range(2):
        B = 192 + b * 16
        mean, rs = 10 + 2 * b, 11 + 2 * b
        E('v_add_f32 v%d, v%d, v%d' % (mean, B, B + 2))
        for t in range(2, 8):
            E('v_add_f32 v%d, v%d, v%d' % (mean, mean, B + 2 * t))
        E('v_mul_f32 v%d, 0.125, v%d' % (mean, mean)) if False else E('v_mul_f32 v%d, %s, v%d' % (mean, f32(0.125), mean))
        E('v_add_f32 v%d, v%d, v%d' % (rs, B + 1, B + 3))
        for t in range(2, 8):
            E('v_add_f32 v%d, v%d, v%d' % (rs, rs, B + 2 * t + 1))
        E('v_mov_b32 v15, 0')
        for t in range(8):
            E('v_sub_f32 v14, v%d, v%d' % (B + 2 * t, mean))
            E('v_fmac_f32 v15, v14, v14')
        E('v_mov_b32 v14, %s' % f32(64.0))
        E('v_fmac_f32 v%d, v15, v14' % rs)
        E('v_mul_f32 v%d, %s, v%d' % (rs, f32(1.0 / 512), rs))
        round_bf16(mean, mean)
        round_bf16(rs, rs)
        E('v_add_f32 v%d, %s, v%d' % (rs, f32(1e-5), rs))
        round_bf16(rs, rs)
        E('v_sqrt_f32 v%d, v%d' % (rs, rs))
        round_bf16(rs, rs)
        E('v_rcp_f32 v%d, v%d' % (rs, rs))
    ACC = 32
    for r in range(32, 128):
        E('v_mov_b32 v%d, 0' % r)
    BF = 128

    def bread(ks, buf):
        for bi in range(12):
            d = BF + buf * 48 + bi * 4
            off = (ks % NSLOT) * 12288 + bi * 1024
            if off < 65536:
                E('ds_read_b128 v[%d:%d], v5 offset:%d' % (d, d + 3, off))
            elif off < 131072:
                E('ds_read_b128 v[%d:%d], v16 offset:%d' % (d, d + 3, off - 65536))
            else:
                E('ds_read_b128 v[%d:%d], v17 offset:%d' % (d, d + 3, off - 131072))
    E('v_add_u32 v16, 0x10000, v5')
    E('v_add_u32 v17, 0x20000, v5')
    for ks in range(16):
        E('s_waitcnt vmcnt(%d)' % ((nissued - ks - 1) * 5))
        E('s_barrier')
        if nissued < 16:
            assert nissued - NSLOT <= ks - 1
            issue_b(nissued); issue_a(nissued); nissued += 1
        bread(ks, ks & 1)
        E('s_waitcnt lgkmcnt(0)')
        for bi in range(12):
            for b in range(2):
                acc = ACC + (b * 12 + bi) * 4
                bf = BF + (ks & 1) * 48 + bi * 4
                af = 8 * ks + 4 * b
                E('v_mfma_f32_16x16x32_bf16 v[%d:%d], v[%d:%d], a[%d:%d], v[%d:%d]' % (acc, acc + 3, bf, bf + 3, af, af + 3, acc, acc + 3))
    E('v_lshlrev_b32 v18, 5, v3')
    E('v_add_u32 v18, %d, v18' % (LDS_UT - 131072))
    E('v_add_u32 v18, 0x20000, v18')
    E('s_movk_i32 s53, 2752')
    E('v_mul_lo_u32 v19, v20, s53')
    E('v_lshl_add_u32 v19, v3, 4, v19')
    E('s_lshl_b32 s54, s6, 6')
    E('s_add_u32 s54, s54, %d' % OFF_HH)
    E('s_mov_b32 s55, %s' % f32(-LOG2E))
    for p in range(3):
        for m in range(2):
            for ut in range(2):
                d = 128 + (m * 2 + ut) * 8
                off = (m * 2 + ut) * 384 + p * 128
                E('ds_read_b128 v[%d:%d], v18 offset:%d' % (d, d + 3, off))
                E('ds_read_b128 v[%d:%d], v18 offset:%d' % (d + 4, d + 7, off + 16))
        E('s_waitcnt lgkmcnt(0)')
        for b in range(2):
            mean, rs = 10 + 2 * b, 11 + 2 * b
            for e in range(8):
                ct, r = e >> 2, e & 3
                ga = ACC + (b * 12 + p * 4 + 0 + ct) * 4 + r
                ua = ACC + (b * 12 + p * 4 + 2 + ct) * 4 + r
                for a, m in ((ga, 0), (ua, 1)):
                    u, t = 128 + (m * 2) * 8 + e, 128 + (m * 2 + 1) * 8 + e
                    E('v_fma_f32 v%d, -v%d, v%d, v%d' % (a, mean, u, a))
                    E('v_fma_f32 v%d, v%d, v%d, v%d' % (a, a, rs, t))
                    round_bf16(a, a)
                E('v_mul_f32 v14, s55, v%d' % ga)
                E('v_exp_f32 v14, v14')
                E('v_add_f32 v14, 1.0, v14')
                E('v_rcp_f32 v14, v14')
                E('v_mul_f32 v%d, v%d, v14' % (ga, ga))
                round_bf16(ga, ga)
                E('v_mul_f32 v%d, v%d, v%d' % (160 + e, ga, ua))
            for q in range(4):
                E('v_cvt_pk_bf16_f32 v%d, v%d, v%d' % (168 + b * 4 + q, 160 + 2 * q, 161 + 2 * q))
            E('s_add_u32 s53, s54, %d' % (b * 16 * 2752 + p * 64))
            E('buffer_store_dwordx4 v[%d:%d], v19, %s, s53 offen' % (168 + b * 4, 171 + b * 4, srd('WS')))
    E('s_waitcnt vmcnt(0)')
    kernel_end(name, 256, LDS_UT + 1536, 256, 256)


k_mod()
k_prep()
k_qkv()
k_splitk(2)
k_ffn1()
k_splitk(4)

hdr = []
for (name, nwg, lds, vg, ag) in kernels:
    hdr.append('; @launch kernel=%s grid=(%d,1,1) block=(256,1,1) lds=%d' % (name, nwg, lds))
hdr.append('.amdgcn_target "amdgcn-amd-amdhsa--gfx950"')
hdr.append('.text')
tail = []
for (name, nwg, lds, vg, ag) in kernels:
    tail.append('''.section .rodata,"a"
.p2align 6
.amdhsa_kernel %s
  .amdhsa_next_free_vgpr %d
  .amdhsa_next_free_sgpr 102
  .amdhsa_accum_offset %d
  .amdhsa_group_segment_fixed_size 0
  .amdhsa_kernarg_size 96
  .amdhsa_user_sgpr_count 2
  .amdhsa_user_sgpr_kernarg_segment_ptr 1
  .amdhsa_system_sgpr_workgroup_id_x 1
.end_amdhsa_kernel''' % (name, vg + ag, vg))
print('\n'.join(hdr) + '\n' + E.text() + '\n'.join(tail))
```

```python
import sys
from emit import Emitter

MIMIC_LN1 = int(sys.argv[1]) if len(sys.argv) > 1 else 1
MIMIC_LG = int(sys.argv[2]) if len(sys.argv) > 2 else 1

OFF_MOD = 0x0000000
OFF_CNT = 0x0010000
OFF_H = 0x0100000
OFF_O = 0x0400000
OFF_X1 = 0x0700000
OFF_ST = 0x0A00000
OFF_HH = 0x0B00000
OFF_WF = 0x1100000
OFF_UT = 0x1400000

SRD = dict(X=8, WQKV=12, WO=16, W1=20, W3=24, W2=28, C=32, WMOD=36, OUT=40, DBG=44, WS=48)
PTR = dict(X=64, WQKV=66, WO=68, W1=72, W3=74, W2=76, C=78, WMOD=80, OUT=82, DBG=84, WS=86)
SIZE = dict(X=2048 * 512 * 2, WQKV=512 * 1536 * 2, WO=512 * 512 * 2, W1=512 * 1376 * 2, W3=512 * 1376 * 2,
            W2=1376 * 512 * 2, C=1024, WMOD=512 * 3072 * 2, OUT=2048 * 512 * 2, DBG=256, WS=0x10000000)
LOG2E = 1.4426950408889634


def srd(n):
    return 's[%d:%d]' % (SRD[n], SRD[n] + 3)


def f32(x):
    import struct
    return '0x%08x' % struct.unpack('<I', struct.pack('<f', x))[0]


E = Emitter()
kernels = []
import os
STAMP = os.environ.get('STAMP', '')
nst = [0]
def stamp(kn):
    if STAMP != kn: return
    E('s_memrealtime s[92:93]')
    E('s_waitcnt lgkmcnt(0)')
    E('v_mov_b32 v%d, s92' % (232 + nst[0]))
    nst[0] += 1
def stamp_dump(kn):
    if STAMP != kn: return
    E('s_lshl_b32 s92, s2, 2\ns_add_u32 s92, s92, s3\ns_lshl_b32 s92, s92, 7\ns_add_u32 s92, s92, 0x8000000')
    E('v_mov_b32 v231, s92')
    E('s_mov_b64 exec, 1')
    for i in range(nst[0]):
        E('buffer_store_dword v%d, v231, %s, 0 offen offset:%d' % (232 + i, srd('WS'), 4 * i))
    E('s_waitcnt vmcnt(0)')


def kernel_begin(name, nwg, bufs):
    E.raw('.globl %s\n.p2align 8\n.type %s,@function\n%s:' % (name, name, name))
    E.hist = []
    E('s_cmp_lt_u32 s2, %d' % nwg)
    E('s_cbranch_scc1 L_%s_go' % name)
    E('s_endpgm')
    E('L_%s_go:' % name)
    E('s_load_dwordx16 s[64:79], s[0:1], 0')
    E('s_load_dwordx8 s[80:87], s[0:1], 64')
    E('v_and_b32 v1, 63, v0')
    E('v_and_b32 v2, 15, v0')
    E('v_bfe_u32 v3, v0, 4, 2')
    E('v_lshrrev_b32 v4, 6, v0')
    E('v_readfirstlane_b32 s3, v4')
    E('s_and_b32 s4, s2, 7\ns_lshl_b32 s4, s4, 1\ns_bfe_u32 s5, s2, 0x10003\ns_or_b32 s4, s4, s5\ns_lshr_b32 s5, s2, 4')
    E('s_waitcnt lgkmcnt(0)')
    for b in bufs:
        r = SRD[b]
        E('s_mov_b32 s%d, s%d\ns_and_b32 s%d, s%d, 0xffff\ns_mov_b32 s%d, 0x%x\ns_mov_b32 s%d, 0x20000' % (
            r, PTR[b], r + 1, PTR[b] + 1, r + 2, SIZE[b], r + 3))


def kernel_end(name, nwg, lds, vgpr=256, agpr=256):
    E('s_endpgm')
    kernels.append((name, nwg, lds, vgpr, agpr))


def allreduce_lg(op, v, tmp):
    E('v_mov_b32 v%d, v%d' % (tmp, v))
    E('v_permlane32_swap_b32 v%d, v%d' % (v, tmp))
    E('%s v%d, v%d, v%d' % (op, v, v, tmp))
    E('v_mov_b32 v%d, v%d' % (tmp, v))
    E('v_permlane16_swap_b32 v%d, v%d' % (v, tmp))
    E('%s v%d, v%d, v%d' % (op, v, v, tmp))


def allreduce_row16(op, v):
    for sh in (1, 2, 4, 8):
        E('%s_dpp v%d, v%d, v%d row_ror:%d row_mask:0xf bank_mask:0xf' % (op, v, v, v, sh))


def round_bf16(dst, src):
    E('v_cvt_pk_bf16_f32 v%d, v%d, v%d' % (dst, src, src))
    E('v_and_b32 v%d, 0xffff0000, v%d' % (dst, dst))


def k_mod():
    name = 'k0mod_kernel'
    kernel_begin(name, 96, ['C', 'WMOD', 'WS'])
    E('v_and_b32 v5, 3, v0')
    E('v_lshrrev_b32 v6, 2, v0')
    E('s_movk_i32 s6, 6144')
    E('v_mul_lo_u32 v7, v6, s6')
    E('v_lshl_add_u32 v7, v5, 4, v7')
    E('v_lshlrev_b32 v8, 1, v6')
    E('s_lshl_b32 s6, s2, 6')
    for it in range(8):
        E('buffer_load_ushort v%d, v8, %s, 0 offen offset:%d' % (10 + it, srd('C'), it * 128))
    for it in range(8):
        E('s_add_u32 s7, s6, %d' % (it * 393216))
        E('buffer_load_dwordx4 v[%d:%d], v7, %s, s7 offen' % (32 + 4 * it, 35 + 4 * it, srd('WMOD')))
    E('s_waitcnt vmcnt(8)')
    for it in range(8):
        v = 10 + it
        E('v_lshlrev_b32 v%d, 16, v%d' % (v, v))
        E('v_mul_f32 v20, %s, v%d' % (f32(-LOG2E), v))
        E('v_exp_f32 v20, v20')
        E('v_add_f32 v20, 1.0, v20')
        E('v_rcp_f32 v20, v20')
        E('v_mul_f32 v%d, v%d, v20' % (v, v))
        round_bf16(v, v)
    for e in range(8):
        E('v_mov_b32 v%d, 0' % (20 + e))
    for it in range(8):
        E('s_waitcnt vmcnt(%d)' % (7 - it))
        for p in range(4):
            w = 32 + 4 * it + p
            E('v_lshlrev_b32 v28, 16, v%d' % w)
            E('v_and_b32 v29, 0xffff0000, v%d' % w)
            E('v_fmac_f32 v%d, v28, v%d' % (20 + 2 * p, 10 + it))
            E('v_fmac_f32 v%d, v29, v%d' % (21 + 2 * p, 10 + it))
    for e in range(8):
        for sh in (4, 8):
            E('v_add_f32_dpp v%d, v%d, v%d row_ror:%d row_mask:0xf bank_mask:0xf' % (20 + e, 20 + e, 20 + e, sh))
    for e in range(4):
        E('v_permlane32_swap_b32 v%d, v%d' % (20 + e, 24 + e))
        E('v_add_f32 v%d, v%d, v%d' % (20 + e, 20 + e, 24 + e))
    for e in range(2):
        E('v_permlane16_swap_b32 v%d, v%d' % (20 + e, 22 + e))
        E('v_add_f32 v%d, v%d, v%d' % (20 + e, 20 + e, 22 + e))
    E('v_lshlrev_b32 v9, 5, v5')
    E('v_lshl_add_u32 v9, v3, 3, v9')
    E('s_lshl_b32 s7, s3, 7')
    E('v_add_u32 v9, s7, v9')
    E('ds_write_b64 v9, v[20:21]')
    E('s_waitcnt lgkmcnt(0)')
    E('s_barrier')
    E('v_lshlrev_b32 v9, 2, v0')
    E('v_cmp_gt_u32 vcc, 32, v0')
    E('s_and_saveexec_b64 s[90:91], vcc')
    E('s_cbranch_execz L_k0_done')
    E('ds_read_b32 v20, v9\nds_read_b32 v21, v9 offset:128\nds_read_b32 v22, v9 offset:256\nds_read_b32 v23, v9 offset:384')
    E('s_waitcnt lgkmcnt(0)')
    E('v_add_f32 v20, v20, v21\nv_add_f32 v22, v22, v23\nv_add_f32 v20, v20, v22')
    round_bf16(20, 20)
    E('s_lshl_b32 s7, s2, 7')
    E('buffer_store_dword v20, v9, %s, s7 offen' % srd('WS'))
    E('s_waitcnt vmcnt(0)')
    E('L_k0_done:')
    kernel_end(name, 96, 512, 64, 0)


def pair_start_s(dst):
    E('s_mul_i32 s%d, s5, 0x5556' % dst)
    E('s_lshr_b32 s%d, s%d, 13' % (dst, dst))


def k_prep():
    name = 'k0prep_kernel'
    kernel_begin(name, 256, ['X', 'W1', 'W3', 'WS'])
    pair_start_s(6)
    E('v_lshrrev_b32 v5, 2, v1')
    E('v_and_b32 v6, 3, v1')
    E('s_movk_i32 s7, 2752')
    E('v_mul_lo_u32 v7, v5, s7')
    E('v_lshl_add_u32 v7, v6, 4, v7')
    E('s_mul_i32 s52, s4, %d' % (32 * 2752))
    E('s_lshl_b32 s53, s6, 6')
    E('s_add_u32 s52, s52, s53')
    E('s_cmp_ge_u32 s3, 2')
    E('s_cselect_b32 s56, %d, %d' % (0, 0))
    E('s_cmp_ge_u32 s3, 2')
    E('s_cselect_b32 s56, s%d, s%d' % (SRD['W3'], SRD['W1']))
    E('s_cselect_b32 s57, s%d, s%d' % (SRD['W3'] + 1, SRD['W1'] + 1))
    E('s_mov_b32 s58, 0x%x\ns_mov_b32 s59, 0x20000' % SIZE['W1'])
    E('s_and_b32 s60, s3, 1')
    E('s_mul_i32 s60, s60, 3')
    for i in range(3):
        E('s_add_u32 s61, s60, %d' % i)
        E('s_lshr_b32 s62, s61, 1')
        E('s_and_b32 s63, s61, 1')
        E('s_lshl_b32 s62, s62, 6')
        E('s_mul_i32 s63, s63, %d' % (16 * 2752))
        E('s_add_u32 s62, s62, s63')
        E('s_add_u32 s62, s62, s52')
        E('s_mul_i32 s63, s3, 3072')
        E('s_add_u32 s63, s63, %d' % (i * 1024))
        E('s_mov_b32 m0, s63')
        E('buffer_load_dwordx4 v7, s[56:59], s62 offen lds')
    E('s_lshl_b32 s52, s2, 3')
    E('s_lshl_b32 s53, s3, 1')
    E('s_add_u32 s52, s52, s53')
    E('s_lshl_b32 s52, s52, 10')
    E('v_lshlrev_b32 v8, 4, v1')
    E('buffer_load_dwordx4 v[16:19], v8, %s, s52 offen' % srd('X'))
    E('buffer_load_dwordx4 v[20:23], v8, %s, s52 offen offset:1024' % srd('X'))
    E('v_lshlrev_b32 v9, 5, v1')
    E('buffer_load_dwordx4 v[24:27], v9, %s, 0 offen offset:%d' % (srd('WS'), OFF_MOD))
    E('buffer_load_dwordx4 v[28:31], v9, %s, 0 offen offset:%d' % (srd('WS'), OFF_MOD + 16))
    E('buffer_load_dwordx4 v[32:35], v9, %s, 0 offen offset:%d' % (srd('WS'), OFF_MOD + 2048))
    E('buffer_load_dwordx4 v[36:39], v9, %s, 0 offen offset:%d' % (srd('WS'), OFF_MOD + 2048 + 16))
    E('v_lshlrev_b32 v10, 5, v3')
    E('s_lshl_b32 s53, s4, 7')
    E('s_add_u32 s53, s53, %d' % (OFF_MOD + 1536 * 4))
    E('buffer_load_dwordx4 v[40:43], v10, %s, s53 offen' % srd('WS'))
    E('buffer_load_dwordx4 v[44:47], v10, %s, s53 offen offset:16' % srd('WS'))
    E('buffer_load_dwordx4 v[48:51], v10, %s, s53 offen offset:2048' % srd('WS'))
    E('buffer_load_dwordx4 v[52:55], v10, %s, s53 offen offset:2064' % srd('WS'))
    E('s_waitcnt vmcnt(0)')
    E('s_barrier')
    for e in range(8):
        E('v_add_f32 v%d, 1.0, v%d' % (32 + e, 32 + e))
        round_bf16(32 + e, 32 + e)
        E('v_add_f32 v%d, 1.0, v%d' % (48 + e, 48 + e))
        round_bf16(48 + e, 48 + e)
    for row in range(2):
        src = 16 + 4 * row
        X = 64
        for p in range(4):
            E('v_lshlrev_b32 v%d, 16, v%d' % (X + 2 * p, src + p))
            E('v_and_b32 v%d, 0xffff0000, v%d' % (X + 2 * p + 1, src + p))
        E('v_add_f32 v72, v64, v65')
        for e in range(2, 8):
            E('v_add_f32 v72, v72, v%d' % (X + e))
        allreduce_row16('v_add_f32', 72)
        allreduce_lg('v_add_f32', 72, 73)
        E('v_mul_f32 v72, %s, v72' % f32(1.0 / 512))
        E('v_mov_b32 v74, 0')
        for e in range(8):
            E('v_sub_f32 v75, v%d, v72' % (X + e))
            E('v_fmac_f32 v74, v75, v75')
        allreduce_row16('v_add_f32', 74)
        allreduce_lg('v_add_f32', 74, 73)
        E('v_mul_f32 v74, %s, v74' % f32(1.0 / 512))
        if MIMIC_LN1:
            round_bf16(72, 72)
            round_bf16(74, 74)
            E('v_add_f32 v74, %s, v74' % f32(1e-5))
            round_bf16(74, 74)
            E('v_sqrt_f32 v74, v74')
            round_bf16(74, 74)
            E('v_rcp_f32 v74, v74')
            for e in range(8):
                x = X + e
                E('v_sub_f32 v%d, v%d, v72' % (x, x))
                round_bf16(x, x)
                E('v_mul_f32 v%d, v%d, v74' % (x, x))
                round_bf16(x, x)
                if MIMIC_LN1 == 1:
                    E('v_mul_f32 v%d, v%d, v%d' % (x, x, 32 + e))
                    round_bf16(x, x)
                    E('v_add_f32 v%d, v%d, v%d' % (x, x, 24 + e))
                else:
                    E('v_fma_f32 v%d, v%d, v%d, v%d' % (x, x, 32 + e, 24 + e))
        else:
            E('v_add_f32 v74, %s, v74' % f32(1e-5))
            E('v_rsq_f32 v74, v74')
            for e in range(8):
                x = X + e
                E('v_sub_f32 v%d, v%d, v72' % (x, x))
                E('v_mul_f32 v%d, v%d, v74' % (x, x))
                E('v_fma_f32 v%d, v%d, v%d, v%d' % (x, x, 32 + e, 24 + e))
        for p in range(4):
            E('v_cvt_pk_bf16_f32 v%d, v%d, v%d' % (76 + p, X + 2 * p, X + 2 * p + 1))
        E('s_add_u32 s53, s52, %d' % (OFF_H + row * 1024))
        E('buffer_store_dwordx4 v[76:79], v8, %s, s53 offen' % srd('WS'))
    E('v_lshrrev_b32 v11, 2, v2')
    E('v_lshl_add_u32 v11, v3, 3, v11')
    E('v_lshlrev_b32 v11, 6, v11')
    E('v_and_b32 v12, 3, v2')
    E('v_lshl_add_u32 v11, v12, 4, v11')
    E('v_lshrrev_b32 v13, 2, v2')
    E('v_lshl_add_u32 v13, v13, 3, v12')
    E('v_lshlrev_b32 v13, 2, v13')
    E('v_lshrrev_b32 v14, 1, v3')
    E('s_movk_i32 s7, 384')
    E('v_mul_lo_u32 v14, v14, s7')
    E('v_add_u32 v13, v13, v14')
    for i in range(3):
        E('s_mul_i32 s60, s3, 3')
        E('s_add_u32 s60, s60, %d' % i)
        E('s_and_b32 s61, s60, 1')
        E('s_andn2_b32 s62, s60, 1')
        E('s_lshl_b32 s62, s62, 10')
        E('s_lshl_b32 s63, s61, 3')
        E('s_add_u32 s62, s62, s63')
        E('v_add_u32 v15, s62, v11')
        E('ds_read_b64_tr_b16 v[80:81], v15')
        E('ds_read_b64_tr_b16 v[82:83], v15 offset:256')
        E('s_waitcnt lgkmcnt(0)')
        X = 64
        for p in range(4):
            E('v_lshlrev_b32 v%d, 16, v%d' % (X + 2 * p, 80 + p))
            E('v_and_b32 v%d, 0xffff0000, v%d' % (X + 2 * p + 1, 80 + p))
        E('v_mul_f32 v73, v64, v40')
        for e in range(1, 8):
            E('v_fmac_f32 v73, v%d, v%d' % (X + e, 40 + e))
        for e in range(8):
            E('v_mul_f32 v%d, v%d, v%d' % (X + e, X + e, 48 + e))
        for p in range(4):
            E('v_cvt_pk_bf16_f32 v%d, v%d, v%d' % (84 + p, X + 2 * p, X + 2 * p + 1))
        E('v_mov_b32 v72, 0')
        for p in range(4):
            E('v_lshlrev_b32 v74, 16, v%d' % (84 + p))
            E('v_add_f32 v72, v72, v74')
            E('v_and_b32 v74, 0xffff0000, v%d' % (84 + p))
            E('v_add_f32 v72, v72, v74')
        E('v_permlane32_swap_b32 v72, v73')
        E('v_add_f32 v72, v72, v73')
        E('v_mov_b32 v73, v72')
        E('v_permlane16_swap_b32 v72, v73')
        E('v_add_f32 v72, v72, v73')
        E('s_cmp_ge_u32 s60, 6')
        E('s_cselect_b32 s62, 1, 0')
        E('s_mul_i32 s63, s62, 6')
        E('s_sub_u32 s63, s60, s63')
        E('s_lshr_b32 s63, s63, 1')
        E('s_add_u32 s54, s6, s63')
        E('s_lshl_b32 s54, s54, 16')
        E('s_lshl_b32 s55, s4, 12')
        E('s_add_u32 s54, s54, s55')
        E('s_lshl_b32 s55, s62, 11')
        E('s_add_u32 s54, s54, s55')
        E('s_lshl_b32 s55, s61, 10')
        E('s_add_u32 s54, s54, s55')
        E('s_add_u32 s54, s54, %d' % OFF_WF)
        E('buffer_store_dwordx4 v[84:87], v8, %s, s54 offen' % srd('WS'))
        E('s_lshl_b32 s54, s5, 4')
        E('s_add_u32 s54, s54, s4')
        E('s_lshl_b32 s54, s54, 1')
        E('s_add_u32 s54, s54, s62')
        E('s_mul_i32 s54, s54, 768')
        E('s_lshl_b32 s55, s63, 7')
        E('s_add_u32 s54, s54, s55')
        E('s_lshl_b32 s55, s61, 4')
        E('s_add_u32 s54, s54, s55')
        E('s_add_u32 s54, s54, %d' % OFF_UT)
        E('buffer_store_dword v72, v13, %s, s54 offen' % srd('WS'))
    E('s_waitcnt vmcnt(0)')
    kernel_end(name, 256, 12288, 96, 0)


def k_qkv():
    name = 'k1qkv_kernel'
    kernel_begin(name, 256, ['WQKV', 'WS'])
    LDS_X = 98304
    stamp('k1')
    E('v_lshrrev_b32 v5, 2, v1')
    E('v_and_b32 v6, 3, v1')
    E('v_lshrrev_b32 v7, 5, v1')
    E('v_lshlrev_b32 v7, 1, v7')
    E('v_xor_b32 v6, v6, v7')
    E('s_movk_i32 s6, 3072')
    E('v_mul_lo_u32 v5, v5, s6')
    E('v_lshl_add_u32 v5, v6, 4, v5')
    E('s_lshl_b32 s6, s4, 7')
    E('s_lshl_b32 s7, s3, 5')
    E('s_add_u32 s6, s6, s7')
    E('v_add_u32 v6, s6, v2')
    E('v_lshlrev_b32 v6, 10, v6')
    E('v_lshl_add_u32 v6, v3, 4, v6')
    E('v_add_u32 v7, 0x4000, v6')
    E('s_lshl_b32 s6, s4, 7')
    E('s_sub_u32 s6, s6, 16')
    E('s_lshl_b32 s6, s6, 10')
    E('s_lshl_b32 s7, s3, 8')
    E('s_add_u32 s6, s6, s7')
    E('s_add_u32 s6, s6, %d' % OFF_H)
    E('s_cmp_eq_u32 s4, 0')
    E('s_cselect_b32 s6, 0x7fff0000, s6')
    E('v_lshlrev_b32 v8, 10, v2')
    E('v_lshl_add_u32 v8, v3, 4, v8')
    E('v_add_u32 v8, s6, v8')
    E('s_mov_b32 s52, %d' % OFF_H)
    E('s_lshl_b32 s53, s5, 6')
    for c in range(4):
        for i in range(6):
            E('s_mul_i32 s54, s3, 6')
            E('s_add_u32 s54, s54, %d' % i)
            E('s_lshr_b32 s55, s54, 3')
            E('s_and_b32 s54, s54, 7')
            E('s_add_u32 s54, s54, %d' % (8 * c))
            E('s_lshl_b32 s56, s55, 15')
            E('s_lshl_b32 s57, s54, 10')
            E('s_add_u32 s56, s56, s57')
            E('s_mov_b32 m0, s56')
            E('s_mul_i32 s57, s54, %d' % (16 * 3072))
            E('s_lshl_b32 s55, s55, 10')
            E('s_add_u32 s57, s57, s55')
            E('s_add_u32 s57, s57, s53')
            E('buffer_load_dwordx4 v5, %s, s57 offen lds' % srd('WQKV'))
        for ks in range(4 * c, 4 * c + 4):
            E('buffer_load_dwordx4 a[%d:%d], v6, %s, s52 offen offset:%d' % (8 * ks, 8 * ks + 3, srd('WS'), 64 * ks))
            E('buffer_load_dwordx4 a[%d:%d], v7, %s, s52 offen offset:%d' % (8 * ks + 4, 8 * ks + 7, srd('WS'), 64 * ks))
    for q in range(4):
        E('buffer_load_dwordx4 a[%d:%d], v8, %s, 0 offen offset:%d' % (128 + 4 * q, 131 + 4 * q, srd('WS'), 64 * q))
    stamp('k1')
    E('v_lshrrev_b32 v9, 2, v2')
    E('v_lshl_add_u32 v9, v3, 3, v9')
    E('v_lshlrev_b32 v9, 6, v9')
    E('v_and_b32 v10, 3, v2')
    E('v_lshl_add_u32 v9, v10, 3, v9')
    E('v_and_b32 v10, 1, v3')
    E('v_lshl_add_u32 v10, v10, 5, v9')
    E('v_xor_b32 v11, 32, v10')
    E('v_add_u32 v12, 0x10000, v10')
    E('v_add_u32 v13, 0x10000, v11')
    E('s_lshl_b32 s6, s3, 13')
    for k in range(4):
        E('v_add_u32 v%d, s6, v%d' % (14 + k, 10 + k))
    ACC = 64
    for r in range(64, 128):
        E('v_mov_b32 v%d, 0' % r)
    BF = 128

    def bread(ks, buf, bases=(10, 11, 12, 13), segs=(0, 1, 2)):
        for seg in segs:
            for hh in range(2):
                t = seg * 2 + hh
                base = bases[hh] if seg < 2 else bases[2 + hh]
                off = (seg % 2) * 32768 + ks * 2048
                d = BF + buf * 24 + t * 4
                E('ds_read_b64_tr_b16 v[%d:%d], v%d offset:%d' % (d, d + 1, base, off))
                E('ds_read_b64_tr_b16 v[%d:%d], v%d offset:%d' % (d + 2, d + 3, base, off + 256))

    def mm(acc, afrag, bfrag, seg):
        if seg < 2:
            E('v_mfma_f32_16x16x32_bf16 v[%d:%d], v[%d:%d], a[%d:%d], v[%d:%d]' % (acc, acc + 3, bfrag, bfrag + 3, afrag, afrag + 3, acc, acc + 3))
        else:
            E('v_mfma_f32_16x16x32_bf16 v[%d:%d], a[%d:%d], v[%d:%d], v[%d:%d]' % (acc, acc + 3, afrag, afrag + 3, bfrag, bfrag + 3, acc, acc + 3))

    for c in range(4):
        E('s_waitcnt vmcnt(%d)' % (60 - 14 * (c + 1)))
        stamp('k1')
        E('s_barrier')
        bread(4 * c, 0)
        for ks in range(4 * c, 4 * c + 4):
            buf = ks & 1
            if ks + 1 < 4 * c + 4:
                bread(ks + 1, buf ^ 1)
                E('s_waitcnt lgkmcnt(12)')
            else:
                E('s_waitcnt lgkmcnt(0)')
            for t in range(6):
                for b in range(2):
                    mm(ACC + (b * 6 + t) * 4, 8 * ks + 4 * b, BF + buf * 24 + t * 4, t // 2)
    stamp('k1')
    E('s_waitcnt vmcnt(0)')
    for q in range(4):
        bread(q, q & 1, bases=(14, 15, 16, 17), segs=(1, 2))
        E('s_waitcnt lgkmcnt(0)')
        for t in range(2, 6):
            mm(112 + (t - 2) * 4, 128 + 4 * q, BF + (q & 1) * 24 + t * 4, t // 2)
    def KP(hh, b): return 176 + hh * 6 + (b + 1) * 2
    def VP(hh, b): return 188 + hh * 6 + (b + 1) * 2
    def QP(hh, b): return 200 + hh * 4 + b * 2
    for b in range(2):
        for hh in range(2):
            for seg, fn in ((0, QP), (1, KP), (2, VP)):
                a = ACC + (b * 6 + seg * 2 + hh) * 4
                d = fn(hh, b)
                E('v_cvt_pk_bf16_f32 v%d, v%d, v%d' % (d, a, a + 1))
                E('v_cvt_pk_bf16_f32 v%d, v%d, v%d' % (d + 1, a + 2, a + 3))
    E('v_lshlrev_b32 v20, 3, v1')
    E('s_lshl_b32 s6, s3, 11')
    E('s_add_u32 s6, s6, %d' % LDS_X)
    E('v_add_u32 v21, s6, v20')
    E('ds_write_b64 v21, v[%d:%d] offset:2048' % (KP(0, 1), KP(0, 1) + 1))
    E('ds_write_b64 v21, v[%d:%d] offset:2560' % (KP(1, 1), KP(1, 1) + 1))
    E('ds_write_b64 v21, v[%d:%d] offset:3072' % (VP(0, 1), VP(0, 1) + 1))
    E('ds_write_b64 v21, v[%d:%d] offset:3584' % (VP(1, 1), VP(1, 1) + 1))
    LDS_HP = LDS_X + 5 * 2048
    E('v_lshlrev_b32 v22, 4, v1')
    E('s_lshl_b32 s6, s3, 12')
    E('s_add_u32 s6, s6, %d' % LDS_HP)
    E('v_add_u32 v23, s6, v22')
    for t in range(4):
        E('ds_write_b128 v23, v[%d:%d] offset:%d' % (112 + 4 * t, 115 + 4 * t, 1024 * t))
    E('s_waitcnt lgkmcnt(0)')
    E('s_barrier')
    E('s_cmp_eq_u32 s3, 0')
    E('s_cbranch_scc1 L_k1_w0')
    E('ds_read_b64 v[%d:%d], v21' % (KP(0, -1), KP(0, -1) + 1))
    E('ds_read_b64 v[%d:%d], v21 offset:512' % (KP(1, -1), KP(1, -1) + 1))
    E('ds_read_b64 v[%d:%d], v21 offset:1024' % (VP(0, -1), VP(0, -1) + 1))
    E('ds_read_b64 v[%d:%d], v21 offset:1536' % (VP(1, -1), VP(1, -1) + 1))
    E('s_waitcnt lgkmcnt(0)')
    E('s_branch L_k1_join')
    E('L_k1_w0:')
    E('v_add_u32 v23, %d, v22' % LDS_HP)
    for w in range(1, 4):
        for t in range(4):
            E('ds_read_b128 v[%d:%d], v23 offset:%d' % (128 + 4 * t, 131 + 4 * t, w * 4096 + t * 1024))
        E('s_waitcnt lgkmcnt(0)')
        for r in range(16):
            E('v_add_f32 v%d, v%d, v%d' % (112 + r, 112 + r, 128 + r))
    for t, d in enumerate((KP(0, -1), KP(1, -1), VP(0, -1), VP(1, -1))):
        E('v_cvt_pk_bf16_f32 v%d, v%d, v%d' % (d, 112 + 4 * t, 113 + 4 * t))
        E('v_cvt_pk_bf16_f32 v%d, v%d, v%d' % (d + 1, 114 + 4 * t, 115 + 4 * t))
    E('L_k1_join:')
    stamp('k1')
    E('v_mov_b32 v36, %s' % f32(-1e30))
    E('s_or_b32 s6, s4, s3')
    E('s_cmp_eq_u32 s6, 0')
    E('s_cselect_b32 s7, 64, 0')
    for r in range(4):
        E('v_lshl_add_u32 v37, v3, 2, %d' % r)
        E('v_sub_u32 v37, v2, v37')
        E('v_and_b32 v38, 0x80000001, v37')
        E('v_cmp_eq_u32 vcc, 0, v38')
        E('v_cndmask_b32 v%d, v36, 0, vcc' % (24 + r))
        E('v_add_u32 v37, 16, v37')
        E('v_and_b32 v38, 1, v37')
        E('v_lshl_add_u32 v38, v38, 6, v37')
        E('v_cmp_gt_u32 vcc, 15, v38')
        E('v_cndmask_b32 v%d, v36, 0, vcc' % (28 + r))
        E('v_add_u32 v38, s7, v38')
        E('v_cmp_gt_u32 vcc, 15, v38')
        E('v_cndmask_b32 v%d, v36, 0, vcc' % (32 + r))
    E('s_mov_b32 s6, %s' % f32(0.25 * LOG2E))
    E('v_and_b32 v37, 1, v3')
    E('v_lshlrev_b32 v37, 5, v37')
    E('v_lshrrev_b32 v38, 1, v3')
    E('v_lshl_add_u32 v37, v38, 4, v37')
    E('v_lshl_add_u32 v37, v2, 10, v37')
    E('s_lshl_b32 s54, s4, 7\ns_lshl_b32 s55, s3, 5\ns_add_u32 s54, s54, s55\ns_lshl_b32 s54, s54, 10')
    E('s_add_u32 s54, s54, s53')
    E('s_add_u32 s54, s54, %d' % OFF_O)
    for b in range(2):
        for hh in range(2):
            S = 128 + hh * 8
            E('v_mfma_f32_16x16x16_bf16 v[%d:%d], v[%d:%d], v[%d:%d], 0' % (S, S + 3, KP(hh, b - 1), KP(hh, b - 1) + 1, QP(hh, b), QP(hh, b) + 1))
            E('v_mfma_f32_16x16x16_bf16 v[%d:%d], v[%d:%d], v[%d:%d], 0' % (S + 4, S + 7, KP(hh, b), KP(hh, b) + 1, QP(hh, b), QP(hh, b) + 1))
        for hh in range(2):
            S = 128 + hh * 8
            M = 144 + hh * 2
            PB = 148 + hh * 4
            for r in range(8):
                if MIMIC_LG:
                    round_bf16(S + r, S + r)
                bias = (32 + r if b == 0 else 28 + r) if r < 4 else 24 + r - 4
                E('v_fma_f32 v%d, v%d, s6, v%d' % (S + r, S + r, bias))
            E('v_max3_f32 v%d, v%d, v%d, v%d' % (M, S, S + 1, S + 2))
            E('v_max3_f32 v%d, v%d, v%d, v%d' % (M, M, S + 3, S + 4))
            E('v_max3_f32 v%d, v%d, v%d, v%d' % (M, M, S + 5, S + 6))
            E('v_max_f32 v%d, v%d, v%d' % (M, M, S + 7))
            allreduce_lg('v_max_f32', M, M + 1)
            for r in range(8):
                E('v_sub_f32 v%d, v%d, v%d' % (S + r, S + r, M))
                E('v_exp_f32 v%d, v%d' % (S + r, S + r))
            E('v_add_f32 v%d, v%d, v%d' % (M, S, S + 1))
            for r in range(2, 8):
                E('v_add_f32 v%d, v%d, v%d' % (M, M, S + r))
            allreduce_lg('v_add_f32', M, M + 1)
            E('v_rcp_f32 v%d, v%d' % (M, M))
            for r in range(8):
                E('v_mul_f32 v%d, v%d, v%d' % (S + r, S + r, M))
            for p in range(4):
                E('v_cvt_pk_bf16_f32 v%d, v%d, v%d' % (PB + p, S + 2 * p, S + 2 * p + 1))
        for hh in range(2):
            PB = 148 + hh * 4
            O = 156 + hh * 4
            E('v_mfma_f32_16x16x32_bf16 v[%d:%d], v[%d:%d], v[%d:%d], 0' % (O, O + 3, VP(hh, b - 1), VP(hh, b - 1) + 3, PB, PB + 3))
        E('v_cvt_pk_bf16_f32 v164, v156, v157')
        E('v_cvt_pk_bf16_f32 v165, v158, v159')
        E('v_cvt_pk_bf16_f32 v166, v160, v161')
        E('v_cvt_pk_bf16_f32 v167, v162, v163')
        E('v_permlane16_swap_b32 v164, v166')
        E('v_permlane16_swap_b32 v165, v167')
        E('s_add_u32 s55, s54, %d' % (b * 16384))
        E('buffer_store_dwordx4 v[164:167], v37, %s, s55 offen' % srd('WS'))
    stamp('k1')
    E('s_waitcnt vmcnt(0)')
    stamp('k1')
    stamp_dump('k1')
    kernel_end(name, 256, LDS_HP + 16384, 256, 256)


def k_splitk(which):
    if which == 2:
        name, WB, NKS, APITCH, AOFF, GOFF = 'k2wo_kernel', 'WO', 4, 1024, OFF_O, 1024
        bufs = ['WO', 'X', 'WS']
    else:
        name, WB, NKS, APITCH, AOFF, GOFF = 'k4w2_kernel', 'W2', 11, 2752, OFF_HH, 2560
        bufs = ['W2', 'OUT', 'WS']
    kernel_begin(name, 256, bufs)
    NSLOT = min(NKS, 9)
    WREG = NSLOT * 4096
    E('s_lshl_b32 s6, s4, 7\ns_lshr_b32 s7, s5, 3\ns_lshl_b32 s7, s7, 6\ns_add_u32 s6, s6, s7')
    E('s_and_b32 s7, s5, 7\ns_lshl_b32 s7, s7, 6')
    E('s_mul_i32 s52, s3, %d' % NKS)
    E('v_lshrrev_b32 v5, 3, v1')
    E('v_and_b32 v6, 7, v1')
    E('v_lshlrev_b32 v5, 10, v5')
    E('v_lshl_add_u32 v8, v6, 4, v5')
    E('v_xor_b32 v9, 64, v8')
    E('s_movk_i32 s53, %d' % APITCH)
    for d in range(4):
        E('s_add_u32 s54, s3, %d\ns_and_b32 s54, s54, 3\ns_lshl_b32 s54, s54, 4\ns_add_u32 s54, s54, s6' % d)
        E('v_add_u32 v10, s54, v2')
        E('v_mul_lo_u32 v10, v10, s53')
        E('v_lshl_add_u32 v%d, v3, 4, v10' % (12 + d))
    E('s_lshl_b32 s54, s52, 6')
    E('s_add_u32 s54, s54, %d' % AOFF)
    E('s_lshl_b32 s55, s52, 15')
    E('s_lshl_b32 s56, s7, 1')
    E('s_add_u32 s55, s55, s56')
    E('s_mul_i32 s57, s3, %d' % WREG)
    last_skip = (which == 4)

    def issue_b(ks):
        for q in range(4):
            E('s_add_u32 s58, s57, %d' % ((ks % NSLOT) * 4096 + q * 1024))
            E('s_mov_b32 m0, s58')
            E('s_add_u32 s59, s55, %d' % (ks * 32768 + q * 8192))
            E('buffer_load_dwordx4 v%d, %s, s59 offen lds' % (8 + (q & 1), srd(WB)))

    def issue_a(ks):
        for d in range(4):
            r = (ks * 4 + d) * 4
            E('buffer_load_dwordx4 a[%d:%d], v%d, %s, s54 offen offset:%d' % (r, r + 3, 12 + d, srd('WS'), 64 * ks))

    issued = []
    npre = min(NKS, 7)
    for ks in range(npre):
        issue_b(ks); issue_a(ks)
    E('v_lshrrev_b32 v16, 2, v2')
    E('v_lshl_add_u32 v16, v3, 3, v16')
    E('v_lshlrev_b32 v16, 7, v16')
    E('v_and_b32 v17, 3, v2')
    E('v_lshl_add_u32 v16, v17, 4, v16')
    E('v_and_b32 v17, 1, v3')
    E('v_lshl_add_u32 v16, v17, 6, v16')
    E('v_add_u32 v16, s57, v16')
    E('v_xor_b32 v17, 64, v16')
    ACC = 64
    for r in range(64, 128):
        E('v_mov_b32 v%d, 0' % r)
    BF = 128

    def bread(ks, buf):
        for ct in range(4):
            base = 16 + (ct >> 1)
            off = (ks % NSLOT) * 4096 + (ct & 1) * 8
            dreg = BF + buf * 16 + ct * 4
            E('ds_read_b64_tr_b16 v[%d:%d], v%d offset:%d' % (dreg, dreg + 1, base, off))
            E('ds_read_b64_tr_b16 v[%d:%d], v%d offset:%d' % (dreg + 2, dreg + 3, base, off + 512))

    nissued = npre
    for ks in range(NKS):
        if last_skip and ks == NKS - 1:
            E('s_cmp_eq_u32 s3, 3')
            E('s_cbranch_scc1 L_%s_skip' % name)
        E('s_waitcnt vmcnt(%d)' % ((nissued - ks - 1) * 8))
        bread(ks, ks & 1)
        E('s_waitcnt lgkmcnt(0)')
        if nissued < NKS:
            assert nissued - NSLOT <= ks
            issue_b(nissued); issue_a(nissued); nissued += 1
        for d in range(4):
            for ct in range(4):
                acc = ACC + (d * 4 + ct) * 4
                bf = BF + (ks & 1) * 16 + ct * 4
                af = (ks * 4 + d) * 4
                E('v_mfma_f32_16x16x32_bf16 v[%d:%d], v[%d:%d], a[%d:%d], v[%d:%d]' % (acc, acc + 3, bf, bf + 3, af, af + 3, acc, acc + 3))
    if last_skip:
        E('L_%s_skip:' % name)
    E('s_waitcnt vmcnt(0)')
    E('s_lshl_b32 s58, s3, 4\ns_add_u32 s58, s58, s6')
    E('v_add_u32 v20, s58, v2')
    E('v_lshlrev_b32 v21, 10, v20')
    E('v_lshl_add_u32 v21, v3, 4, v21')
    E('s_lshl_b32 s59, s7, 1')
    if which == 2:
        E('buffer_load_dwordx4 v[160:163], v21, %s, s59 offen' % srd('X'))
        E('buffer_load_dwordx4 v[164:167], v21, %s, s59 offen offset:64' % srd('X'))
    else:
        E('s_add_u32 s60, s59, %d' % OFF_X1)
        E('buffer_load_dwordx4 v[160:163], v21, %s, s60 offen' % srd('WS'))
        E('buffer_load_dwordx4 v[164:167], v21, %s, s60 offen offset:64' % srd('WS'))
    E('v_lshlrev_b32 v22, 5, v3')
    E('s_lshl_b32 s60, s7, 2')
    E('s_add_u32 s60, s60, %d' % (OFF_MOD + GOFF * 4))
    for c in range(2):
        for hlf in range(2):
            E('buffer_load_dwordx4 v[%d:%d], v22, %s, s60 offen offset:%d' % (168 + c * 8 + hlf * 4, 171 + c * 8 + hlf * 4, srd('WS'), c * 128 + hlf * 16))
    E('s_barrier')
    E('v_lshlrev_b32 v23, 4, v1')
    for d in range(1, 4):
        E('s_add_u32 s58, s3, %d\ns_and_b32 s58, s58, 3\ns_mul_i32 s58, s58, 12288' % d)
        E('v_add_u32 v24, s58, v23')
        for ct in range(4):
            acc = ACC + (d * 4 + ct) * 4
            E('ds_write_b128 v24, v[%d:%d] offset:%d' % (acc, acc + 3, (d - 1) * 4096 + ct * 1024))
    E('s_waitcnt lgkmcnt(0)')
    E('s_barrier')
    E('s_mul_i32 s58, s3, 12288')
    E('v_add_u32 v24, s58, v23')
    for d in range(1, 4):
        for ct in range(4):
            acc = ACC + (d * 4 + ct) * 4
            E('ds_read_b128 v[%d:%d], v24 offset:%d' % (acc, acc + 3, (d - 1) * 4096 + ct * 1024))
    E('s_waitcnt lgkmcnt(0)')
    for d in range(1, 4):
        for r in range(16):
            E('v_add_f32 v%d, v%d, v%d' % (ACC + r, ACC + r, ACC + d * 16 + r))
    E('s_waitcnt vmcnt(0)')
    for i in range(16):
        a = ACC + i
        round_bf16(a, a)
        E('v_mul_f32 v%d, v%d, v%d' % (a, a, 168 + i))
        round_bf16(a, a)
        src = 160 + i // 2
        if i % 2 == 0:
            E('v_lshlrev_b32 v25, 16, v%d' % src)
        else:
            E('v_and_b32 v25, 0xffff0000, v%d' % src)
        E('v_add_f32 v%d, v%d, v25' % (a, a))
        if which == 4 and os.environ.get('EPS'):
            E('v_mul_f32 v%d, %s, v%d' % (a, f32(1.0 + float(os.environ['EPS'])), a))
    for p in range(8):
        E('v_cvt_pk_bf16_f32 v%d, v%d, v%d' % (184 + p, ACC + 2 * p, ACC + 2 * p + 1))
    if which == 2:
        E('s_add_u32 s60, s59, %d' % OFF_X1)
        E('buffer_store_dwordx4 v[184:187], v21, %s, s60 offen' % srd('WS'))
        E('buffer_store_dwordx4 v[188:191], v21, %s, s60 offen offset:64' % srd('WS'))
        for p in range(8):
            E('v_lshlrev_b32 v%d, 16, v%d' % (ACC + 2 * p, 184 + p))
            E('v_and_b32 v%d, 0xffff0000, v%d' % (ACC + 2 * p + 1, 184 + p))
        E('v_add_f32 v26, v64, v65')
        for i in range(2, 16):
            E('v_add_f32 v26, v26, v%d' % (ACC + i))
        allreduce_lg('v_add_f32', 26, 28)
        E('v_mul_f32 v26, %s, v26' % f32(1.0 / 64))
        E('v_mov_b32 v27, 0')
        for i in range(16):
            E('v_sub_f32 v28, v%d, v26' % (ACC + i))
            E('v_fmac_f32 v27, v28, v28')
        allreduce_lg('v_add_f32', 27, 28)
        E('v_lshlrev_b32 v28, 6, v20')
        E('s_and_b32 s60, s5, 7\ns_lshl_b32 s60, s60, 3\ns_add_u32 s60, s60, %d' % OFF_ST)
        E('buffer_store_dwordx2 v[26:27], v28, %s, s60 offen' % srd('WS'))
    else:
        E('buffer_store_dwordx4 v[184:187], v21, %s, s59 offen' % srd('OUT'))
        E('buffer_store_dwordx4 v[188:191], v21, %s, s59 offen offset:64' % srd('OUT'))
    E('s_waitcnt vmcnt(0)')
    kernel_end(name, 256, max(4 * WREG, 49152), 256, 256)


def k_ffn1():
    name = 'k3ffn_kernel'
    kernel_begin(name, 256, ['WS'])
    NSLOT = 12
    LDS_UT = NSLOT * 12288
    pair_start_s(6)
    E('v_lshlrev_b32 v5, 4, v1')
    E('s_lshl_b32 s7, s4, 7\ns_lshl_b32 s52, s3, 5\ns_add_u32 s7, s7, s52')
    E('v_add_u32 v20, s7, v2')
    E('v_lshlrev_b32 v6, 10, v20')
    E('v_lshl_add_u32 v6, v3, 4, v6')
    E('v_add_u32 v7, 0x4000, v6')
    E('s_mov_b32 s52, %d' % OFF_X1)
    for i in range(3):
        E('s_mul_i32 s53, s3, 3\ns_add_u32 s53, s53, %d' % i)
        E('s_lshr_b32 s54, s53, 2\ns_add_u32 s54, s54, s6\ns_lshl_b32 s54, s54, 16')
        E('s_and_b32 s55, s53, 3\ns_lshl_b32 s55, s55, 10\ns_add_u32 s54, s54, s55')
        E('s_add_u32 s%d, s54, %d' % (56 + i, OFF_WF))
        E('s_lshl_b32 s%d, s53, 10' % (60 + i))

    def issue_b(ks):
        for i in range(3):
            E('s_add_u32 s53, s%d, %d' % (60 + i, (ks % NSLOT) * 12288))
            E('s_mov_b32 m0, s53')
            E('s_add_u32 s54, s%d, %d' % (56 + i, ks * 4096))
            E('buffer_load_dwordx4 v5, %s, s54 offen lds' % srd('WS'))

    def issue_a(ks):
        E('buffer_load_dwordx4 a[%d:%d], v6, %s, s52 offen offset:%d' % (8 * ks, 8 * ks + 3, srd('WS'), 64 * ks))
        E('buffer_load_dwordx4 a[%d:%d], v7, %s, s52 offen offset:%d' % (8 * ks + 4, 8 * ks + 7, srd('WS'), 64 * ks))

    E('v_lshlrev_b32 v8, 4, v0')
    E('s_mul_i32 s53, s5, %d' % (16 * 1536))
    E('s_add_u32 s53, s53, %d' % OFF_UT)
    E('v_cmp_gt_u32 vcc, 96, v0')
    E('s_and_saveexec_b64 s[90:91], vcc')
    E('s_cbranch_execz L_k3_ut')
    for kg in range(16):
        E('s_add_u32 s54, s53, %d' % (kg * 1536))
        E('buffer_load_dwordx4 v[%d:%d], v8, %s, s54 offen' % (128 + 4 * kg, 131 + 4 * kg, srd('WS')))
    E('s_waitcnt vmcnt(0)')
    for kg in range(1, 16):
        for r in range(4):
            E('v_add_f32 v%d, v%d, v%d' % (128 + r, 128 + r, 128 + 4 * kg + r))
    E('v_add_u32 v9, %d, v8' % LDS_UT)
    E('ds_write_b128 v9, v[128:131]')
    E('L_k3_ut:')
    E('s_mov_b64 exec, s[90:91]')
    E('v_lshlrev_b32 v9, 6, v20')
    E('s_mov_b32 s53, %d' % OFF_ST)
    for b in range(2):
        for q in range(4):
            E('buffer_load_dwordx4 v[%d:%d], v9, %s, s53 offen offset:%d' % (192 + b * 16 + q * 4, 195 + b * 16 + q * 4, srd('WS'), b * 1024 + q * 16))
    for ks in range(NSLOT - 1):
        issue_b(ks); issue_a(ks)
    nissued = NSLOT - 1
    E('s_waitcnt vmcnt(55)')
    for b in range(2):
        B = 192 + b * 16
        mean, rs = 10 + 2 * b, 11 + 2 * b
        E('v_add_f32 v%d, v%d, v%d' % (mean, B, B + 2))
        for t in range(2, 8):
            E('v_add_f32 v%d, v%d, v%d' % (mean, mean, B + 2 * t))
        E('v_mul_f32 v%d, 0.125, v%d' % (mean, mean)) if False else E('v_mul_f32 v%d, %s, v%d' % (mean, f32(0.125), mean))
        E('v_add_f32 v%d, v%d, v%d' % (rs, B + 1, B + 3))
        for t in range(2, 8):
            E('v_add_f32 v%d, v%d, v%d' % (rs, rs, B + 2 * t + 1))
        E('v_mov_b32 v15, 0')
        for t in range(8):
            E('v_sub_f32 v14, v%d, v%d' % (B + 2 * t, mean))
            E('v_fmac_f32 v15, v14, v14')
        E('v_mov_b32 v14, %s' % f32(64.0))
        E('v_fmac_f32 v%d, v15, v14' % rs)
        E('v_mul_f32 v%d, %s, v%d' % (rs, f32(1.0 / 512), rs))
        round_bf16(mean, mean)
        round_bf16(rs, rs)
        E('v_add_f32 v%d, %s, v%d' % (rs, f32(1e-5), rs))
        round_bf16(rs, rs)
        E('v_sqrt_f32 v%d, v%d' % (rs, rs))
        round_bf16(rs, rs)
        E('v_rcp_f32 v%d, v%d' % (rs, rs))
    ACC = 32
    for r in range(32, 128):
        E('v_mov_b32 v%d, 0' % r)
    BF = 128

    def bread(ks, buf):
        for bi in range(12):
            d = BF + buf * 48 + bi * 4
            off = (ks % NSLOT) * 12288 + bi * 1024
            if off < 65536:
                E('ds_read_b128 v[%d:%d], v5 offset:%d' % (d, d + 3, off))
            elif off < 131072:
                E('ds_read_b128 v[%d:%d], v16 offset:%d' % (d, d + 3, off - 65536))
            else:
                E('ds_read_b128 v[%d:%d], v17 offset:%d' % (d, d + 3, off - 131072))
    E('v_add_u32 v16, 0x10000, v5')
    E('v_add_u32 v17, 0x20000, v5')
    for ks in range(16):
        E('s_waitcnt vmcnt(%d)' % ((nissued - ks - 1) * 5))
        E('s_barrier')
        if nissued < 16:
            assert nissued - NSLOT <= ks - 1
            issue_b(nissued); issue_a(nissued); nissued += 1
        bread(ks, ks & 1)
        E('s_waitcnt lgkmcnt(0)')
        for bi in range(12):
            for b in range(2):
                acc = ACC + (b * 12 + bi) * 4
                bf = BF + (ks & 1) * 48 + bi * 4
                af = 8 * ks + 4 * b
                E('v_mfma_f32_16x16x32_bf16 v[%d:%d], v[%d:%d], a[%d:%d], v[%d:%d]' % (acc, acc + 3, bf, bf + 3, af, af + 3, acc, acc + 3))
    E('v_lshlrev_b32 v18, 5, v3')
    E('v_add_u32 v18, %d, v18' % (LDS_UT - 131072))
    E('v_add_u32 v18, 0x20000, v18')
    E('s_movk_i32 s53, 2752')
    E('v_mul_lo_u32 v19, v20, s53')
    E('v_lshl_add_u32 v19, v3, 4, v19')
    E('s_lshl_b32 s54, s6, 6')
    E('s_add_u32 s54, s54, %d' % OFF_HH)
    E('s_mov_b32 s55, %s' % f32(-LOG2E))
    for p in range(3):
        for m in range(2):
            for ut in range(2):
                d = 128 + (m * 2 + ut) * 8
                off = (m * 2 + ut) * 384 + p * 128
                E('ds_read_b128 v[%d:%d], v18 offset:%d' % (d, d + 3, off))
                E('ds_read_b128 v[%d:%d], v18 offset:%d' % (d + 4, d + 7, off + 16))
        E('s_waitcnt lgkmcnt(0)')
        for b in range(2):
            mean, rs = 10 + 2 * b, 11 + 2 * b
            for e in range(8):
                ct, r = e >> 2, e & 3
                ga = ACC + (b * 12 + p * 4 + 0 + ct) * 4 + r
                ua = ACC + (b * 12 + p * 4 + 2 + ct) * 4 + r
                for a, m in ((ga, 0), (ua, 1)):
                    u, t = 128 + (m * 2) * 8 + e, 128 + (m * 2 + 1) * 8 + e
                    E('v_fma_f32 v%d, -v%d, v%d, v%d' % (a, mean, u, a))
                    E('v_fma_f32 v%d, v%d, v%d, v%d' % (a, a, rs, t))
                    round_bf16(a, a)
                E('v_mul_f32 v14, s55, v%d' % ga)
                E('v_exp_f32 v14, v14')
                E('v_add_f32 v14, 1.0, v14')
                E('v_rcp_f32 v14, v14')
                E('v_mul_f32 v%d, v%d, v14' % (ga, ga))
                round_bf16(ga, ga)
                E('v_mul_f32 v%d, v%d, v%d' % (160 + e, ga, ua))
            for q in range(4):
                E('v_cvt_pk_bf16_f32 v%d, v%d, v%d' % (168 + b * 4 + q, 160 + 2 * q, 161 + 2 * q))
            E('s_add_u32 s53, s54, %d' % (b * 16 * 2752 + p * 64))
            E('buffer_store_dwordx4 v[%d:%d], v19, %s, s53 offen' % (168 + b * 4, 171 + b * 4, srd('WS')))
    E('s_waitcnt vmcnt(0)')
    kernel_end(name, 256, LDS_UT + 1536, 256, 256)


k_mod()
k_prep()
k_qkv()
k_splitk(2)
k_ffn1()
k_splitk(4)

hdr = []
for (name, nwg, lds, vg, ag) in kernels:
    hdr.append('; @launch kernel=%s grid=(%d,1,1) block=(256,1,1) lds=%d' % (name, nwg, lds))
hdr.append('.amdgcn_target "amdgcn-amd-amdhsa--gfx950"')
hdr.append('.text')
tail = []
for (name, nwg, lds, vg, ag) in kernels:
    tail.append('''.section .rodata,"a"
.p2align 6
.amdhsa_kernel %s
  .amdhsa_next_free_vgpr %d
  .amdhsa_next_free_sgpr 102
  .amdhsa_accum_offset %d
  .amdhsa_group_segment_fixed_size 0
  .amdhsa_kernarg_size 96
  .amdhsa_user_sgpr_count 2
  .amdhsa_user_sgpr_kernarg_segment_ptr 1
  .amdhsa_system_sgpr_workgroup_id_x 1
.end_amdhsa_kernel''' % (name, vg + ag, vg))
print('\n'.join(hdr) + '\n' + E.text() + '\n'.join(tail))
```

```python
import re

TRANS = ('v_exp_f32', 'v_log_f32', 'v_rcp_f32', 'v_rsq_f32', 'v_sqrt_f32', 'v_sin_f32', 'v_cos_f32', 'v_rcp_iflag_f32')

_reg_re = re.compile(r'^(-|abs\()?([vas])(\d+)\)?$')
_rng_re = re.compile(r'^(-|abs\()?([vas])\[(\d+):(\d+)\]\)?$')


def regs_of(op):
    op = op.strip()
    m = _reg_re.match(op)
    if m:
        return {(m.group(2), int(m.group(3)))}
    m = _rng_re.match(op)
    if m:
        return {(m.group(2), i) for i in range(int(m.group(3)), int(m.group(4)) + 1)}
    if op in ('vcc', 'vcc_lo', 'vcc_hi'):
        return {('vcc',)}
    if op in ('exec', 'exec_lo', 'exec_hi'):
        return {('exec',)}
    if op == 'm0':
        return {('m0',)}
    return set()


def split_ops(s):
    out, depth, cur = [], 0, ''
    for ch in s:
        if ch in '[(':
            depth += 1
        if ch in '])':
            depth -= 1
        if ch == ',' and depth == 0:
            out.append(cur.strip()); cur = ''
        else:
            cur += ch
    if cur.strip():
        out.append(cur.strip())
    return out


class Ins:
    __slots__ = ('text', 'mn', 'kind', 'wr', 'rd', 'srcc', 'srcab', 'passes', 'dpp', 'states', 'wide_store', 'ldsdma', 'dreg')


def parse(text):
    t = text.split(';')[0].strip()
    parts = t.split(None, 1)
    mn = parts[0]
    rest = parts[1] if len(parts) > 1 else ''
    ops_all = split_ops(rest)
    ops, mods = [], []
    for o in ops_all:
        toks = o.split()
        if toks:
            ops.append(toks[0]); mods += toks[1:]
    I = Ins()
    I.text = text; I.mn = mn; I.wr = set(); I.rd = set(); I.srcc = set(); I.srcab = set(); I.passes = 0
    I.dpp = any(m.startswith(('row_', 'quad_perm', 'wave_')) for m in mods) or mn.endswith('_dpp')
    I.states = 1; I.wide_store = False; I.ldsdma = False; I.dreg = None
    R = [regs_of(o) for o in ops]
    if mn.startswith('v_mfma') or mn.startswith('v_smfmac'):
        I.kind = 'mfma'
        I.wr = R[0]; I.srcab = R[1] | R[2]; I.srcc = R[3]; I.rd = I.srcab | I.srcc
        I.passes = 8 if '32x32' in mn else 4
        I.dreg = ops[0]
    elif mn.startswith('v_'):
        I.kind = 'trans' if mn.replace('_e32', '').replace('_e64', '') in TRANS else 'valu'
        if mn.startswith('v_cmp'):
            I.wr = R[0]; I.rd = set().union(*R[1:]) if len(R) > 1 else set()
            if mn.startswith('v_cmpx'):
                I.wr |= {('exec',)}
        elif mn.startswith('v_permlane') and 'swap' in mn:
            I.wr = R[0] | R[1]; I.rd = R[0] | R[1]
        elif re.match(r'v_(add|sub|subrev|addc|subb|subbrev)_co_', mn) or mn.startswith('v_div_scale') or mn.startswith('v_mad_u64'):
            I.wr = R[0] | R[1]; I.rd = set().union(*R[2:])
        elif mn in ('v_nop',):
            pass
        else:
            I.wr = R[0]; I.rd = set().union(*R[1:]) if len(R) > 1 else set()
            if mn.startswith(('v_fmac', 'v_dot2c', 'v_mac', 'v_pk_fmac', 'v_writelane')) or I.dpp:
                I.rd |= R[0]
            if mn.startswith('v_cndmask') and len(ops) == 3:
                I.rd |= {('vcc',)}
    elif mn.startswith(('buffer_', 'global_', 'flat_', 'scratch_')):
        I.kind = 'vmem'
        if 'lds' in mods or mn.startswith('global_load_lds'):
            I.ldsdma = True
            I.rd = set().union(*R) | {('m0',)}
        elif '_load' in mn:
            I.wr = R[0]; I.rd = set().union(*R[1:])
        elif '_atomic' in mn:
            I.rd = set().union(*R)
            if 'sc0' in mods:
                I.wr = R[0]
        else:
            I.rd = set().union(*R)
            if mn.endswith(('x3', 'x4')):
                I.wide_store = True
    elif mn.startswith('ds_'):
        I.kind = 'ds'
        if mn.startswith(('ds_read', 'ds_bpermute', 'ds_permute', 'ds_swizzle')):
            I.wr = R[0]; I.rd = set().union(*R[1:]) if len(R) > 1 else set()
        else:
            I.rd = set().union(*R)
    elif mn.startswith('s_'):
        I.kind = 'salu'
        if mn == 's_nop':
            I.states = int(ops[0], 0) + 1
        elif mn.startswith(('s_cmp', 's_waitcnt', 's_barrier', 's_branch', 's_cbranch', 's_endpgm', 's_setprio', 's_sleep', 's_setpc')):
            I.rd = set().union(*R) if R else set()
        elif mn.startswith(('s_load', 's_buffer_load', 's_memtime', 's_memrealtime')):
            I.kind = 'smem'
            I.wr = R[0]; I.rd = set().union(*R[1:]) if len(R) > 1 else set()
        else:
            I.wr = R[0] if R else set(); I.rd = set().union(*R[1:]) if len(R) > 1 else set()
            if 'saveexec' in mn:
                I.wr |= {('exec',)}; I.rd |= {('exec',)}
    else:
        raise ValueError('unknown instr ' + text)
    return I


def isv(r):
    return r[0] in ('v', 'a')


def need(prev, cur):
    n = 0
    pv = prev.kind in ('valu', 'trans')
    cv = cur.kind in ('valu', 'trans')
    if pv:
        wv = {r for r in prev.wr if isv(r)}
        ws = {r for r in prev.wr if not isv(r)}
        if cur.kind == 'mfma' and wv & cur.rd:
            n = max(n, 2)
        if cur.kind == 'mfma' and ('exec',) in ws:
            n = max(n, 4)
        if cur.kind == 'vmem' and ws & cur.rd:
            n = max(n, 5)
        if cv and ws & cur.rd:
            n = max(n, 4 if cur.mn.startswith(('v_readlane', 'v_writelane')) else 2)
        if cv and ('exec',) in ws and (cur.dpp or cur.mn.startswith(('v_permlane', 'v_readlane', 'v_readfirstlane', 'v_writelane'))):
            n = max(n, 5)
        if cv and wv & cur.rd:
            if cur.mn.startswith(('v_readlane', 'v_readfirstlane')):
                n = max(n, 1)
            if cur.dpp or cur.mn.startswith('v_permlane'):
                n = max(n, 2)
            if prev.kind == 'trans' and cur.kind != 'trans':
                n = max(n, 1)
        if cur.kind == 'salu' and ws & cur.rd:
            n = max(n, 1)
    if prev.mn.startswith('v_dot'):
        wv = {r for r in prev.wr if isv(r)}
        if wv & (cur.rd | cur.wr):
            same_c_only = False
            if cur.mn == prev.mn:
                ops = split_ops(cur.text.split(';')[0].strip().split(None, 1)[1])
                ab = regs_of(ops[1].split()[0]) | regs_of(ops[2].split()[0])
                same_c_only = not (wv & ab)
            if not same_c_only:
                n = max(n, 3)
    if prev.kind == 'mfma':
        big = {2: 5, 4: 8, 8: 12, 16: 20}[prev.passes]
        mid = {2: 4, 4: 6, 8: 10, 16: 18}[prev.passes]
        war = {2: 1, 4: 3, 8: 7, 16: 15}[prev.passes]
        if cur.kind == 'mfma':
            if prev.wr & cur.srcab:
                n = max(n, big)
            if prev.wr & cur.srcc:
                if not (prev.wr == cur.srcc and prev.passes == cur.passes):
                    n = max(n, mid)
            elif prev.wr & cur.wr:
                n = max(n, mid)
        else:
            if prev.wr & (cur.rd | cur.wr):
                n = max(n, big)
            if cv and prev.srcc & cur.wr:
                n = max(n, war)
    if prev.kind == 'salu' and ('m0',) in prev.wr and cur.ldsdma:
        n = max(n, 1)
    if prev.wide_store and {r for r in prev.rd if isv(r)} & cur.wr:
        n = max(n, 2)
    return n


class Emitter:
    def __init__(self):
        self.lines = []
        self.hist = []
        self.nins = 0

    def raw(self, s):
        self.lines.append(s)

    def label(self, name):
        self.flush()
        self.lines.append(name + ':')

    def flush(self):
        d = 0
        worst = 0
        for p in reversed(self.hist[-24:]):
            if p.kind == 'mfma':
                worst = max(worst, {4: 8, 8: 12}[p.passes] - d)
            elif p.kind in ('valu', 'trans'):
                worst = max(worst, 5 - d)
            elif p.kind == 'salu' or p.wide_store:
                worst = max(worst, 2 - d)
            d += p.states
        if worst > 0:
            self._nop(worst)
        self.hist = []

    def _nop(self, n):
        while n > 0:
            k = min(n, 16)
            I = parse('s_nop %d' % (k - 1))
            self.lines.append('    s_nop %d' % (k - 1)); self.hist.append(I); self.nins += 1
            n -= k

    def __call__(self, text):
        for line in text.split('\n'):
            line = line.strip()
            if not line:
                continue
            if line.startswith(';'):
                self.lines.append('    ' + line); continue
            if line.endswith(':'):
                self.label(line[:-1]); continue
            I = parse(line)
            if I.mn.startswith(('s_branch', 's_cbranch', 's_setpc')):
                self.flush()
            d = 0
            pad = 0
            for p in reversed(self.hist[-24:]):
                n = need(p, I)
                if n - d > pad:
                    pad = n - d
                d += p.states
                if d >= 24:
                    break
            if pad > 0:
                self._nop(pad)
            self.lines.append('    ' + line)
            self.hist.append(I)
            self.nins += 1
            if I.mn.startswith(('s_branch', 's_cbranch', 's_setpc')):
                pass

    def text(self):
        return '\n'.join(self.lines) + '\n'
```

```python
import sys, os, struct
from emit import Emitter

NAME = 'adaLN_cond__sliding_local_dilated__glu_gated_swiglu__prompt_kernel'
STOP = int(os.environ.get('STOP', '99'))
STAMPS = int(os.environ.get('STAMPS', '0'))

OFF_CNT = 0x0000000
OFF_MODX = 0x0010000
OFF_CBSB = 0x0020000
OFF_GAGB = 0x0030000
OFF_XH = 0x0100000
OFF_O = 0x0400000
OFF_X1 = 0x0700000
OFF_ST = 0x0A00000
OFF_HH = 0x0B00000
OFF_WF = 0x1100000
OFF_UT = 0x1400000
OFF_STAMP = 0x8000000
CX, CO, C1, CH, CW = 0, 128, 256, 384, 512

SRD = dict(X=8, WQKV=12, WO=16, W1=20, W3=24, W2=28, C=32, WMOD=36, OUT=40, DBG=44, WS=48)
PTR = dict(X=64, WQKV=66, WO=68, W1=72, W3=74, W2=76, C=78, WMOD=80, OUT=82, DBG=84, WS=86)
SIZE = dict(X=2048 * 512 * 2, WQKV=512 * 1536 * 2, WO=512 * 512 * 2, W1=512 * 1376 * 2, W3=512 * 1376 * 2,
            W2=1376 * 512 * 2, C=1024, WMOD=512 * 3072 * 2, OUT=2048 * 512 * 2, DBG=256, WS=0x10000000)
LOG2E = 1.4426950408889634
SPIN_MAX = 400000
B1_THROTTLE = int(os.environ.get('B1T', '18'))

ROWB = 16384
L_SC = 6 * ROWB
L_WST = 7 * ROWB
L_HP = 0
L_MISC = 147456
L_TAB = L_MISC
L_XCH = L_MISC + 4096
L_FLAG = L_MISC + 12288
L_UT = L_MISC + 12544
L_GA = L_MISC + 14080
L_RED = L_MISC + 14592
LDS_TOTAL = 163840
P2_ROW = [6, 7, 8, 1]
P3_ROW = [2, 3, 4, 5, 0, 1, 6, 7, 8, 2, 3, 4]
P4_ROW = [5, 0, 1, 6, 7, 8, 2, 3, 4, 5, 0]
RED_ROW = 6

S_X = 64
S_PS = 65
S_R0 = 66
S_C0 = 67
S_CNTG = 68
S_ROW = 69
S_QB = 70
S_J7 = 71
S_CNTJ = 78


def srd(n):
    return 's[%d:%d]' % (SRD[n], SRD[n] + 3)


def f32(x):
    return '0x%08x' % struct.unpack('<I', struct.pack('<f', x))[0]


E = Emitter()
_lab = [0]


def lab(p='L'):
    _lab[0] += 1
    return '%s_%d' % (p, _lab[0])


def stamp(slot):
    if not STAMPS:
        return
    E('s_memrealtime s[92:93]')
    E('s_waitcnt lgkmcnt(0)')
    E('v_mov_b32 v5, s92')
    E('v_accvgpr_write_b32 a%d, v5' % (216 + slot))


def cstamp(slot):
    if not STAMPS:
        return
    E('s_memtime s[92:93]')
    E('s_waitcnt lgkmcnt(0)')
    E('v_mov_b32 v5, s92')
    E('v_accvgpr_write_b32 a%d, v5' % (216 + slot))


def finish():
    if STAMPS:
        E('s_lshl_b32 s92, s2, 2\ns_add_u32 s92, s92, s3\ns_lshl_b32 s92, s92, 8\ns_add_u32 s92, s92, %d' % OFF_STAMP)
        E('v_mov_b32 v5, s92')
        E('s_mov_b64 exec, 1')
        for i in range(40):
            E('buffer_store_dword a%d, v5, %s, 0 offen offset:%d' % (216 + i, srd('WS'), 4 * i))
        E('s_waitcnt vmcnt(0)')
    E('s_endpgm')


class VM:
    def __init__(self):
        self.seq = []
    def reset(self):
        self.seq = []
    def op(self, text, tag=None):
        E(text)
        self.seq.append(tag)
    def grp(self, lines, tag=None):
        for l in lines:
            if l.startswith('buffer_'):
                self.op(l, tag)
            else:
                E(l)
    def n_after(self, tags):
        idx = max([i for i, t in enumerate(self.seq) if t in tags] + [-1])
        return min(63, len(self.seq) - 1 - idx)


vm = VM()


def allreduce_lg(op, v, tmp):
    E('v_mov_b32 v%d, v%d' % (tmp, v))
    E('v_permlane32_swap_b32 v%d, v%d' % (v, tmp))
    E('%s v%d, v%d, v%d' % (op, v, v, tmp))
    E('v_mov_b32 v%d, v%d' % (tmp, v))
    E('v_permlane16_swap_b32 v%d, v%d' % (v, tmp))
    E('%s v%d, v%d, v%d' % (op, v, v, tmp))


def round_bf16(dst, src):
    E('v_cvt_pk_bf16_f32 v%d, v%d, v%d' % (dst, src, src))
    E('v_and_b32 v%d, 0xffff0000, v%d' % (dst, dst))


def arrive(soff_reg, extra):
    E('s_mov_b64 exec, 1')
    E('v_mov_b32 v5, 1')
    E('v_mov_b32 v6, %d' % extra)
    E('buffer_atomic_add v5, v6, %s, s%d offen' % (srd('WS'), soff_reg))
    E('s_mov_b64 exec, -1')


def poll_v6(mask, target):
    l0, l1 = lab('P'), lab('P')
    E('s_mov_b64 exec, %d' % mask)
    E('s_mov_b32 s90, 0')
    E(l0 + ':')
    E('buffer_load_dword v5, v6, %s, 0 offen sc1' % srd('WS'))
    E('s_add_u32 s90, s90, 1')
    E('s_cmp_gt_u32 s90, %d' % SPIN_MAX)
    E('s_cbranch_scc1 ' + l1)
    E('s_waitcnt vmcnt(0)')
    E('v_cmp_gt_u32 vcc, %d, v5' % target)
    E('s_cbranch_vccnz ' + l0)
    E(l1 + ':')
    E('s_mov_b64 exec, -1')


def poll_ge(soff_reg, extra, target):
    E('v_mov_b32 v6, s%d' % soff_reg)
    E('v_add_u32 v6, %d, v6' % extra)
    poll_v6(1, target)


def poll_flags():
    l0, l1 = lab('F'), lab('F')
    E('s_mov_b64 exec, 0xffff')
    E('v_lshlrev_b32 v6, 2, v1')
    E('s_mov_b32 s90, 0')
    E(l0 + ':')
    E('buffer_load_dword v5, v6, %s, 0 offen sc1' % srd('DBG'))
    E('s_add_u32 s90, s90, 1')
    E('s_cmp_gt_u32 s90, %d' % SPIN_MAX)
    E('s_cbranch_scc1 ' + l1)
    E('s_waitcnt vmcnt(0)')
    E('v_cmp_eq_u32 vcc, 0, v5')
    E('s_cbranch_vccnz ' + l0)
    E(l1 + ':')
    E('s_mov_b64 exec, -1')


def lds_flag_wait(off):
    l0, l1 = lab('W'), lab('W')
    E('v_mov_b32 v6, %d' % off)
    E('s_mov_b32 s90, 0')
    E(l0 + ':')
    E('ds_read_b32 v5, v6')
    E('s_add_u32 s90, s90, 1')
    E('s_cmp_gt_u32 s90, %d' % (SPIN_MAX * 8))
    E('s_cbranch_scc1 ' + l1)
    E('s_waitcnt lgkmcnt(0)')
    E('v_cmp_eq_u32 vcc, 0, v5')
    E('s_cbranch_vccnz ' + l0)
    E(l1 + ':')


def lds_flag_set(off):
    E('v_mov_b32 v6, %d' % off)
    E('v_mov_b32 v5, 1')
    E('ds_write_b32 v6, v5')


def reduce8(A):
    for e in range(8):
        for sh in (4, 8):
            E('v_add_f32_dpp v%d, v%d, v%d row_ror:%d row_mask:0xf bank_mask:0xf' % (A + e, A + e, A + e, sh))
    for e in range(4):
        E('v_permlane32_swap_b32 v%d, v%d' % (A + e, A + 4 + e))
        E('v_add_f32 v%d, v%d, v%d' % (A + e, A + e, A + 4 + e))
    for e in range(2):
        E('v_permlane16_swap_b32 v%d, v%d' % (A + e, A + 2 + e))
        E('v_add_f32 v%d, v%d, v%d' % (A + e, A + e, A + 2 + e))


def dot_rows(A, W, SC):
    for p in range(4):
        E('v_dot2_f32_bf16 v%d, v%d, v%d, v%d' % (A + 2 * p, W + p, SC, A + 2 * p))
        E('v_dot2_f32_bf16 v%d, v%d, v%d, v%d' % (A + 2 * p + 1, W + p, SC + 1, A + 2 * p + 1))


def prologue():
    E.raw('.globl %s\n.p2align 8\n.type %s,@function\n%s:' % (NAME, NAME, NAME))
    E('s_cmp_lt_u32 s2, 256')
    E('s_cbranch_scc1 L_go')
    E('s_endpgm')
    E('L_go:')
    E('s_load_dwordx16 s[64:79], s[0:1], 0')
    E('s_load_dwordx8 s[80:87], s[0:1], 64')
    E('v_and_b32 v1, 63, v0')
    E('v_and_b32 v2, 15, v0')
    E('v_bfe_u32 v3, v0, 4, 2')
    E('v_lshrrev_b32 v4, 6, v0')
    E('v_readfirstlane_b32 s3, v4')
    E('v_lshlrev_b32 v4, 4, v1')
    E('v_add_u32 v15, 0x4000, v4')
    E('s_and_b32 s4, s2, 7\ns_lshl_b32 s4, s4, 1\ns_bfe_u32 s5, s2, 0x10003\ns_or_b32 s4, s4, s5\ns_lshr_b32 s5, s2, 4')
    E('s_waitcnt lgkmcnt(0)')
    for b in SRD:
        r = SRD[b]
        E('s_mov_b32 s%d, s%d\ns_and_b32 s%d, s%d, 0xffff\ns_mov_b32 s%d, 0x%x\ns_mov_b32 s%d, 0x20000' % (
            r, PTR[b], r + 1, PTR[b] + 1, r + 2, SIZE[b], r + 3))
    E('s_lshr_b32 s%d, s4, 1' % S_X)
    E('s_mul_i32 s%d, s5, 0x5556\ns_lshr_b32 s%d, s%d, 13' % (S_PS, S_PS, S_PS))
    E('s_lshl_b32 s6, s4, 7\ns_lshr_b32 s7, s5, 3\ns_lshl_b32 s7, s7, 6\ns_add_u32 s%d, s6, s7' % S_R0)
    E('s_and_b32 s%d, s5, 7\ns_lshl_b32 s%d, s%d, 6' % (S_J7, S_C0, S_J7))
    E('s_lshl_b32 s%d, s4, 10' % S_CNTG)
    E('s_lshl_b32 s%d, s5, 10' % S_CNTJ)
    E('s_lshl_b32 s6, s4, 3\ns_lshl_b32 s7, s3, 1\ns_add_u32 s%d, s6, s7' % S_ROW)
    E('s_lshl_b32 s%d, s3, 12' % S_QB)
    if os.environ.get('CODEPF'):
        E('s_getpc_b64 s[88:89]')
        E('L_pc0:')
        E('s_sub_u32 s88, s88, L_pc0-%s' % NAME)
        E('s_subb_u32 s89, s89, 0')
        E('v_lshlrev_b32 v5, 7, v1')
        E('s_lshl_b32 s6, s3, 14')
        E('v_add_u32 v5, s6, v5')
        E('v_add_u32 v6, 0x2000, v5')
        E('s_mov_b32 s6, L_codeend-%s-4' % NAME)
        E('v_min_u32 v5, s6, v5')
        E('v_min_u32 v6, s6, v6')
        E('global_load_dword a20, v5, s[88:89]')
        E('global_load_dword a21, v6, s[88:89]')
        E('s_waitcnt vmcnt(0)')
    stamp(0)


def silu_table():
    for p in range(4):
        E('v_lshlrev_b32 v%d, 16, v%d' % (20 + 2 * p, 16 + p))
        E('v_and_b32 v%d, 0xffff0000, v%d' % (21 + 2 * p, 16 + p))
    for e in range(8):
        E('v_mul_f32 v%d, %s, v%d' % (30 + e, f32(-LOG2E), 20 + e))
    for e in range(8):
        E('v_exp_f32 v%d, v%d' % (30 + e, 30 + e))
    for e in range(8):
        E('v_add_f32 v%d, 1.0, v%d' % (30 + e, 30 + e))
    for e in range(8):
        E('v_rcp_f32 v%d, v%d' % (30 + e, 30 + e))
    for e in range(8):
        E('v_mul_f32 v%d, v%d, v%d' % (20 + e, 20 + e, 30 + e))
    for e in range(8):
        E('v_cvt_pk_bf16_f32 v%d, v%d, v%d' % (20 + e, 20 + e, 20 + e))
    for e in range(8):
        E('v_and_b32 v%d, 0xffff, v%d' % (30 + 2 * e, 20 + e))
        E('v_and_b32 v%d, 0xffff0000, v%d' % (31 + 2 * e, 20 + e))
    E('s_and_b32 s6, s3, 1\ns_lshl_b32 s6, s6, 12\ns_add_u32 s6, s6, %d' % L_SC)
    E('v_lshlrev_b32 v28, 6, v1')
    E('v_add_u32 v28, s6, v28')
    for q in range(4):
        E('ds_write_b128 v28, v[%d:%d] offset:%d' % (30 + 4 * q, 33 + 4 * q, 16 * q))


def a1_setup():
    E('s_lshl_b32 s81, s%d, 14\ns_add_u32 s81, s81, %d' % (S_ROW, OFF_XH))
    E('s_lshl_b32 s82, s4, 17\ns_add_u32 s82, s82, %d' % (OFF_XH - 16384))
    E('s_cmp_eq_u32 s4, 0')
    E('s_cselect_b32 s82, 0x7f000000, s82')
    E('s_lshl_b32 s83, s3, 2\ns_add_u32 s83, s83, s5')


def a1_grp(i):
    out = ['s_add_u32 s7, s5, %d' % i, 's_and_b32 s7, s7, 15', 's_lshl_b32 s7, s7, 10', 's_add_u32 s7, s7, s81']
    for b in range(2):
        r = 128 + i * 8 + b * 4
        out.append('buffer_load_dwordx4 v[%d:%d], v%d, %s, s7 offen sc1' % (r, r + 3, 4 if b == 0 else 15, srd('WS')))
    return out


def a1_halo_grp(q):
    return ['s_add_u32 s7, s83, %d' % q, 's_and_b32 s7, s7, 15', 's_lshl_b32 s7, s7, 10', 's_add_u32 s7, s7, s82',
            'buffer_load_dwordx4 a[%d:%d], v4, %s, s7 offen sc1' % (4 * q, 4 * q + 3, srd('WS'))]


A1_PRE = 6


def issue_a_p1():
    a1_setup()
    for i in range(A1_PRE):
        for l in a1_grp(i):
            E(l)


def p1b_dma(t):
    E('s_add_u32 s58, s57, %d\ns_and_b32 s58, s58, 31' % t)
    E('s_add_u32 s59, s58, s62\ns_and_b32 s59, s59, 31')
    E('s_mul_i32 s59, s59, %d\ns_add_u32 s59, s59, s56' % (16 * 3072))
    E('s_lshl_b32 s58, s58, 10')
    for seg in range(3):
        E('s_add_u32 s60, s58, %d' % (seg * 32768))
        E('s_mov_b32 m0, s60')
        E('s_add_u32 s61, s59, %d' % (seg * 1024))
        E('buffer_load_dwordx4 v12, %s, s61 offen lds' % srd('WQKV'))


def phase0():
    E('v_lshrrev_b32 v7, 2, v1')
    E('v_and_b32 v8, 3, v1')
    E('v_mov_b32 v12, 0')
    E('s_and_b32 s52, s4, 1\ns_lshl_b32 s52, s52, 4\ns_add_u32 s52, s52, s5')
    lw23, lj = lab('W23'), lab('J')
    E('s_cmp_ge_u32 s3, 2')
    E('s_cbranch_scc1 ' + lw23)
    E('s_lshl_b32 s6, s3, 4\ns_xor_b32 s6, s6, 16\ns_or_b32 s53, s6, s5')
    lnl = lab('NL')
    E('s_cmp_lg_u32 s53, 0')
    E('s_cbranch_scc1 ' + lnl)
    E('v_mov_b32 v16, 0\nv_mov_b32 v20, -1\nv_mov_b32 v21, -1\nv_mov_b32 v22, -1\nv_mov_b32 v23, -1')
    E('v_lshlrev_b32 v17, 7, v1')
    E('s_mov_b64 exec, 0xff')
    E('buffer_store_dword v16, v17, %s, s%d offen sc1' % (srd('WS'), S_CNTG))
    E('s_mov_b64 exec, -1')
    E('s_lshl_b32 s6, s4, 12\ns_add_u32 s6, s6, %d' % OFF_CBSB)
    for q in range(4):
        E('buffer_store_dwordx4 v[20:23], v4, %s, s6 offen offset:%d sc1' % (srd('WS'), q * 1024))
    E('s_lshl_b32 s6, s4, 11\ns_add_u32 s6, s6, %d' % OFF_MODX)
    for q in range(2):
        E('buffer_store_dwordx4 v[20:23], v4, %s, s6 offen offset:%d sc1' % (srd('WS'), q * 1024))
    E(lnl + ':')
    E('v_and_b32 v11, 7, v1')
    E('v_lshrrev_b32 v12, 3, v1')
    E('v_lshlrev_b32 v13, 10, v12')
    E('v_lshl_add_u32 v13, v11, 4, v13')
    E('v_lshlrev_b32 v14, 10, v11')
    E('v_lshl_add_u32 v14, v12, 4, v14')
    E('s_lshl_b32 s6, s4, 7\ns_lshl_b32 s7, s5, 3\ns_add_u32 s6, s6, s7\ns_lshl_b32 s54, s6, 10')
    E('s_lshl_b32 s7, s3, 9\ns_add_u32 s55, s54, s7')
    for i in range(8):
        E('buffer_load_dwordx4 v[%d:%d], v13, %s, s54 offen offset:%d' % (128 + 4 * i, 131 + 4 * i, srd('X'), i * 128))
    for i in range(4):
        E('buffer_load_dwordx4 v[%d:%d], v14, %s, s55 offen offset:%d' % (160 + 4 * i, 163 + 4 * i, srd('X'), i * 128))
    lnl2, lnl3 = lab('NL'), lab('NL')
    E('s_mov_b64 exec, 1')
    E('s_cmp_lg_u32 s53, 0')
    E('s_cbranch_scc1 ' + lnl2)
    E('s_waitcnt vmcnt(12)')
    E('v_mov_b32 v16, 1')
    E('s_lshl_b32 s6, s4, 2')
    E('v_mov_b32 v17, s6')
    E('buffer_store_dword v16, v17, %s, 0 offen sc1' % srd('DBG'))
    E('s_branch ' + lnl3)
    E(lnl2 + ':')
    E('buffer_load_dword v16, v4, %s, 0 offen' % srd('C'))
    E(lnl3 + ':')
    E('s_mov_b64 exec, -1')
    E('v_mov_b32 v5, 0\nv_mov_b32 v6, %d\nds_write_b32 v6, v5\nds_write_b32 v6, v5 offset:4' % L_FLAG)
    E('v_lshlrev_b32 v48, 8, v12')
    E('v_lshl_add_u32 v48, v11, 4, v48')
    E('v_add_u32 v49, 4096, v48')
    E('s_lshl_b32 s6, s4, 3\ns_lshr_b32 s7, s5, 1\ns_add_u32 s6, s6, s7\ns_lshl_b32 s6, s6, 14')
    E('s_and_b32 s7, s5, 1\ns_lshl_b32 s7, s7, 7\ns_add_u32 s6, s6, s7')
    E('s_lshl_b32 s59, s3, 13\ns_add_u32 s6, s6, s59\ns_add_u32 s60, s6, %d' % OFF_XH)
    E('v_lshlrev_b32 v50, 5, v11')
    E('v_mov_b32 v100, 0\nv_mov_b32 v101, 0\nv_mov_b32 v102, 0x3f803f80\nv_mov_b32 v103, 0\nv_mov_b32 v104, 0')
    for i in range(8):
        E('s_waitcnt vmcnt(%d)' % (12 - i))
        for p in range(4):
            r = 128 + 4 * i + p
            E('v_dot2_f32_bf16 v%d, v%d, v102, v%d' % (100 + 3 * (p & 1), r, 100 + 3 * (p & 1)))
            E('v_dot2_f32_bf16 v%d, v%d, v%d, v%d' % (101 + 3 * (p & 1), r, r, 101 + 3 * (p & 1)))
    E('v_add_f32 v100, v100, v103\nv_add_f32 v101, v101, v104')
    for mod_ in ('quad_perm:[1,0,3,2]', 'quad_perm:[2,3,0,1]', 'row_half_mirror'):
        E('v_add_f32_dpp v100, v100, v100 %s row_mask:0xf bank_mask:0xf' % mod_)
        E('v_add_f32_dpp v101, v101, v101 %s row_mask:0xf bank_mask:0xf' % mod_)
    E('v_mul_f32 v100, %s, v100' % f32(1.0 / 512))
    E('v_mul_f32 v101, %s, v101' % f32(1.0 / 512))
    E('v_fma_f32 v101, -v100, v100, v101')
    E('v_max_f32 v101, 0, v101')
    round_bf16(100, 100)
    round_bf16(101, 101)
    E('v_add_f32 v101, %s, v101' % f32(1e-5))
    round_bf16(101, 101)
    E('v_sqrt_f32 v101, v101')
    round_bf16(101, 101)
    E('v_rcp_f32 v101, v101')
    E('ds_bpermute_b32 v100, v50, v100')
    E('ds_bpermute_b32 v101, v50, v101')
    E('s_waitcnt vmcnt(1) lgkmcnt(0)')
    for i in range(4):
        for p in range(4):
            src = 160 + 4 * i + p
            E('v_lshlrev_b32 v%d, 16, v%d' % (104 + 2 * p, src))
            E('v_and_b32 v%d, 0xffff0000, v%d' % (105 + 2 * p, src))
        for e in range(8):
            E('v_sub_f32 v%d, v%d, v100' % (104 + e, 104 + e))
        for p in range(4):
            E('v_cvt_pk_bf16_f32 v%d, v%d, v%d' % (112 + p, 104 + 2 * p, 105 + 2 * p))
        for p in range(4):
            E('v_lshlrev_b32 v%d, 16, v%d' % (104 + 2 * p, 112 + p))
            E('v_and_b32 v%d, 0xffff0000, v%d' % (105 + 2 * p, 112 + p))
        for e in range(8):
            E('v_mul_f32 v%d, v%d, v101' % (104 + e, 104 + e))
        for p in range(4):
            E('v_cvt_pk_bf16_f32 v%d, v%d, v%d' % (176 + 4 * i + p, 104 + 2 * p, 105 + 2 * p))
        E('buffer_store_dwordx4 v[%d:%d], v%d, %s, s60 offen offset:%d sc1' % (
            176 + 4 * i, 179 + 4 * i, 48 + (i >> 1), srd('WS'), (i & 1) * 2048))
    stamp(16)
    poll_flags()
    stamp(17)
    E('s_waitcnt lgkmcnt(0)')
    E('s_branch ' + lj)
    E(lw23 + ':')
    E('s_movk_i32 s6, 6144')
    E('v_mul_lo_u32 v9, v7, s6')
    E('v_lshl_add_u32 v9, v8, 4, v9')
    E('v_lshlrev_b32 v10, 3, v7')
    E('s_and_b32 s6, s3, 1\ns_lshl_b32 s6, s6, 12\ns_add_u32 s6, s6, %d' % L_SC)
    E('v_add_u32 v10, s6, v10')
    E('s_lshl_b32 s53, s52, 6')
    E('buffer_load_dwordx4 v[16:19], v4, %s, 0 offen' % srd('C'))
    E('s_and_b32 s6, s3, 1\ns_lshl_b32 s6, s6, 4\ns_lshl_b32 s7, s%d, 2\ns_add_u32 s63, s6, s7' % S_X)
    for n in range(16):
        E('s_add_u32 s57, s63, %d\ns_and_b32 s57, s57, 31' % n)
        E('s_mul_i32 s58, s57, %d\ns_add_u32 s58, s58, s53' % (16 * 6144))
        E('buffer_load_dwordx4 v[%d:%d], v9, %s, s58 offen' % (128 + 4 * n, 131 + 4 * n, srd('WMOD')))
    lw3a, lw23b = lab('W3a'), lab('W23b')
    E('s_cmp_eq_u32 s3, 3')
    E('s_cbranch_scc1 ' + lw3a)
    E('s_mul_i32 s58, s5, %d\ns_lshl_b32 s59, s4, 6\ns_add_u32 s58, s58, s59' % (32 * 6144))
    for seg in range(2):
        for h in range(2):
            E('s_add_u32 s59, s58, %d' % (h * 16 * 6144 + (1536 + 512 * seg) * 2))
            r = 192 + (seg * 2 + h) * 4
            E('buffer_load_dwordx4 v[%d:%d], v9, %s, s59 offen' % (r, r + 3, srd('WMOD')))
    E('s_mul_i32 s58, s4, %d\ns_lshl_b32 s59, s5, 7\ns_add_u32 s58, s58, s59' % (32 * 6144))
    E('s_cmp_ge_u32 s5, 8')
    E('s_cselect_b32 s59, 2, 1')
    E('s_lshl_b32 s59, s59, 11')
    E('s_add_u32 s58, s58, s59')
    for seg in range(2):
        for h in range(2):
            E('s_add_u32 s59, s58, %d' % (h * 16 * 6144 + seg * 64))
            r = 208 + (seg * 2 + h) * 4
            E('buffer_load_dwordx4 v[%d:%d], v9, %s, s59 offen' % (r, r + 3, srd('WMOD')))
    E('v_lshlrev_b32 v11, 7, v1')
    E('s_mul_i32 s58, s2, 5504')
    E('buffer_load_dword a16, v11, %s, s58 offen' % srd('W2'))
    E('s_lshl_b32 s58, s2, 11')
    E('s_mov_b64 exec, 0xffff')
    E('buffer_load_dword a17, v11, %s, s58 offen' % srd('WO'))
    E('s_mov_b64 exec, -1')
    E('buffer_load_dword a18, v4, %s, 0 offen' % srd('C'))
    E('buffer_load_dword a19, v4, %s, 0 offen' % srd('C'))
    E('s_branch ' + lw23b)
    E(lw3a + ':')
    E('v_lshrrev_b32 v11, 5, v1')
    E('v_lshlrev_b32 v11, 1, v11')
    E('v_xor_b32 v11, v8, v11')
    E('s_movk_i32 s6, 3072')
    E('v_mul_lo_u32 v12, v7, s6')
    E('v_lshl_add_u32 v12, v11, 4, v12')
    E('s_lshl_b32 s56, s5, 6')
    E('s_and_b32 s57, s4, 1\ns_lshl_b32 s57, s57, 4')
    E('s_lshl_b32 s62, s5, 1')
    for t in range(4):
        p1b_dma(t)
    E(lw23b + ':')
    E('s_waitcnt vmcnt(28)')
    stamp(16)
    silu_table()
    for e in range(8):
        E('v_mov_b32 v%d, 0' % (50 + e))
    E('s_waitcnt lgkmcnt(0)')
    for n in range(16):
        E('s_add_u32 s6, s63, %d\ns_and_b32 s6, s6, 31\ns_lshl_b32 s6, s6, 7' % n)
        E('v_add_u32 v28, s6, v10')
        E('ds_read_b64 v[%d:%d], v28' % (60 + 2 * n, 61 + 2 * n))
    E('s_waitcnt lgkmcnt(0)')
    for n in range(16):
        E('s_waitcnt vmcnt(%d)' % (27 - n))
        dot_rows(50, 128 + 4 * n, 60 + 2 * n)
    reduce8(50)
    E('v_lshlrev_b32 v28, 5, v8')
    E('v_lshl_add_u32 v28, v3, 3, v28')
    E('s_and_b32 s6, s3, 1\ns_lshl_b32 s6, s6, 7\ns_add_u32 s6, s6, %d' % L_RED)
    E('v_add_u32 v28, s6, v28')
    E('ds_write_b64 v28, v[50:51]')
    E('s_waitcnt lgkmcnt(0)')
    stamp(17)
    E(lj + ':')
    E('s_barrier')
    stamp(1)
    l1, l2, l3, lb3, lwp = lab('R1'), lab('R2'), lab('R3'), lab('B3'), lab('WP')
    E('s_cmp_eq_u32 s3, 1')
    E('s_cbranch_scc1 ' + l1)
    E('s_cmp_eq_u32 s3, 2')
    E('s_cbranch_scc1 ' + l2)
    E('s_cmp_eq_u32 s3, 3')
    E('s_cbranch_scc1 ' + l3)
    E('v_lshlrev_b32 v28, 2, v1')
    E('v_add_u32 v29, %d, v28' % L_RED)
    E('ds_read_b32 v20, v29\nds_read_b32 v21, v29 offset:128')
    E('s_lshl_b32 s6, s%d, 12\ns_add_u32 s6, s6, %d' % (S_X, OFF_MODX))
    E('s_lshl_b32 s7, s52, 7\ns_add_u32 s7, s7, s6')
    E('s_waitcnt lgkmcnt(0)')
    E('v_add_f32 v20, v20, v21')
    round_bf16(20, 20)
    E('s_mov_b32 exec_lo, -1\ns_mov_b32 exec_hi, 0')
    E('buffer_store_dword v20, v28, %s, s7 offen sc1' % srd('WS'))
    E('s_mov_b64 exec, -1')
    E('v_lshlrev_b32 v28, 5, v1')
    lg0, lg1 = lab('G'), lab('G')
    E('s_mov_b32 s90, 0')
    E(lg0 + ':')
    E('buffer_load_dwordx4 v[20:23], v28, %s, s6 offen sc1' % srd('WS'))
    E('buffer_load_dwordx4 v[24:27], v28, %s, s6 offen offset:16 sc1' % srd('WS'))
    E('buffer_load_dwordx4 v[32:35], v28, %s, s6 offen offset:2048 sc1' % srd('WS'))
    E('buffer_load_dwordx4 v[36:39], v28, %s, s6 offen offset:2064 sc1' % srd('WS'))
    E('s_add_u32 s90, s90, 1')
    E('s_cmp_gt_u32 s90, %d' % SPIN_MAX)
    E('s_cbranch_scc1 ' + lg1)
    E('s_waitcnt vmcnt(0)')
    E('v_or3_b32 v40, v20, v21, v22\nv_or3_b32 v41, v23, v24, v25\nv_or3_b32 v42, v26, v27, v32\nv_or3_b32 v43, v33, v34, v35')
    E('v_or3_b32 v40, v40, v36, v37\nv_or3_b32 v41, v41, v38, v39\nv_or3_b32 v40, v40, v41, v42\nv_or_b32 v40, v40, v43')
    E('v_and_b32 v40, 0xffff, v40')
    E('v_cmp_ne_u32 vcc, 0, v40')
    E('s_cbranch_vccnz ' + lg0)
    E(lg1 + ':')
    E('s_waitcnt vmcnt(0)')
    for e in range(8):
        E('v_add_f32 v%d, 1.0, v%d' % (32 + e, 32 + e))
    for e in range(8):
        E('v_cvt_pk_bf16_f32 v%d, v%d, v%d' % (32 + e, 32 + e, 32 + e))
    for e in range(8):
        E('v_and_b32 v%d, 0xffff0000, v%d' % (32 + e, 32 + e))
    E('s_lshl_b32 s6, s5, 2')
    E('v_subrev_u32 v28, s6, v1')
    E('v_and_b32 v28, 63, v28')
    E('v_lshlrev_b32 v28, 6, v28')
    E('v_add_u32 v28, %d, v28' % L_TAB)
    E('ds_write_b128 v28, v[32:35]\nds_write_b128 v28, v[36:39] offset:16\nds_write_b128 v28, v[20:23] offset:32\nds_write_b128 v28, v[24:27] offset:48')
    stamp(2)
    lds_flag_wait(L_FLAG)
    issue_a_p1()
    E('s_waitcnt lgkmcnt(0)')
    E('s_branch ' + lb3)
    E(l1 + ':')
    arrive(S_CNTG, CX)
    E('s_max_u32 s6, s4, 1\ns_sub_u32 s6, s6, 1\ns_lshl_b32 s6, s6, 10')
    E('v_mov_b32 v6, s%d' % S_CNTG)
    E('v_mov_b32 v5, s6')
    E('v_cmp_eq_u32 vcc, 1, v1')
    E('v_cndmask_b32 v6, v6, v5, vcc')
    poll_v6(3, 16)
    lds_flag_set(L_FLAG)
    stamp(2)
    issue_a_p1()
    E('s_waitcnt lgkmcnt(0)')
    E('s_branch ' + lb3)
    E(l3 + ':')
    for t in range(4, 32):
        p1b_dma(t)
        E('s_waitcnt vmcnt(%d)' % B1_THROTTLE)
    stamp(2)
    lds_flag_wait(L_FLAG + 4)
    E('s_branch ' + lwp)
    E(l2 + ':')
    E('s_movk_i32 s6, 2752')
    E('v_mul_lo_u32 v11, v7, s6')
    E('v_lshl_add_u32 v11, v8, 4, v11')
    E('s_mul_i32 s58, s4, %d\ns_lshl_b32 s59, s%d, 6\ns_add_u32 s58, s58, s59' % (32 * 2752, S_PS))
    for idx in range(12):
        m, p, half = idx // 6, (idx % 6) >> 1, idx & 1
        E('s_mov_b32 m0, %d' % (L_WST + idx * 1024))
        E('s_add_u32 s59, s58, %d' % (p * 64 + half * 16 * 2752))
        E('buffer_load_dwordx4 v11, %s, s59 offen lds' % srd('W3' if m else 'W1'))
    E('s_lshl_b32 s57, s5, 8')
    E('v_add_u32 v28, s57, v10')
    E('ds_read_b64 v[60:61], v28\nds_read_b64 v[62:63], v28 offset:128')
    E('s_lshl_b32 s57, s4, 8')
    E('v_add_u32 v28, s57, v10')
    E('ds_read_b64 v[64:65], v28\nds_read_b64 v[66:67], v28 offset:128')
    for e in range(32):
        E('v_mov_b32 v%d, 0' % (68 + e))
    E('s_waitcnt vmcnt(16) lgkmcnt(0)')
    for st in range(4):
        for h in range(2):
            dot_rows(68 + 8 * st, 192 + (st * 2 + h) * 4, (60 if st < 2 else 64) + 2 * h)
    for st in range(4):
        reduce8(68 + 8 * st)
    E('v_lshlrev_b32 v28, 5, v8')
    E('v_lshl_add_u32 v28, v3, 3, v28')
    E('v_cmp_gt_u32 vcc, 4, v2')
    E('s_mov_b64 exec, vcc')
    E('s_lshl_b32 s6, s4, 12\ns_lshl_b32 s7, s5, 8\ns_add_u32 s57, s6, s7\ns_add_u32 s57, s57, %d' % OFF_CBSB)
    E('buffer_store_dwordx2 v[68:69], v28, %s, s57 offen sc1' % srd('WS'))
    E('buffer_store_dwordx2 v[76:77], v28, %s, s57 offen offset:128 sc1' % srd('WS'))
    E('s_lshl_b32 s6, s5, 12\ns_lshl_b32 s7, s4, 8\ns_add_u32 s57, s6, s7\ns_add_u32 s57, s57, %d' % OFF_GAGB)
    E('buffer_store_dwordx2 v[84:85], v28, %s, s57 offen sc1' % srd('WS'))
    E('buffer_store_dwordx2 v[92:93], v28, %s, s57 offen offset:128 sc1' % srd('WS'))
    E('s_mov_b64 exec, -1')
    E('s_lshl_b32 s57, s4, 12\ns_add_u32 s57, s57, %d' % OFF_CBSB)
    lg0, lg1 = lab('G'), lab('G')
    E('s_mov_b32 s90, 0')
    E(lg0 + ':')
    for n in range(4):
        E('buffer_load_dwordx4 v[%d:%d], v4, %s, s57 offen offset:%d sc1' % (68 + 4 * n, 71 + 4 * n, srd('WS'), n * 1024))
    E('s_add_u32 s90, s90, 1')
    E('s_cmp_gt_u32 s90, %d' % SPIN_MAX)
    E('s_cbranch_scc1 ' + lg1)
    E('s_waitcnt vmcnt(0)')
    E('v_max3_u32 v41, v68, v69, v70')
    for r in range(71, 83, 2):
        E('v_max3_u32 v41, v41, v%d, v%d' % (r, r + 1))
    E('v_max_u32 v41, v41, v83')
    E('v_cmp_eq_u32 vcc, -1, v41')
    E('s_cbranch_vccnz ' + lg0)
    E(lg1 + ':')
    E('s_waitcnt vmcnt(0)')
    for r in range(4):
        E('v_add_f32 v%d, v%d, v%d' % (68 + r, 68 + r, 72 + r))
        E('v_add_f32 v%d, v%d, v%d' % (76 + r, 76 + r, 80 + r))
        E('v_add_f32 v%d, v%d, v%d' % (68 + r, 68 + r, 76 + r))
        allreduce_lg('v_add_f32', 68 + r, 40)
        round_bf16(68 + r, 68 + r)
    E('v_lshlrev_b32 v28, 4, v2')
    E('v_add_u32 v28, %d, v28' % (L_RED + 512))
    E('ds_write_b128 v28, v[68:71]')
    E('s_waitcnt lgkmcnt(0)')
    lds_flag_set(L_FLAG + 4)
    stamp(2)
    E(lwp + ':')
    E('v_lshlrev_b32 v28, 5, v3')
    E('v_add_u32 v28, %d, v28' % (L_RED + 512))
    E('ds_read_b128 v[40:43], v28\nds_read_b128 v[44:47], v28 offset:16\nds_read_b128 v[48:51], v28 offset:128\nds_read_b128 v[52:55], v28 offset:144')
    E('s_and_b32 s63, s3, 1')
    E('v_lshrrev_b32 v11, 2, v2')
    E('v_lshl_add_u32 v11, v3, 3, v11')
    E('v_lshlrev_b32 v11, 6, v11')
    E('v_and_b32 v12, 3, v2')
    E('v_lshl_add_u32 v11, v12, 4, v11')
    E('s_mul_i32 s6, s63, 6144\ns_add_u32 s6, s6, %d' % L_WST)
    E('v_add_u32 v11, s6, v11')
    E('v_lshrrev_b32 v13, 2, v2')
    E('v_lshl_add_u32 v13, v13, 3, v12')
    E('v_lshlrev_b32 v13, 2, v13')
    E('v_lshrrev_b32 v14, 1, v3')
    E('s_movk_i32 s7, 384')
    E('v_mul_lo_u32 v14, v14, s7')
    E('v_add_u32 v13, v13, v14')
    E('s_lshl_b32 s57, s%d, 16\ns_lshl_b32 s58, s4, 12\ns_add_u32 s57, s57, s58\ns_add_u32 s57, s57, %d' % (S_PS, OFF_WF))
    E('s_lshl_b32 s6, s63, 11\ns_add_u32 s57, s57, s6')
    E('s_lshl_b32 s58, s5, 4\ns_add_u32 s58, s58, s4\ns_mul_i32 s58, s58, 1536\ns_add_u32 s58, s58, %d' % OFF_UT)
    E('s_mul_i32 s6, s63, 768\ns_add_u32 s58, s58, s6')
    E('v_mov_b32 v58, 0x3f803f80')
    for fb in range(6):
        off = (fb & ~1) * 1024 + (fb & 1) * 8
        T = 80 + fb * 4
        E('ds_read_b64_tr_b16 v[%d:%d], v11 offset:%d' % (T, T + 1, off))
        E('ds_read_b64_tr_b16 v[%d:%d], v11 offset:%d' % (T + 2, T + 3, off + 256))
        if fb == 3:
            E('s_waitcnt lgkmcnt(0)')
    E('s_waitcnt lgkmcnt(0)')
    for e in range(8):
        E('v_add_f32 v%d, 1.0, v%d' % (48 + e, 48 + e))
        round_bf16(48 + e, 48 + e)
    for fb in range(6):
        p, ct = fb >> 1, fb & 1
        T = 80 + fb * 4
        X = 64
        U = 72 + 2 * (fb & 1)
        for q in range(4):
            E('v_lshlrev_b32 v%d, 16, v%d' % (X + 2 * q, T + q))
            E('v_and_b32 v%d, 0xffff0000, v%d' % (X + 2 * q + 1, T + q))
        E('v_mul_f32 v%d, v64, v40' % (U + 1))
        for e in range(1, 8):
            E('v_fmac_f32 v%d, v%d, v%d' % (U + 1, X + e, 40 + e))
        for e in range(8):
            E('v_mul_f32 v%d, v%d, v%d' % (X + e, X + e, 48 + e))
        for q in range(4):
            E('v_cvt_pk_bf16_f32 v%d, v%d, v%d' % (T + q, X + 2 * q, X + 2 * q + 1))
        E('v_mov_b32 v%d, 0' % U)
        for q in range(4):
            E('v_dot2_f32_bf16 v%d, v%d, v58, v%d' % (U, T + q, U))
        E('s_add_u32 s59, s57, %d' % (p * 65536 + ct * 1024))
        E('buffer_store_dwordx4 v[%d:%d], v4, %s, s59 offen sc1' % (T, T + 3, srd('WS')))
        E('v_permlane32_swap_b32 v%d, v%d' % (U, U + 1))
        E('v_add_f32 v%d, v%d, v%d' % (U, U, U + 1))
        E('v_mov_b32 v%d, v%d' % (U + 1, U))
        E('v_permlane16_swap_b32 v%d, v%d' % (U, U + 1))
        E('v_add_f32 v%d, v%d, v%d' % (76 + (fb & 1), U, U + 1))
        E('s_add_u32 s59, s58, %d' % (p * 128 + ct * 16))
        E('buffer_store_dword v%d, v13, %s, s59 offen sc1' % (76 + (fb & 1), srd('WS')))
    lds_flag_wait(L_FLAG)
    E('s_waitcnt vmcnt(0)')
    arrive(S_CNTJ, CW)
    issue_a_p1()
    E(lb3 + ':')
    stamp(18)
    E('s_barrier')
    stamp(3)
    cstamp(30)


def splitk_setup(which):
    NKS = 4 if which == 2 else 11
    E('v_lshrrev_b32 v5, 3, v1')
    E('v_and_b32 v6, 7, v1')
    E('v_lshlrev_b32 v5, 10, v5')
    E('v_lshl_add_u32 v8, v6, 4, v5')
    E('v_xor_b32 v9, 64, v8')
    E('s_mul_i32 s79, s3, %d' % (NKS * 32768))
    E('s_lshl_b32 s6, s%d, 1' % S_C0)
    E('s_add_u32 s79, s79, s6')
    if which == 2:
        E('s_and_b32 s80, s5, 3')
    else:
        E('s_mov_b32 s80, s%d' % S_J7)


def splitk_kstep(which, pos, dst):
    out = ['s_add_u32 s%d, s80, %d' % (dst, pos)]
    if which == 2:
        out.append('s_and_b32 s%d, s%d, 3' % (dst, dst))
    else:
        out += ['s_cmp_ge_u32 s%d, 11' % dst, 's_cselect_b32 s7, 11, 0', 's_sub_u32 s%d, s%d, s7' % (dst, dst)]
    return out


def splitk_b_grps(which, pos):
    row = (P2_ROW if which == 2 else P4_ROW)[pos]
    grps = []
    for q in range(4):
        g_ = []
        if q == 0:
            g_ += splitk_kstep(which, pos, 60) + ['s_lshl_b32 s60, s60, 15', 's_add_u32 s60, s60, s79']
        g_ += ['s_add_u32 s58, s%d, %d' % (S_QB, row * ROWB + q * 1024), 's_mov_b32 m0, s58',
               's_add_u32 s59, s60, %d' % (q * 8192),
               'buffer_load_dwordx4 v%d, %s, s59 offen lds' % (8 + (q & 1), srd('WO' if which == 2 else 'W2'))]
        grps.append(g_)
    return grps


def p3_setup():
    E('s_lshl_b32 s84, s%d, 16\ns_lshl_b32 s85, s3, 10\ns_add_u32 s84, s84, s85\ns_add_u32 s84, s84, %d' % (S_PS, OFF_WF))


def p3_addr(u):
    return P3_ROW[u >> 2] * ROWB + (u & 3) * 4096


def p3_b_grp(u):
    return ['s_add_u32 s61, s5, %d' % (u & 15), 's_and_b32 s61, s61, 15', 's_lshl_b32 s61, s61, 12', 's_add_u32 s61, s61, s84',
            's_add_u32 s61, s61, %d' % ((u >> 4) * 65536),
            's_add_u32 s58, s85, %d' % p3_addr(u), 's_mov_b32 m0, s58',
            'buffer_load_dwordx4 v4, %s, s61 offen sc1 lds' % srd('WS')]


def p3_row_by_one_wave(r):
    for q4 in range(4):
        u = 4 * r + q4
        E('s_add_u32 s61, s5, %d\ns_and_b32 s61, s61, 15\ns_lshl_b32 s61, s61, 12\ns_add_u32 s61, s61, s84\ns_sub_u32 s61, s61, s85\ns_add_u32 s61, s61, %d' % (u & 15, (u >> 4) * 65536))
        for blk in range(4):
            E('s_mov_b32 m0, %d' % (p3_addr(u) + blk * 1024))
            E('s_add_u32 s59, s61, %d' % (blk * 1024))
            E('buffer_load_dwordx4 v4, %s, s59 offen sc1 lds' % srd('WS'))


def KP(hh, b): return 16 + hh * 6 + (b + 1) * 2
def VP(hh, b): return 28 + hh * 6 + (b + 1) * 2
def QP(hh, b): return 40 + hh * 4 + b * 2


def phase1():
    vm.reset()
    for i in range(A1_PRE):
        vm.seq += [('a', i), ('a', i)]
    splitk_setup(2)
    E('v_lshrrev_b32 v5, 2, v2')
    E('v_lshl_add_u32 v5, v3, 3, v5')
    E('v_lshlrev_b32 v5, 6, v5')
    E('v_and_b32 v10, 3, v2')
    E('v_lshl_add_u32 v5, v10, 3, v5')
    E('v_and_b32 v10, 1, v3')
    E('v_lshl_add_u32 v10, v10, 5, v5')
    E('v_xor_b32 v11, 32, v10')
    E('v_add_u32 v12, 0x10000, v10')
    E('v_add_u32 v13, 0x10000, v11')
    E('v_lshlrev_b32 v14, 6, v3')
    E('v_add_u32 v14, %d, v14' % L_TAB)
    ACC = 64
    BF = 64
    TB = (112, 32)

    def bread(ks, buf, bases, segs=(0, 1, 2)):
        out = []
        for seg in segs:
            for hh in range(2):
                t = seg * 2 + hh
                base = bases[hh] if seg < 2 else bases[2 + hh]
                off = (seg % 2) * 32768 + ks * 2048
                d = BF + buf * 24 + t * 4
                out.append('ds_read_b64_tr_b16 v[%d:%d], v%d offset:%d' % (d, d + 1, base, off))
                out.append('ds_read_b64_tr_b16 v[%d:%d], v%d offset:%d' % (d + 2, d + 3, base, off + 256))
        return out

    def tread(ks, T, base=14):
        return ['ds_read_b128 v[%d:%d], v%d offset:%d' % (T + 4 * q, T + 4 * q + 3, base, ks * 256 + q * 16) for q in range(4)]

    def modulate(src, T, tmp):
        un, fm, cv = [], [], []
        for p in range(4):
            un.append('v_lshlrev_b32 v%d, 16, v%d' % (tmp + 2 * p, src + p))
            un.append('v_and_b32 v%d, 0xffff0000, v%d' % (tmp + 2 * p + 1, src + p))
        for e in range(8):
            fm.append('v_fma_f32 v%d, v%d, v%d, v%d' % (tmp + e, tmp + e, T + e, T + 8 + e))
        for p in range(4):
            cv.append('v_cvt_pk_bf16_f32 v%d, v%d, v%d' % (src + p, tmp + 2 * p, tmp + 2 * p + 1))
        return un + fm + cv

    def mm(acc, af, bf, seg, first):
        c = '0' if first else 'a[%d:%d]' % (acc, acc + 3)
        if seg < 2:
            return 'v_mfma_f32_16x16x32_bf16 a[%d:%d], v[%d:%d], v[%d:%d], %s' % (acc, acc + 3, bf, bf + 3, af, af + 3, c)
        return 'v_mfma_f32_16x16x32_bf16 a[%d:%d], v[%d:%d], v[%d:%d], %s' % (acc, acc + 3, af, af + 3, bf, bf + 3, c)

    def mod2(ks):
        return modulate(128 + ks * 8, TB[ks & 1], 48) + modulate(132 + ks * 8, TB[ks & 1], 56)

    bg = {ks: [] for ks in range(16)}
    for i in range(A1_PRE, 16):
        bg[i - A1_PRE].append((a1_grp(i), ('a', i)))
    for q in range(4):
        bg[10 + q // 2].append((a1_halo_grp(q), ('h', 0)))
    k = 0
    for pos in range(3):
        for g_ in splitk_b_grps(2, pos):
            bg[10 + k // 2].append((g_, ('b2', pos)))
            k += 1
    bases = (10, 11, 12, 13)
    for o in tread(0, TB[0]) + tread(1, TB[1]):
        E(o)
    E('s_waitcnt vmcnt(%d) lgkmcnt(0)' % vm.n_after([('a', 0)]))
    for o in bread(0, 0, bases):
        E(o)
    for o in mod2(0):
        E(o)
    for ks in range(16):
        buf = ks & 1
        if ks + 1 < 16:
            E('s_waitcnt vmcnt(%d) lgkmcnt(0)' % vm.n_after([('a', ks + 1)]))
            valu = mod2(ks + 1)
            lds = bread(ks + 1, buf ^ 1, bases)
            if ks + 2 < 16:
                lds = tread(ks + 2, TB[ks & 1]) + lds
        else:
            E('s_waitcnt lgkmcnt(0)')
            valu, lds = [], []
        mf = [mm(ACC + (b * 6 + t) * 4, 128 + ks * 8 + 4 * b, BF + buf * 24 + t * 4, t // 2, ks == 0) for t in range(6) for b in range(2)]
        grp = list(bg[ks])
        for i, m_ in enumerate(mf):
            E(m_)
            for o in lds[(i * len(lds)) // 12:((i + 1) * len(lds)) // 12]:
                E(o)
            for o in valu[(i * len(valu)) // 12:((i + 1) * len(valu)) // 12]:
                E(o)
            if grp and i % 3 == 1:
                g_, tag = grp.pop(0)
                vm.grp(g_, tag)
        assert not grp
    stamp(19)
    cstamp(31)
    E('s_barrier')
    for g_ in splitk_b_grps(2, 3):
        vm.grp(g_, ('b2', 3))
    E('s_lshl_b32 s6, s3, 13')
    for k in range(4):
        E('v_add_u32 v%d, s6, v%d' % (16 + k, 10 + k))
    E('s_lshl_b32 s6, s3, 10')
    E('v_add_u32 v20, s6, v14')
    hb = (16, 17, 18, 19)
    for q in (0, 1):
        for o in tread(q, TB[q & 1], 20) + bread(q, q & 1, hb, segs=(1, 2)):
            E(o)
    E('s_waitcnt vmcnt(%d)' % vm.n_after([('h', 0)]))
    for r in range(16):
        E('v_accvgpr_read_b32 v%d, a%d' % (128 + r, r))
    for q2 in range(2):
        E('s_waitcnt lgkmcnt(0)')
        for o in modulate(128 + 8 * q2, TB[0], 48) + modulate(132 + 8 * q2, TB[1], 56):
            E(o)
        for q in (2 * q2, 2 * q2 + 1):
            for t in range(2, 6):
                E(mm(112 + (t - 2) * 4, 128 + 4 * q, BF + (q & 1) * 24 + t * 4, t // 2, q == 0))
        if q2 == 0:
            for q in (2, 3):
                for o in tread(q, TB[q & 1], 20) + bread(q, q & 1, hb, segs=(1, 2)):
                    E(o)
    stamp(4)
    for b in range(2):
        for hh in range(2):
            for si, (seg, fn) in enumerate(((0, QP), (1, KP), (2, VP))):
                a = ACC + (b * 6 + seg * 2 + hh) * 4
                for r in range(4):
                    E('v_accvgpr_read_b32 v%d, a%d' % (48 + 4 * si + r, a + r))
            for si, (seg, fn) in enumerate(((0, QP), (1, KP), (2, VP))):
                d = fn(hh, b)
                E('v_cvt_pk_bf16_f32 v%d, v%d, v%d' % (d, 48 + 4 * si, 49 + 4 * si))
                E('v_cvt_pk_bf16_f32 v%d, v%d, v%d' % (d + 1, 50 + 4 * si, 51 + 4 * si))
    E('v_lshlrev_b32 v52, 3, v1')
    E('s_lshl_b32 s6, s3, 11\ns_add_u32 s6, s6, %d' % L_XCH)
    E('v_add_u32 v53, s6, v52')
    E('s_add_u32 s6, s3, 1\ns_and_b32 s6, s6, 3\ns_lshl_b32 s6, s6, 11\ns_add_u32 s6, s6, %d' % L_XCH)
    E('v_add_u32 v55, s6, v52')
    E('ds_write_b64 v55, v[%d:%d]' % (KP(0, 1), KP(0, 1) + 1))
    E('ds_write_b64 v55, v[%d:%d] offset:512' % (KP(1, 1), KP(1, 1) + 1))
    E('ds_write_b64 v55, v[%d:%d] offset:1024' % (VP(0, 1), VP(0, 1) + 1))
    E('ds_write_b64 v55, v[%d:%d] offset:1536' % (VP(1, 1), VP(1, 1) + 1))
    E('v_add_u32 v54, s%d, v4' % S_QB)
    for t in range(4):
        E('ds_write_b128 v54, a[%d:%d] offset:%d' % (112 + 4 * t, 115 + 4 * t, L_HP + 1024 * t))
    E('v_mov_b32 v76, %s' % f32(-1e30))
    E('s_or_b32 s6, s4, s3')
    E('s_cmp_eq_u32 s6, 0')
    E('s_cselect_b32 s7, 64, 0')
    for r in range(4):
        E('v_lshl_add_u32 v77, v3, 2, %d' % r)
        E('v_sub_u32 v77, v2, v77')
        E('v_and_b32 v78, 0x80000001, v77')
        E('v_cmp_eq_u32 vcc, 0, v78')
        E('v_cndmask_b32 v%d, v76, 0, vcc' % (64 + r))
        E('v_add_u32 v77, 16, v77')
        E('v_and_b32 v78, 1, v77')
        E('v_lshl_add_u32 v78, v78, 6, v77')
        E('v_cmp_gt_u32 vcc, 15, v78')
        E('v_cndmask_b32 v%d, v76, 0, vcc' % (68 + r))
        E('v_add_u32 v78, s7, v78')
        E('v_cmp_gt_u32 vcc, 15, v78')
        E('v_cndmask_b32 v%d, v76, 0, vcc' % (72 + r))
    E('s_waitcnt lgkmcnt(0)')
    E('s_barrier')
    lw0, ljn = lab('A0'), lab('AJ')
    E('s_cmp_eq_u32 s3, 0')
    E('s_cbranch_scc1 ' + lw0)
    E('ds_read_b64 v[%d:%d], v53' % (KP(0, -1), KP(0, -1) + 1))
    E('ds_read_b64 v[%d:%d], v53 offset:512' % (KP(1, -1), KP(1, -1) + 1))
    E('ds_read_b64 v[%d:%d], v53 offset:1024' % (VP(0, -1), VP(0, -1) + 1))
    E('ds_read_b64 v[%d:%d], v53 offset:1536' % (VP(1, -1), VP(1, -1) + 1))
    E('s_waitcnt lgkmcnt(0)')
    E('s_branch ' + ljn)
    E(lw0 + ':')
    for w in range(4):
        for t in range(4):
            E('ds_read_b128 v[%d:%d], v54 offset:%d' % (128 + 16 * w + 4 * t, 131 + 16 * w + 4 * t, L_HP + w * 4096 + t * 1024))
        if w == 2:
            E('s_waitcnt lgkmcnt(0)')
    E('s_waitcnt lgkmcnt(0)')
    for r in range(16):
        E('v_add_f32 v%d, v%d, v%d' % (128 + r, 128 + r, 144 + r))
        E('v_add_f32 v%d, v%d, v%d' % (160 + r, 160 + r, 176 + r))
    for r in range(16):
        E('v_add_f32 v%d, v%d, v%d' % (128 + r, 128 + r, 160 + r))
    for t, d in enumerate((KP(0, -1), KP(1, -1), VP(0, -1), VP(1, -1))):
        E('v_cvt_pk_bf16_f32 v%d, v%d, v%d' % (d, 128 + 4 * t, 129 + 4 * t))
        E('v_cvt_pk_bf16_f32 v%d, v%d, v%d' % (d + 1, 130 + 4 * t, 131 + 4 * t))
    E(ljn + ':')
    E('s_mov_b32 s6, %s' % f32(0.25 * LOG2E))
    E('v_and_b32 v77, 1, v3')
    E('v_lshlrev_b32 v77, 9, v77')
    E('v_lshrrev_b32 v78, 1, v3')
    E('v_lshl_add_u32 v77, v78, 8, v77')
    E('v_lshl_add_u32 v77, v2, 4, v77')
    E('s_lshl_b32 s54, s%d, 14\ns_lshl_b32 s55, s5, 10\ns_add_u32 s54, s54, s55\ns_add_u32 s54, s54, %d' % (S_ROW, OFF_O))
    combos = [(b, hh) for b in range(2) for hh in range(2)]
    for c, (b, hh) in enumerate(combos):
        S = 128 + c * 8
        E('v_mfma_f32_16x16x16_bf16 v[%d:%d], v[%d:%d], v[%d:%d], 0' % (S, S + 3, KP(hh, b - 1), KP(hh, b - 1) + 1, QP(hh, b), QP(hh, b) + 1))
        E('v_mfma_f32_16x16x16_bf16 v[%d:%d], v[%d:%d], v[%d:%d], 0' % (S + 4, S + 7, KP(hh, b), KP(hh, b) + 1, QP(hh, b), QP(hh, b) + 1))

    def each(fn):
        for c, (b, hh) in enumerate(combos):
            fn(c, b, hh, 128 + c * 8, 160 + c * 2, 168 + c * 4)
    each(lambda c, b, hh, S, M, PB: [E('v_fma_f32 v%d, v%d, s6, v%d' % (S + r, S + r, ((72 + r if b == 0 else 68 + r) if r < 4 else 64 + r - 4))) for r in range(8)])
    each(lambda c, b, hh, S, M, PB: (E('v_max3_f32 v%d, v%d, v%d, v%d' % (M, S, S + 1, S + 2)), E('v_max3_f32 v%d, v%d, v%d, v%d' % (M + 1, S + 3, S + 4, S + 5))))
    each(lambda c, b, hh, S, M, PB: (E('v_max3_f32 v%d, v%d, v%d, v%d' % (M, M, S + 6, S + 7)), E('v_max_f32 v%d, v%d, v%d' % (M, M, M + 1))))
    for sw in ('v_permlane32_swap_b32', 'v_permlane16_swap_b32'):
        each(lambda c, b, hh, S, M, PB: E('v_mov_b32 v%d, v%d' % (M + 1, M)))
        each(lambda c, b, hh, S, M, PB: E('%s v%d, v%d' % (sw, M, M + 1)))
        each(lambda c, b, hh, S, M, PB: E('v_max_f32 v%d, v%d, v%d' % (M, M, M + 1)))
    each(lambda c, b, hh, S, M, PB: [E('v_sub_f32 v%d, v%d, v%d' % (S + r, S + r, M)) for r in range(8)])
    each(lambda c, b, hh, S, M, PB: [E('v_exp_f32 v%d, v%d' % (S + r, S + r)) for r in range(8)])
    each(lambda c, b, hh, S, M, PB: (E('v_add_f32 v%d, v%d, v%d' % (M, S, S + 1)), E('v_add_f32 v%d, v%d, v%d' % (M + 1, S + 2, S + 3)),
                                     E('v_add_f32 v%d, v%d, v%d' % (PB, S + 4, S + 5)), E('v_add_f32 v%d, v%d, v%d' % (PB + 1, S + 6, S + 7))))
    each(lambda c, b, hh, S, M, PB: (E('v_add_f32 v%d, v%d, v%d' % (M, M, M + 1)), E('v_add_f32 v%d, v%d, v%d' % (PB, PB, PB + 1))))
    each(lambda c, b, hh, S, M, PB: E('v_add_f32 v%d, v%d, v%d' % (M, M, PB)))
    for sw in ('v_permlane32_swap_b32', 'v_permlane16_swap_b32'):
        each(lambda c, b, hh, S, M, PB: E('v_mov_b32 v%d, v%d' % (M + 1, M)))
        each(lambda c, b, hh, S, M, PB: E('%s v%d, v%d' % (sw, M, M + 1)))
        each(lambda c, b, hh, S, M, PB: E('v_add_f32 v%d, v%d, v%d' % (M, M, M + 1)))
    each(lambda c, b, hh, S, M, PB: E('v_rcp_f32 v%d, v%d' % (M, M)))
    each(lambda c, b, hh, S, M, PB: [E('v_mul_f32 v%d, v%d, v%d' % (S + r, S + r, M)) for r in range(8)])
    each(lambda c, b, hh, S, M, PB: [E('v_cvt_pk_bf16_f32 v%d, v%d, v%d' % (PB + p, S + 2 * p, S + 2 * p + 1)) for p in range(4)])
    each(lambda c, b, hh, S, M, PB: E('v_mfma_f32_16x16x32_bf16 v[%d:%d], v[%d:%d], v[%d:%d], 0' % (184 + c * 4, 187 + c * 4, VP(hh, b - 1), VP(hh, b - 1) + 3, PB, PB + 3)))
    for b in range(2):
        O = 184 + b * 8
        D = 200 + b * 4
        for q in range(4):
            E('v_cvt_pk_bf16_f32 v%d, v%d, v%d' % (D + q, O + 2 * q, O + 2 * q + 1))
    for b in range(2):
        D = 200 + b * 4
        E('v_permlane16_swap_b32 v%d, v%d' % (D, D + 2))
        E('v_permlane16_swap_b32 v%d, v%d' % (D + 1, D + 3))
        E('s_add_u32 s55, s54, %d' % (b * 16384))
        E('buffer_store_dwordx4 v[%d:%d], v77, %s, s55 offen sc1' % (D, D + 3, srd('WS')))
    stamp(5)


def gather_ut():
    E('s_mul_i32 s58, s5, %d\ns_add_u32 s58, s58, %d' % (16 * 1536, OFF_UT))
    for kg in range(16):
        E('s_add_u32 s59, s58, %d' % (kg * 1536))
        E('buffer_load_dwordx4 v[%d:%d], v4, %s, s59 offen sc1' % (128 + 4 * kg, 131 + 4 * kg, srd('WS')))
    E('s_mov_b32 exec_lo, -1\ns_mov_b32 exec_hi, 0')
    for kg in range(16):
        E('s_add_u32 s59, s58, %d' % (kg * 1536))
        E('buffer_load_dwordx4 v[%d:%d], v4, %s, s59 offen offset:1024 sc1' % (192 + 4 * kg, 195 + 4 * kg, srd('WS')))
    E('s_mov_b64 exec, -1')
    E('s_waitcnt vmcnt(0)')
    for step in (8, 4, 2, 1):
        for base in (128, 192):
            for kg in range(step):
                for r in range(4):
                    E('v_add_f32 v%d, v%d, v%d' % (base + 4 * kg + r, base + 4 * kg + r, base + 4 * (kg + step) + r))
    E('v_add_u32 v5, %d, v4' % L_UT)
    E('ds_write_b128 v5, v[128:131]')
    E('s_mov_b32 exec_lo, -1\ns_mov_b32 exec_hi, 0')
    E('ds_write_b128 v5, v[192:195] offset:1024')
    E('s_mov_b64 exec, -1')
    E('s_waitcnt lgkmcnt(0)')


def gather_gagb():
    E('s_lshl_b32 s58, s%d, 12\ns_add_u32 s58, s58, %d' % (S_J7, OFF_GAGB))
    for h in range(2):
        E('s_add_u32 s59, s58, %d' % (h * 32768))
        for n in range(4):
            E('buffer_load_dwordx4 v[%d:%d], v4, %s, s59 offen offset:%d sc1' % (128 + 16 * h + 4 * n, 131 + 16 * h + 4 * n, srd('WS'), n * 1024))
    E('s_waitcnt vmcnt(0)')
    for h in range(2):
        B = 128 + 16 * h
        for r in range(4):
            E('v_add_f32 v%d, v%d, v%d' % (B + r, B + r, B + 4 + r))
            E('v_add_f32 v%d, v%d, v%d' % (B + 8 + r, B + 8 + r, B + 12 + r))
            E('v_add_f32 v%d, v%d, v%d' % (B + r, B + r, B + 8 + r))
            allreduce_lg('v_add_f32', B + r, 5)
            round_bf16(B + r, B + r)
    E('v_lshlrev_b32 v5, 4, v2')
    E('v_add_u32 v5, %d, v5' % L_GA)
    E('ds_write_b128 v5, v[128:131]')
    E('ds_write_b128 v5, v[144:147] offset:256')
    E('s_waitcnt lgkmcnt(0)')


def sync_window(cnt, w1, w2, w3):
    E('s_waitcnt vmcnt(0)')
    E('s_barrier')
    l1, l2, l3, le = lab('S1'), lab('S2'), lab('S3'), lab('SE')
    E('s_cmp_eq_u32 s3, 1')
    E('s_cbranch_scc1 ' + l1)
    E('s_cmp_eq_u32 s3, 2')
    E('s_cbranch_scc1 ' + l2)
    E('s_cmp_eq_u32 s3, 3')
    E('s_cbranch_scc1 ' + l3)
    arrive(S_CNTG, cnt)
    poll_ge(S_CNTG, cnt, 16)
    E('s_branch ' + le)
    E(l1 + ':')
    w1()
    E('s_branch ' + le)
    E(l2 + ':')
    w2()
    E('s_branch ' + le)
    E(l3 + ':')
    w3()
    E(le + ':')
    E('s_barrier')


def splitk_phase(which, nb_pre, bg_loop=(), bg_red=()):
    NKS = 4 if which == 2 else 11
    KTOT = 16 if which == 2 else 43
    AOFF = OFF_O if which == 2 else OFF_HH
    ROW = P2_ROW if which == 2 else P4_ROW
    NRES = 4 if which == 2 else 9
    APRE = 3
    st0 = 6 if which == 2 else 11
    stamp(st0)
    vm.reset()
    E('s_lshr_b32 s6, s%d, 4' % S_R0)
    E('s_mul_i32 s62, s3, %d' % NKS)
    for d in range(4):
        E('s_add_u32 s%d, s3, %d\ns_and_b32 s%d, s%d, 3\ns_add_u32 s%d, s%d, s6' % (72 + d, d, 72 + d, 72 + d, 72 + d, 72 + d))
        E('s_mul_i32 s%d, s%d, %d\ns_add_u32 s%d, s%d, %d' % (72 + d, 72 + d, KTOT * 1024, 72 + d, 72 + d, AOFF))

    def a_grps(pos):
        grps = []
        for d in range(4):
            g_ = []
            if d == 0:
                g_ += splitk_kstep(which, pos, 63) + ['s_add_u32 s63, s63, s62']
                if which == 4:
                    g_.append('s_min_u32 s63, s63, 42')
                g_.append('s_lshl_b32 s63, s63, 10')
            r = (pos * 4 + d) * 4
            g_ += ['s_add_u32 s59, s63, s%d' % (72 + d),
                   'buffer_load_dwordx4 a[%d:%d], v4, %s, s59 offen sc1' % (r, r + 3, srd('WS'))]
            grps.append(g_)
        return grps
    for pos in range(min(APRE, NKS)):
        for g_ in a_grps(pos):
            vm.grp(g_, ('a', pos))
    E('s_lshl_b32 s58, s3, 4\ns_add_u32 s58, s58, s%d' % S_R0)
    E('v_add_u32 v20, s58, v2')
    E('v_lshlrev_b32 v21, 10, v20')
    E('v_lshl_add_u32 v21, v3, 4, v21')
    E('v_lshrrev_b32 v16, 2, v2')
    E('v_lshl_add_u32 v16, v3, 3, v16')
    E('v_lshlrev_b32 v16, 7, v16')
    E('v_and_b32 v17, 3, v2')
    E('v_lshl_add_u32 v16, v17, 4, v16')
    E('v_and_b32 v17, 1, v3')
    E('v_lshl_add_u32 v16, v17, 6, v16')
    E('v_add_u32 v16, s%d, v16' % S_QB)
    E('v_xor_b32 v17, 64, v16')
    E('v_add_u32 v18, 0x10000, v16\nv_add_u32 v19, 0x10000, v17\nv_add_u32 v22, 0x20000, v16\nv_add_u32 v23, 0x20000, v17')
    ACC = 64
    BF = 128

    def bread(pos, buf):
        out = []
        for ct in range(4):
            off = ROW[pos] * ROWB + (ct & 1) * 8
            base = ((16, 17), (18, 19), (22, 23))[off >> 16][ct >> 1]
            off &= 0xffff
            dreg = BF + buf * 16 + ct * 4
            out.append('ds_read_b64_tr_b16 v[%d:%d], v%d offset:%d' % (dreg, dreg + 1, base, off))
            out.append('ds_read_b64_tr_b16 v[%d:%d], v%d offset:%d' % (dreg + 2, dreg + 3, base, off + 512))
        return out
    bgq = list(bg_loop)
    nb = nb_pre
    E('s_waitcnt vmcnt(%d)' % vm.n_after([('a', 0)]))
    for o in bread(0, 0):
        E(o)
    for pos in range(NKS):
        nxt = []
        if pos + 1 < NKS:
            E('s_waitcnt vmcnt(%d) lgkmcnt(0)' % vm.n_after([('a', pos), ('b', pos + 1)]))
            nxt = bread(pos + 1, (pos + 1) & 1)
        else:
            E('s_waitcnt vmcnt(%d) lgkmcnt(0)' % vm.n_after([('a', pos)]))
        grp = []
        if pos + APRE < NKS:
            grp += [(g_, ('a', pos + APRE)) for g_ in a_grps(pos + APRE)]
        if nb < NKS and nb - NRES <= pos:
            grp += [(g_, ('b', nb)) for g_ in splitk_b_grps(which, nb)]
            nb += 1
        if which == 2 and pos == 1:
            grp.append((['s_lshl_b32 s59, s%d, 1' % S_C0, 'buffer_load_dwordx4 v[160:163], v21, %s, s59 offen' % srd('X'),
                         'buffer_load_dwordx4 v[164:167], v21, %s, s59 offen offset:64' % srd('X')], ('x', 0)))
        while bgq and len(grp) < 8 and pos + APRE >= NKS:
            grp.append((bgq.pop(0), ('bg', 0)))
        i = 0
        for d in range(4):
            for ct in range(4):
                acc = ACC + (d * 4 + ct) * 4
                bf = BF + (pos & 1) * 16 + ct * 4
                af = (pos * 4 + d) * 4
                c = '0' if pos == 0 else 'v[%d:%d]' % (acc, acc + 3)
                E('v_mfma_f32_16x16x32_bf16 v[%d:%d], v[%d:%d], a[%d:%d], %s' % (acc, acc + 3, bf, bf + 3, af, af + 3, c))
                if i < len(nxt):
                    E(nxt[i])
                if grp and i % 2 == 1:
                    g_, tag = grp.pop(0)
                    vm.grp(g_, tag)
                i += 1
        assert not grp
    assert not bgq
    stamp(st0 + 1)
    E('s_barrier')
    for g_ in bg_red:
        vm.grp(g_, ('bg', 0))
    for d in range(1, 4):
        E('s_add_u32 s58, s3, %d\ns_and_b32 s58, s58, 3\ns_lshl_b32 s58, s58, 12\ns_add_u32 s58, s58, %d' % (d, (RED_ROW + d - 1) * ROWB))
        E('v_add_u32 v24, s58, v4')
        for ct in range(4):
            acc = ACC + (d * 4 + ct) * 4
            E('ds_write_b128 v24, v[%d:%d] offset:%d' % (acc, acc + 3, ct * 1024))
    E('v_lshlrev_b32 v22, 5, v3')
    E('v_add_u32 v22, %d, v22' % (L_GA + (0 if which == 2 else 256)))
    E('s_waitcnt lgkmcnt(0)')
    for c in range(2):
        for hlf in range(2):
            E('ds_read_b128 v[%d:%d], v22 offset:%d' % (168 + c * 8 + hlf * 4, 171 + c * 8 + hlf * 4, c * 128 + hlf * 16))
    E('s_barrier')
    E('s_add_u32 s58, s%d, %d' % (S_QB, RED_ROW * ROWB))
    E('v_add_u32 v24, s58, v4')
    for d in range(1, 4):
        for ct in range(4):
            acc = ACC + (d * 4 + ct) * 4
            E('ds_read_b128 v[%d:%d], v24 offset:%d' % (acc, acc + 3, (d - 1) * ROWB + ct * 1024))
        if d == 2:
            E('s_waitcnt lgkmcnt(0)')
    if which == 4:
        for r in range(8):
            E('v_accvgpr_read_b32 v%d, a%d' % (160 + r, 200 + r))
    else:
        E('s_waitcnt vmcnt(%d)' % vm.n_after([('x', 0)]))
    for i in range(16):
        src = 160 + i // 2
        if i % 2 == 0:
            E('v_lshlrev_b32 v%d, 16, v%d' % (192 + i, src))
        else:
            E('v_and_b32 v%d, 0xffff0000, v%d' % (192 + i, src))
    E('s_waitcnt lgkmcnt(0)')
    for r in range(16):
        E('v_add_f32 v%d, v%d, v%d' % (ACC + r, ACC + r, ACC + 16 + r))
        E('v_add_f32 v%d, v%d, v%d' % (ACC + 32 + r, ACC + 32 + r, ACC + 48 + r))
    for r in range(16):
        E('v_add_f32 v%d, v%d, v%d' % (ACC + r, ACC + r, ACC + 32 + r))
    for i in range(16):
        E('v_fma_f32 v%d, v%d, v%d, v%d' % (ACC + i, ACC + i, 168 + i, 192 + i))
    for p in range(8):
        E('v_cvt_pk_bf16_f32 v%d, v%d, v%d' % (184 + p, ACC + 2 * p, ACC + 2 * p + 1))
    if which == 2:
        E('s_lshr_b32 s58, s%d, 4\ns_add_u32 s58, s58, s3\ns_lshl_b32 s58, s58, 14' % S_R0)
        E('s_lshl_b32 s59, s%d, 5\ns_add_u32 s58, s58, s59\ns_add_u32 s58, s58, %d' % (S_C0, OFF_X1))
        E('buffer_store_dwordx4 v[184:187], v4, %s, s58 offen sc1' % srd('WS'))
        E('buffer_store_dwordx4 v[188:191], v4, %s, s58 offen offset:1024 sc1' % srd('WS'))
        for r in range(8):
            E('v_accvgpr_write_b32 a%d, v%d' % (200 + r, 184 + r))
        for p in range(8):
            E('v_lshlrev_b32 v%d, 16, v%d' % (ACC + 2 * p, 184 + p))
            E('v_and_b32 v%d, 0xffff0000, v%d' % (ACC + 2 * p + 1, 184 + p))
        for step in (8, 4, 2, 1):
            for i in range(step):
                E('v_add_f32 v%d, v%d, v%d' % (96 + i, (ACC if step == 8 else 96) + i, (ACC if step == 8 else 96) + i + step))
        E('v_mov_b32 v26, v96')
        allreduce_lg('v_add_f32', 26, 28)
        E('v_mul_f32 v26, %s, v26' % f32(1.0 / 64))
        for i in range(16):
            E('v_sub_f32 v%d, v%d, v26' % (ACC + i, ACC + i))
        for i in range(4):
            E('v_mul_f32 v%d, v%d, v%d' % (96 + i, ACC + i, ACC + i))
        for i in range(4, 16):
            E('v_fmac_f32 v%d, v%d, v%d' % (96 + (i & 3), ACC + i, ACC + i))
        E('v_add_f32 v96, v96, v97\nv_add_f32 v98, v98, v99\nv_add_f32 v27, v96, v98')
        allreduce_lg('v_add_f32', 27, 28)
        E('v_lshlrev_b32 v28, 3, v20')
        E('s_lshl_b32 s60, s%d, 14\ns_add_u32 s60, s60, %d' % (S_J7, OFF_ST))
        E('s_mov_b64 exec, 0xffff')
        E('buffer_store_dwordx2 v[26:27], v28, %s, s60 offen sc1' % srd('WS'))
        E('s_mov_b64 exec, -1')
    else:
        E('s_lshl_b32 s59, s%d, 1' % S_C0)
        E('buffer_store_dwordx4 v[184:187], v21, %s, s59 offen' % srd('OUT'))
        E('buffer_store_dwordx4 v[188:191], v21, %s, s59 offen offset:64' % srd('OUT'))
    stamp(st0 + 2)


A3_PRE = 6


def phase3():
    stamp(9)
    vm.reset()
    E('s_lshl_b32 s81, s%d, 14\ns_add_u32 s81, s81, %d' % (S_ROW, OFF_X1))
    E('s_lshl_b32 s7, s%d, 7\ns_add_u32 s57, s7, %d' % (S_ROW, OFF_ST))
    E('v_lshlrev_b32 v9, 3, v2')

    def a_grp(i):
        out = ['s_add_u32 s7, s5, %d' % i, 's_and_b32 s7, s7, 15', 's_lshl_b32 s7, s7, 10', 's_add_u32 s7, s7, s81']
        for b in range(2):
            r = i * 8 + b * 4
            out.append('buffer_load_dwordx4 a[%d:%d], v%d, %s, s7 offen sc1' % (r, r + 3, 4 if b == 0 else 15, srd('WS')))
        return out
    for i in range(2):
        vm.grp(a_grp(i), ('a', i))
    for b in range(2):
        for t in range(8):
            E('s_add_u32 s58, s57, %d' % (t * 16384))
            vm.op('buffer_load_dwordx2 v[%d:%d], v9, %s, s58 offen offset:%d sc1' % (192 + b * 16 + 2 * t, 193 + b * 16 + 2 * t, srd('WS'), b * 128), ('st', 0))
    for i in range(2, A3_PRE):
        vm.grp(a_grp(i), ('a', i))
    E('v_add_u32 v16, 0x10000, v4')
    E('v_add_u32 v17, 0x20000, v4')
    E('v_lshlrev_b32 v18, 5, v3')
    E('v_add_u32 v18, %d, v18' % L_UT)
    E('s_mul_i32 s54, s%d, %d\ns_lshl_b32 s55, s%d, 10\ns_add_u32 s54, s54, s55\ns_add_u32 s54, s54, %d' % (S_ROW, 43 * 1024, S_PS, OFF_HH))
    E('s_mov_b32 s55, %s' % f32(-LOG2E))
    splitk_setup(4)
    E('s_waitcnt vmcnt(%d)' % vm.n_after([('a', 0)]))
    E('s_barrier')

    def stats_ops():
        ops = []
        for b in range(2):
            B = 192 + b * 16
            mean, rs, t1, t2 = 10 + 2 * b, 11 + 2 * b, 14, 19
            ops.append('v_add_f32 v%d, v%d, v%d' % (mean, B, B + 2))
            for t in range(2, 8):
                ops.append('v_add_f32 v%d, v%d, v%d' % (mean, mean, B + 2 * t))
            ops.append('v_mul_f32 v%d, %s, v%d' % (mean, f32(0.125), mean))
            ops.append('v_add_f32 v%d, v%d, v%d' % (rs, B + 1, B + 3))
            for t in range(2, 8):
                ops.append('v_add_f32 v%d, v%d, v%d' % (rs, rs, B + 2 * t + 1))
            ops.append('v_mov_b32 v19, 0')
            for t in range(8):
                ops.append('v_sub_f32 v14, v%d, v%d' % (B + 2 * t, mean))
                ops.append('v_fmac_f32 v19, v14, v14')
            ops.append('v_mov_b32 v14, %s' % f32(64.0))
            ops.append('v_fmac_f32 v%d, v19, v14' % rs)
            ops.append('v_mul_f32 v%d, %s, v%d' % (rs, f32(1.0 / 512), rs))

            def rnd(x):
                ops.append('v_cvt_pk_bf16_f32 v%d, v%d, v%d' % (x, x, x))
                ops.append('v_and_b32 v%d, 0xffff0000, v%d' % (x, x))
            rnd(mean); rnd(rs)
            ops.append('v_add_f32 v%d, %s, v%d' % (rs, f32(1e-5), rs))
            rnd(rs)
            ops.append('v_sqrt_f32 v%d, v%d' % (rs, rs))
            rnd(rs)
            ops.append('v_rcp_f32 v%d, v%d' % (rs, rs))
        return ops

    def bread(u):
        out = []
        for q in range(4):
            d = 128 + (u % 3) * 16 + q * 4
            off = p3_addr(u) + q * 1024
            out.append('ds_read_b128 v[%d:%d], v%d offset:%d' % (d, d + 3, (4, 16, 17)[off >> 16], off & 0xffff))
        return out

    def utread(p):
        ops = []
        for m in range(2):
            for ut in range(2):
                d = 176 + (m * 2 + ut) * 8
                off = (m * 2 + ut) * 384 + p * 128
                ops.append('ds_read_b128 v[%d:%d], v18 offset:%d' % (d, d + 3, off))
                ops.append('ds_read_b128 v[%d:%d], v18 offset:%d' % (d + 4, d + 7, off + 16))
        return ops

    def epilogue(p):
        ops = []
        A0 = 64 + (p & 1) * 32
        for b in range(2):
            mean, rs = 10 + 2 * b, 11 + 2 * b
            T = 208 + b * 8
            regs = []
            for e in range(8):
                ct, r = e >> 2, e & 3
                regs.append((A0 + (b * 4 + 0 + ct) * 4 + r, A0 + (b * 4 + 2 + ct) * 4 + r))
            for e, (ga, ua) in enumerate(regs):
                ops.append('v_fma_f32 v%d, -v%d, v%d, v%d' % (ga, mean, 176 + e, ga))
                ops.append('v_fma_f32 v%d, -v%d, v%d, v%d' % (ua, mean, 192 + e, ua))
            for e, (ga, ua) in enumerate(regs):
                ops.append('v_fma_f32 v%d, v%d, v%d, v%d' % (ga, ga, rs, 184 + e))
                ops.append('v_fma_f32 v%d, v%d, v%d, v%d' % (ua, ua, rs, 200 + e))
            for e, (ga, ua) in enumerate(regs):
                ops.append('v_mul_f32 v%d, s55, v%d' % (T + e, ga))
            for e, (ga, ua) in enumerate(regs):
                ops.append('v_exp_f32 v%d, v%d' % (T + e, T + e))
                ops.append('v_mul_f32 v%d, v%d, v%d' % (ga, ga, ua))
            for e, (ga, ua) in enumerate(regs):
                ops.append('v_add_f32 v%d, 1.0, v%d' % (T + e, T + e))
            for e, (ga, ua) in enumerate(regs):
                ops.append('v_rcp_f32 v%d, v%d' % (T + e, T + e))
            for e, (ga, ua) in enumerate(regs):
                ops.append('v_mul_f32 v%d, v%d, v%d' % (T + e, T + e, ga))
            D = 224 + b * 4
            for q in range(4):
                ops.append('v_cvt_pk_bf16_f32 v%d, v%d, v%d' % (D + q, T + 2 * q, T + 2 * q + 1))
            ops.append('s_add_u32 s53, s54, %d' % (b * 43 * 1024 + p * 1024))
            ops.append('buffer_store_dwordx4 v[%d:%d], v4, %s, s53 offen sc1' % (D, D + 3, srd('WS')))
        return ops

    for o in bread(0) + bread(1):
        E(o)
    pend = []
    bgq = []
    for p in range(3):
        A0 = 64 + (p & 1) * 32
        for ks in range(16):
            u = p * 16 + ks
            if ks == 0 and p >= 1:
                E('s_waitcnt lgkmcnt(0)')
                if p == 2:
                    E('s_waitcnt vmcnt(%d)' % vm.n_after([('b3', 0)]))
                E('s_barrier')
                stamp(20 + p)
                if p == 1:
                    bgq = [(p3_b_grp(uu), ('b3', 0)) for uu in range(36, 48)] + [(g_, ('b4', 0)) for g_ in splitk_b_grps(4, 0)]
                else:
                    bgq = [(g_, ('b4', pos)) for pos in range(1, 5) for g_ in splitk_b_grps(4, pos)]
                for o in utread(p - 1):
                    E(o)
                E('s_waitcnt lgkmcnt(0)')
                pend = epilogue(p - 1)
            if p == 0 and ks == 4:
                E('s_waitcnt vmcnt(%d)' % vm.n_after([('st', 0)]))
                pend = stats_ops()
            lds = bread(u + 2) if u + 2 < 48 else []
            nl = 4 if u + 1 < 48 else 0
            if p == 0:
                E('s_waitcnt vmcnt(%d) lgkmcnt(%d)' % (vm.n_after([('a', ks)]), nl))
            else:
                E('s_waitcnt lgkmcnt(%d)' % nl)
            grp = []
            if p == 0 and ks + A3_PRE < 16:
                grp.append((a_grp(ks + A3_PRE), ('a', ks + A3_PRE)))
            elif bgq:
                grp.append(bgq.pop(0))
            i = 0
            for q in range(4):
                for b in range(2):
                    acc = A0 + (b * 4 + q) * 4
                    bf = 128 + (u % 3) * 16 + q * 4
                    af = ks * 8 + b * 4
                    c = '0' if ks == 0 else 'v[%d:%d]' % (acc, acc + 3)
                    E('v_mfma_f32_16x16x32_bf16 v[%d:%d], v[%d:%d], a[%d:%d], %s' % (acc, acc + 3, bf, bf + 3, af, af + 3, c))
                    n = 2
                    if i < len(lds):
                        E(lds[i]); n = 1
                    if i == 5 and grp:
                        g_, tag = grp.pop(0)
                        vm.grp(g_, tag)
                        n = 0
                    i += 1
                    for _ in range(n):
                        if pend:
                            o = pend.pop(0)
                            if o.startswith('buffer_'):
                                vm.op(o, ('hs', 0))
                            else:
                                E(o)
        for o in pend:
            if o.startswith('buffer_'):
                vm.op(o, ('hs', 0))
            else:
                E(o)
        pend = []
        assert not bgq
    stamp(23)
    cstamp(32)
    for o in utread(2):
        E(o)
    E('s_waitcnt lgkmcnt(0)')
    for o in epilogue(2):
        E(o)
    stamp(10)
    cstamp(33)


def stop_here(n):
    if STOP == n:
        E('s_waitcnt vmcnt(0)')
        finish()
        return True
    return False


def poll_cw():
    E('v_mov_b32 v6, s%d' % S_CNTJ)
    E('s_lshl_b32 s6, s%d, 10' % S_J7)
    E('v_mov_b32 v5, s6')
    E('v_cmp_eq_u32 vcc, 1, v1')
    E('v_cndmask_b32 v6, v6, v5, vcc')
    E('v_add_u32 v5, 8192, v5')
    E('v_cmp_eq_u32 vcc, 2, v1')
    E('v_cndmask_b32 v6, v6, v5, vcc')
    E('v_add_u32 v6, %d, v6' % CW)
    poll_v6(7, 32)


def main():
    prologue()
    phase0()
    if stop_here(0):
        return
    phase1()
    if stop_here(1):
        return
    p3_setup()
    sync_window(CO,
                lambda: (poll_cw(), gather_ut()),
                lambda: (poll_cw(), gather_gagb(), p3_row_by_one_wave(1)),
                lambda: (poll_cw(), p3_row_by_one_wave(0)))
    splitk_phase(2, 4,
                 bg_loop=[p3_b_grp(u) for u in range(8, 20)],
                 bg_red=[p3_b_grp(u) for u in range(20, 24)])
    if stop_here(2):
        return
    sync_window(C1,
                lambda: p3_row_by_one_wave(6),
                lambda: p3_row_by_one_wave(7),
                lambda: p3_row_by_one_wave(8))
    phase3()
    if stop_here(3):
        return

    def own_b4():
        for pos in range(5, 9):
            for g_ in splitk_b_grps(4, pos):
                for l in g_:
                    E(l)
    sync_window(CH, own_b4, own_b4, own_b4)
    lsk = lab('Z')
    E('s_cmp_lg_u32 s3, 0')
    E('s_cbranch_scc1 ' + lsk)
    own_b4()
    E(lsk + ':')
    splitk_phase(4, 9)
    E('s_waitcnt vmcnt(0)')
    finish()


main()
hdr = ['; @launch grid=(256,1,1) block=(256,1,1) lds=%d' % LDS_TOTAL,
       '.amdgcn_target "amdgcn-amd-amdhsa--gfx950"', '.text']
tail = '''.section .rodata,"a"
.p2align 6
.amdhsa_kernel %s
  .amdhsa_next_free_vgpr 512
  .amdhsa_next_free_sgpr 102
  .amdhsa_accum_offset 256
  .amdhsa_group_segment_fixed_size 0
  .amdhsa_kernarg_size 96
  .amdhsa_user_sgpr_count 2
  .amdhsa_user_sgpr_kernarg_segment_ptr 1
  .amdhsa_system_sgpr_workgroup_id_x 1
.end_amdhsa_kernel''' % NAME
print('\n'.join(hdr) + '\n' + E.text() + 'L_codeend:\n' + tail)
sys.stderr.write('instructions: %d\n' % E.nins)
```

```python
import sys, os, struct
from emit import Emitter

STOP = int(os.environ.get('STOP', '99'))
STAMPS = int(os.environ.get('STAMPS', '0'))

OFF_CNT = 0x0000000
OFF_MODP = 0x0010000
OFF_XH = 0x0100000
OFF_O = 0x0400000
OFF_X1 = 0x0700000
OFF_ST = 0x0A00000
OFF_HH = 0x0B00000
OFF_WF = 0x1100000
OFF_UT = 0x1400000
OFF_WQ = 0x1500000
OFF_WOF = 0x1700000
OFF_W2F = 0x1800000
OFF_STAMP = 0x8000000
CO, C1, CH, CW = 128, 256, 384, 512

SRD = dict(X=8, WQKV=12, WO=16, W1=20, W3=24, W2=28, C=32, WMOD=36, OUT=40, WS=48)
PTR = dict(X=64, WQKV=66, WO=68, W1=72, W3=74, W2=76, C=78, WMOD=80, OUT=82, WS=86)
SIZE = dict(X=2048 * 512 * 2, WQKV=512 * 1536 * 2, WO=512 * 512 * 2, W1=512 * 1376 * 2, W3=512 * 1376 * 2,
            W2=1376 * 512 * 2, C=1024, WMOD=512 * 3072 * 2, OUT=2048 * 512 * 2, WS=0x10000000)
LOG2E = 1.4426950408889634
SPIN_MAX = 400000

ROWB = 16384
L_MISC = 147456
L_TAB = L_MISC
L_XCH = L_MISC + 4096
L_UT = L_MISC + 12544
L_GA = L_MISC + 14080
LDS_TOTAL = 163840
L_HP = 0
P2_ROW = [6, 7, 8, 1]
P3_ROW = [2, 3, 4, 5, 0, 1, 6, 7, 8, 2, 3, 4]
P4_ROW = [5, 0, 1, 6, 7, 8, 2, 3, 4, 5, 0]
RED_ROW = 6

S_PS = 65
S_R0 = 66
S_C0 = 67
S_CNTG = 68
S_ROW = 69
S_QB = 70
S_J7 = 71
S_CNTJ = 64
S_W1K = 76
S_ROT = 12


def srd(n):
    return 's[%d:%d]' % (SRD[n], SRD[n] + 3)


def f32(x):
    return '0x%08x' % struct.unpack('<I', struct.pack('<f', x))[0]


E = Emitter()
_lab = [0]


def lab(p='L'):
    _lab[0] += 1
    return '%s_%d' % (p, _lab[0])


def stamp(slot, cyc=False):
    if not STAMPS:
        return
    E('s_memtime s[92:93]' if cyc else 's_memrealtime s[92:93]')
    E('s_waitcnt lgkmcnt(0)')
    E('v_mov_b32 v5, s92')
    E('v_accvgpr_write_b32 a%d, v5' % (216 + slot))


def finish():
    if STAMPS:
        E('s_lshl_b32 s92, s2, 2\ns_add_u32 s92, s92, s3\ns_lshl_b32 s92, s92, 8\ns_add_u32 s92, s92, %d' % OFF_STAMP)
        E('v_mov_b32 v5, s92')
        E('s_mov_b64 exec, 1')
        for i in range(40):
            E('buffer_store_dword a%d, v5, %s, 0 offen offset:%d' % (216 + i, srd('WS'), 4 * i))
        E('s_waitcnt vmcnt(0)')
    E('s_endpgm')


class VM:
    def __init__(self):
        self.seq = []

    def reset(self):
        self.seq = []

    def op(self, text, tag=None):
        E(text)
        self.seq.append(tag)

    def grp(self, lines, tag=None):
        for l in lines:
            if l.startswith('buffer_'):
                self.op(l, tag)
            else:
                E(l)

    def n_after(self, tags):
        idx = max([i for i, t in enumerate(self.seq) if t in tags] + [-1])
        return min(63, len(self.seq) - 1 - idx)


vm = VM()


def allreduce_lg(op, v, tmp):
    E('v_mov_b32 v%d, v%d' % (tmp, v))
    E('v_permlane32_swap_b32 v%d, v%d' % (v, tmp))
    E('%s v%d, v%d, v%d' % (op, v, v, tmp))
    E('v_mov_b32 v%d, v%d' % (tmp, v))
    E('v_permlane16_swap_b32 v%d, v%d' % (v, tmp))
    E('%s v%d, v%d, v%d' % (op, v, v, tmp))


def round_bf16(dst, src):
    E('v_cvt_pk_bf16_f32 v%d, v%d, v%d' % (dst, src, src))
    E('v_and_b32 v%d, 0xffff0000, v%d' % (dst, dst))


def arrive(soff_reg, extra):
    E('s_mov_b64 exec, 1')
    E('v_mov_b32 v5, 1')
    E('v_mov_b32 v6, %d' % extra)
    E('buffer_atomic_add v5, v6, %s, s%d offen' % (srd('WS'), soff_reg))
    E('s_mov_b64 exec, -1')


def poll_ge(soff_reg, extra, target):
    l0, l1 = lab('P'), lab('P')
    E('s_mov_b64 exec, 1')
    E('v_mov_b32 v6, %d' % extra)
    E('s_mov_b32 s90, 0')
    E(l0 + ':')
    E('buffer_load_dword v5, v6, %s, s%d offen sc1' % (srd('WS'), soff_reg))
    E('s_add_u32 s90, s90, 1')
    E('s_cmp_gt_u32 s90, %d' % SPIN_MAX)
    E('s_cbranch_scc1 ' + l1)
    E('s_waitcnt vmcnt(0)')
    E('v_cmp_gt_u32 vcc, %d, v5' % target)
    E('s_cbranch_vccnz ' + l0)
    E(l1 + ':')
    E('s_mov_b64 exec, -1')


def reduce8(A):
    for sh in (4, 8):
        for e in range(8):
            E('v_add_f32_dpp v%d, v%d, v%d row_ror:%d row_mask:0xf bank_mask:0xf' % (A + e, A + e, A + e, sh))
    for e in range(4):
        E('v_permlane32_swap_b32 v%d, v%d' % (A + e, A + 4 + e))
    for e in range(4):
        E('v_add_f32 v%d, v%d, v%d' % (A + e, A + e, A + 4 + e))
    for e in range(2):
        E('v_permlane16_swap_b32 v%d, v%d' % (A + e, A + 2 + e))
    for e in range(2):
        E('v_add_f32 v%d, v%d, v%d' % (A + e, A + e, A + 2 + e))


def dot_rows(A, W, SC):
    for p in range(4):
        E('v_dot2_f32_bf16 v%d, v%d, v%d, v%d' % (A + 2 * p, W + p, SC, A + 2 * p))
        E('v_dot2_f32_bf16 v%d, v%d, v%d, v%d' % (A + 2 * p + 1, W + p, SC + 1, A + 2 * p + 1))


def prologue(name, nwg, bufs):
    E.raw('.globl %s\n.p2align 8\n.type %s,@function\n%s:' % (name, name, name))
    E.hist = []
    E('s_cmp_lt_u32 s2, %d' % nwg)
    E('s_cbranch_scc1 L_go_%s' % name)
    E('s_endpgm')
    E('L_go_%s:' % name)
    E('s_load_dwordx16 s[64:79], s[0:1], 0')
    E('s_load_dwordx8 s[80:87], s[0:1], 64')
    E('v_and_b32 v1, 63, v0')
    E('v_and_b32 v2, 15, v0')
    E('v_bfe_u32 v3, v0, 4, 2')
    E('v_lshrrev_b32 v4, 6, v0')
    E('v_readfirstlane_b32 s3, v4')
    E('v_lshlrev_b32 v4, 4, v1')
    E('s_and_b32 s4, s2, 7\ns_lshl_b32 s4, s4, 1\ns_bfe_u32 s5, s2, 0x10003\ns_or_b32 s4, s4, s5\ns_lshr_b32 s5, s2, 4')
    E('s_waitcnt lgkmcnt(0)')
    for b in bufs:
        r = SRD[b]
        E('s_mov_b32 s%d, s%d\ns_and_b32 s%d, s%d, 0xffff\ns_mov_b32 s%d, 0x%x\ns_mov_b32 s%d, 0x20000' % (
            r, PTR[b], r + 1, PTR[b] + 1, r + 2, SIZE[b], r + 3))


def kernel0():
    prologue('k0_kernel', 256, list(SRD))
    if STAMPS:
        E('s_memrealtime s[94:95]')
    E('v_lshrrev_b32 v7, 2, v1')
    E('v_and_b32 v8, 3, v1')
    E('s_lshl_b32 s%d, s4, 10' % S_CNTG)
    lw23, lj = lab('W23'), lab('J')
    E('s_cmp_ge_u32 s3, 2')
    E('s_cbranch_scc1 ' + lw23)
    E('v_and_b32 v11, 7, v1')
    E('v_lshrrev_b32 v12, 3, v1')
    E('v_lshlrev_b32 v13, 10, v12')
    E('v_lshl_add_u32 v13, v11, 4, v13')
    E('v_lshlrev_b32 v14, 10, v11')
    E('v_lshl_add_u32 v14, v12, 4, v14')
    E('s_lshl_b32 s6, s4, 7\ns_lshl_b32 s7, s5, 3\ns_add_u32 s6, s6, s7\ns_lshl_b32 s54, s6, 10')
    E('s_lshl_b32 s7, s3, 9\ns_add_u32 s55, s54, s7')
    for i in range(8):
        E('buffer_load_dwordx4 v[%d:%d], v13, %s, s54 offen offset:%d' % (64 + 4 * i, 67 + 4 * i, srd('X'), i * 128))
    for i in range(4):
        E('buffer_load_dwordx4 v[%d:%d], v14, %s, s55 offen offset:%d' % (96 + 4 * i, 99 + 4 * i, srd('X'), i * 128))
    E('v_lshlrev_b32 v16, 7, v1')
    E('v_mov_b32 v19, 0')
    E('s_lshl_b32 s6, s3, 4\ns_or_b32 s6, s6, s5')
    E('s_cmp_eq_u32 s6, 0')
    E('s_cselect_b32 s58, s%d, 0x7f000000' % S_CNTG)
    E('s_mov_b64 exec, 0xff')
    E('buffer_store_dword v19, v16, %s, s58 offen' % srd('WS'))
    E('s_mov_b64 exec, 1')
    for q in range(3):
        E('buffer_load_dword v%d, v4, %s, 0 offen' % (60 + q, srd('C')))
    E('s_mov_b64 exec, -1')
    E('s_branch ' + lj)
    E(lw23 + ':')
    E('s_movk_i32 s6, 6144')
    E('v_mul_lo_u32 v9, v7, s6')
    E('v_lshl_add_u32 v9, v8, 4, v9')
    E('s_and_b32 s63, s2, 3')
    E('s_lshr_b32 s53, s2, 2\ns_lshl_b32 s53, s53, 1\ns_and_b32 s7, s3, 1\ns_add_u32 s53, s53, s7')
    E('v_lshlrev_b32 v10, 1, v7')
    E('s_lshl_b32 s6, s63, 8')
    for n in range(8):
        E('buffer_load_ushort v%d, v10, %s, s6 offen offset:%d' % (16 + n, srd('C'), n * 32))
    E('s_mul_i32 s58, s63, %d\ns_lshl_b32 s59, s53, 6\ns_add_u32 s58, s58, s59' % (128 * 6144))
    E('s_cmp_ge_u32 s2, 192')
    E('s_cselect_b32 s58, 0x7f000000, s58')
    for n in range(8):
        E('s_add_u32 s59, s58, %d' % (n * 16 * 6144))
        E('buffer_load_dwordx4 v[%d:%d], v9, %s, s59 offen' % (64 + 4 * n, 67 + 4 * n, srd('WMOD')))
    E(lj + ':')
    E('s_lshl_b32 s52, s2, 2\ns_add_u32 s52, s52, s3')
    E('s_lshl_b32 s%d, s3, 13' % S_QB)

    def tile_params(rnd):
        d0, d1, nat = 72 + 2 * rnd, 73 + 2 * rnd, 80 + rnd
        la, lb = lab('TA'), lab('TB')
        if rnd == 0:
            E('s_cmp_ge_u32 s52, 768')
            E('s_cbranch_scc1 ' + la)
            E('s_mov_b64 s[56:57], s[%d:%d]\ns_mov_b32 s58, 0x%x' % (SRD['WQKV'], SRD['WQKV'] + 1, SIZE['WQKV']))
            E('s_mul_i32 s6, s52, 1366\ns_lshr_b32 s6, s6, 16\ns_mul_i32 s7, s6, 48\ns_sub_u32 s7, s52, s7')
            E('s_mul_i32 s54, s6, %d\ns_lshl_b32 s60, s7, 6\ns_add_u32 s54, s54, s60\ns_movk_i32 s55, 3072' % (32 * 3072))
            E('s_and_b32 s60, s7, 15\ns_mul_i32 s60, s60, %d\ns_lshr_b32 s61, s7, 4\ns_lshl_b32 s61, s61, 15\ns_add_u32 s60, s60, s61' % (6 * 16384))
            E('s_lshl_b32 s6, s6, 10\ns_add_u32 s60, s60, s6\ns_add_u32 s%d, s60, %d\ns_add_u32 s%d, s%d, 16384' % (d0, OFF_WQ, d1, d0))
            E('s_mov_b32 s%d, 1' % nat)
            E('s_branch ' + lb)
            E(la + ':')
            E('s_mov_b64 s[56:57], s[%d:%d]\ns_mov_b32 s58, 0x%x' % (SRD['WO'], SRD['WO'] + 1, SIZE['WO']))
            E('s_sub_u32 s7, s52, 768\ns_lshr_b32 s6, s7, 4\ns_and_b32 s7, s7, 15')
            E('s_lshl_b32 s54, s6, 15\ns_lshl_b32 s60, s7, 6\ns_add_u32 s54, s54, s60\ns_movk_i32 s55, 1024')
            E('s_lshl_b32 s60, s7, 15\ns_lshl_b32 s6, s6, 10\ns_add_u32 s60, s60, s6\ns_add_u32 s%d, s60, %d\ns_add_u32 s%d, s%d, 16384' % (d0, OFF_WOF, d1, d0))
            E('s_mov_b32 s%d, 0' % nat)
        else:
            if rnd < 3:
                E('s_cmp_ge_u32 s52, 688')
                E('s_cbranch_scc1 ' + la)
                W = 'W1' if rnd == 1 else 'W3'
                E('s_mov_b64 s[56:57], s[%d:%d]\ns_mov_b32 s58, 0x%x' % (SRD[W], SRD[W] + 1, SIZE[W]))
                E('s_mul_i32 s6, s52, 1525\ns_lshr_b32 s6, s6, 16\ns_mul_i32 s7, s6, 43\ns_sub_u32 s7, s52, s7')
                E('s_mul_i32 s54, s6, %d\ns_lshl_b32 s60, s7, 6\ns_add_u32 s54, s54, s60\ns_movk_i32 s55, 2752' % (32 * 2752))
                E('s_lshl_b32 s60, s7, 16\ns_lshl_b32 s6, s6, 10\ns_add_u32 s60, s60, s6\ns_add_u32 s%d, s60, %d\ns_add_u32 s%d, s%d, 16384' % (
                    d0, OFF_WF + (rnd - 1) * 32768, d1, d0))
                E('s_branch ' + lb)
                E(la + ':')
                E('s_add_u32 s7, s52, %d' % ((rnd - 1) * 336 - 688))
            else:
                E('s_add_u32 s7, s52, 672')
            E('s_mov_b64 s[56:57], s[%d:%d]\ns_mov_b32 s58, 0x%x' % (SRD['W2'], SRD['W2'] + 1, SIZE['W2']))
            E('s_and_b32 s6, s7, 15\ns_lshr_b32 s7, s7, 4')
            E('s_lshl_b32 s54, s7, 15\ns_lshl_b32 s60, s6, 6\ns_add_u32 s54, s54, s60\ns_movk_i32 s55, 1024')
            E('s_mul_i32 s60, s6, %d\ns_lshl_b32 s61, s7, 10\ns_add_u32 s60, s60, s61\ns_add_u32 s%d, s60, %d\ns_add_u32 s%d, s%d, %d' % (
                2 * 43 * 1024, d0, OFF_W2F, d1, d0, 43 * 1024))
            E('s_cmp_ge_u32 s7, 43')
            E('s_cselect_b32 s%d, 0x7f000000, s%d\ns_cselect_b32 s%d, 0x7f000000, s%d' % (d0, d0, d1, d1))
            if rnd < 3:
                pass
        E(lb + ':')
        if rnd:
            E('s_mov_b32 s%d, 0' % nat)
        E('s_mov_b32 s59, 0x20000')
        E('v_mul_lo_u32 v44, v7, s55')
        E('v_lshl_add_u32 v44, v8, 4, v44')
        E('s_add_u32 m0, s%d, %d' % (S_QB, rnd * 2048))
        E('buffer_load_dwordx4 v44, s[56:59], s54 offen lds')
        E('s_lshl_b32 s55, s55, 4\ns_add_u32 s54, s54, s55')
        E('s_add_u32 m0, s%d, %d' % (S_QB, rnd * 2048 + 1024))
        E('buffer_load_dwordx4 v44, s[56:59], s54 offen lds')
    for rnd in range(4):
        tile_params(rnd)
    lw23, lj = lab('W23'), lab('J')
    E('s_cmp_ge_u32 s3, 2')
    E('s_cbranch_scc1 ' + lw23)
    E('v_lshlrev_b32 v48, 8, v12')
    E('v_lshl_add_u32 v48, v11, 4, v48')
    E('v_add_u32 v49, 4096, v48')
    E('s_lshl_b32 s6, s4, 3\ns_lshr_b32 s7, s5, 1\ns_add_u32 s6, s6, s7\ns_lshl_b32 s6, s6, 14')
    E('s_and_b32 s7, s5, 1\ns_lshl_b32 s7, s7, 7\ns_add_u32 s6, s6, s7')
    E('s_lshl_b32 s59, s3, 13\ns_add_u32 s6, s6, s59\ns_add_u32 s60, s6, %d' % OFF_XH)
    E('v_lshlrev_b32 v50, 5, v11')
    E('v_mov_b32 v20, 0\nv_mov_b32 v21, 0\nv_mov_b32 v22, 0x3f803f80\nv_mov_b32 v23, 0\nv_mov_b32 v24, 0')
    for i in range(8):
        E('s_waitcnt vmcnt(%d)' % (23 - i))
        for p in range(4):
            r = 64 + 4 * i + p
            E('v_dot2_f32_bf16 v%d, v%d, v22, v%d' % (20 + 3 * (p & 1), r, 20 + 3 * (p & 1)))
            E('v_dot2_f32_bf16 v%d, v%d, v%d, v%d' % (21 + 3 * (p & 1), r, r, 21 + 3 * (p & 1)))
    E('v_add_f32 v20, v20, v23\nv_add_f32 v21, v21, v24')
    for mod_ in ('quad_perm:[1,0,3,2]', 'quad_perm:[2,3,0,1]', 'row_half_mirror'):
        E('v_add_f32_dpp v20, v20, v20 %s row_mask:0xf bank_mask:0xf' % mod_)
        E('v_add_f32_dpp v21, v21, v21 %s row_mask:0xf bank_mask:0xf' % mod_)
    E('v_mul_f32 v20, %s, v20' % f32(1.0 / 512))
    E('v_mul_f32 v21, %s, v21' % f32(1.0 / 512))
    E('v_fma_f32 v21, -v20, v20, v21')
    E('v_max_f32 v21, 0, v21')
    round_bf16(20, 20)
    round_bf16(21, 21)
    E('v_add_f32 v21, %s, v21' % f32(1e-5))
    round_bf16(21, 21)
    E('v_sqrt_f32 v21, v21')
    round_bf16(21, 21)
    E('v_rcp_f32 v21, v21')
    E('ds_bpermute_b32 v20, v50, v20')
    E('ds_bpermute_b32 v21, v50, v21')
    E('s_waitcnt vmcnt(12) lgkmcnt(0)')
    for i in range(4):
        for p in range(4):
            src = 96 + 4 * i + p
            E('v_lshlrev_b32 v%d, 16, v%d' % (24 + 2 * p, src))
            E('v_and_b32 v%d, 0xffff0000, v%d' % (25 + 2 * p, src))
        for e in range(8):
            E('v_sub_f32 v%d, v%d, v20' % (24 + e, 24 + e))
        for p in range(4):
            E('v_cvt_pk_bf16_f32 v%d, v%d, v%d' % (32 + p, 24 + 2 * p, 25 + 2 * p))
        for p in range(4):
            E('v_lshlrev_b32 v%d, 16, v%d' % (24 + 2 * p, 32 + p))
            E('v_and_b32 v%d, 0xffff0000, v%d' % (25 + 2 * p, 32 + p))
        for e in range(8):
            E('v_mul_f32 v%d, v%d, v21' % (24 + e, 24 + e))
        for p in range(4):
            E('v_cvt_pk_bf16_f32 v%d, v%d, v%d' % (112 + 4 * i + p, 24 + 2 * p, 25 + 2 * p))
        E('buffer_store_dwordx4 v[%d:%d], v%d, %s, s60 offen offset:%d %s' % (
            112 + 4 * i, 115 + 4 * i, 48 + (i >> 1), srd('WS'), (i & 1) * 2048, os.environ.get('K0ST', '')))
    E('s_waitcnt vmcnt(4)')
    E('s_branch ' + lj)
    E(lw23 + ':')
    E('s_waitcnt vmcnt(16)')
    for n in range(8):
        E('v_lshlrev_b32 v%d, 16, v%d' % (16 + n, 16 + n))
    for n in range(8):
        E('v_mul_f32 v%d, %s, v%d' % (24 + n, f32(-LOG2E), 16 + n))
    for n in range(8):
        E('v_exp_f32 v%d, v%d' % (24 + n, 24 + n))
    for n in range(8):
        E('v_add_f32 v%d, 1.0, v%d' % (24 + n, 24 + n))
    for n in range(8):
        E('v_rcp_f32 v%d, v%d' % (24 + n, 24 + n))
    for n in range(8):
        E('v_mul_f32 v%d, v%d, v%d' % (16 + n, 16 + n, 24 + n))
    for n in range(8):
        E('v_cvt_pk_bf16_f32 v%d, v%d, v%d' % (16 + n, 16 + n, 16 + n))
    for n in range(8):
        E('v_and_b32 v%d, 0xffff, v%d' % (100 + 2 * n, 16 + n))
        E('v_and_b32 v%d, 0xffff0000, v%d' % (101 + 2 * n, 16 + n))
    for e in range(8):
        E('v_mov_b32 v%d, 0' % (50 + e))
    for n in range(8):
        E('s_waitcnt vmcnt(%d)' % (15 - n))
        dot_rows(50, 64 + 4 * n, 100 + 2 * n)
    reduce8(50)
    E('v_lshlrev_b32 v28, 5, v8')
    E('v_lshl_add_u32 v28, v3, 3, v28')
    E('s_mul_i32 s58, s63, 12288\ns_lshl_b32 s59, s53, 7\ns_add_u32 s58, s58, s59\ns_add_u32 s58, s58, %d' % OFF_MODP)
    E('s_cmp_ge_u32 s2, 192')
    E('s_cselect_b32 s58, 0x7f000000, s58')
    E('v_cmp_gt_u32 vcc, 4, v2')
    E('s_mov_b64 exec, vcc')
    E('buffer_store_dwordx2 v[50:51], v28, %s, s58 offen' % srd('WS'))
    E('s_mov_b64 exec, -1')
    E('s_waitcnt vmcnt(1)')
    E(lj + ':')
    E('v_lshrrev_b32 v30, 2, v2')
    E('v_lshl_add_u32 v30, v3, 3, v30')
    E('v_lshlrev_b32 v30, 6, v30')
    E('v_add_u32 v30, s%d, v30' % S_QB)
    E('v_and_b32 v31, 3, v2')
    E('v_lshl_add_u32 v32, v31, 4, v30')
    E('v_lshl_add_u32 v33, v31, 3, v30')
    E('s_cmp_eq_u32 s80, 1')
    E('s_cselect_b32 s6, 32, 8')
    E('s_cselect_b64 vcc, -1, 0')
    E('v_cndmask_b32 v34, v32, v33, vcc')
    E('v_add_u32 v35, s6, v34')
    for rnd in range(4):
        for ct in range(2):
            T = 64 + (rnd * 2 + ct) * 4
            if rnd == 0:
                base, off = 34 + ct, 0
            else:
                base, off = 32, rnd * 2048 + ct * 8
            E('ds_read_b64_tr_b16 v[%d:%d], v%d offset:%d' % (T, T + 1, base, off))
            E('ds_read_b64_tr_b16 v[%d:%d], v%d offset:%d' % (T + 2, T + 3, base, off + 256))
        if rnd == 1:
            E('s_waitcnt lgkmcnt(0)')
    E('s_waitcnt lgkmcnt(0)')
    for rnd in range(4):
        for ct in range(2):
            T = 64 + (rnd * 2 + ct) * 4
            E('buffer_store_dwordx4 v[%d:%d], v4, %s, s%d offen %s' % (T, T + 3, srd('WS'), 72 + 2 * rnd + ct, os.environ.get('K0ST', '')))
    if STAMPS:
        E('s_memrealtime s[96:97]')
        E('s_waitcnt vmcnt(0)')
        E('s_memrealtime s[98:99]')
        E('s_waitcnt lgkmcnt(0)')
        E('s_lshl_b32 s92, s2, 2\ns_add_u32 s92, s92, s3\ns_lshl_b32 s92, s92, 8\ns_add_u32 s92, s92, %d' % (OFF_STAMP + 160))
        E('v_mov_b32 v5, s92\nv_mov_b32 v6, s94\nv_mov_b32 v7, s96\nv_mov_b32 v8, s98')
        E('s_mov_b64 exec, 1')
        E('buffer_store_dword v6, v5, %s, 0 offen' % srd('WS'))
        E('buffer_store_dword v7, v5, %s, 0 offen offset:4' % srd('WS'))
        E('buffer_store_dword v8, v5, %s, 0 offen offset:8' % srd('WS'))
    E('s_endpgm')


def k1_prologue():
    prologue('k1_kernel', 256, ['X', 'OUT', 'WS'])
    E('s_mul_i32 s%d, s5, 0x5556\ns_lshr_b32 s%d, s%d, 13' % (S_PS, S_PS, S_PS))
    E('s_lshl_b32 s6, s4, 7\ns_lshr_b32 s7, s5, 3\ns_lshl_b32 s7, s7, 6\ns_add_u32 s%d, s6, s7' % S_R0)
    E('s_and_b32 s%d, s5, 7\ns_lshl_b32 s%d, s%d, 6' % (S_J7, S_C0, S_J7))
    E('s_lshl_b32 s%d, s4, 10' % S_CNTG)
    E('s_lshl_b32 s%d, s5, 10' % S_CNTJ)
    E('s_lshl_b32 s6, s4, 3\ns_lshl_b32 s7, s3, 1\ns_add_u32 s%d, s6, s7' % S_ROW)
    E('s_lshl_b32 s%d, s3, 12' % S_QB)
    E('s_lshl_b32 s%d, s3, 10' % S_W1K)
    E('s_lshl_b32 s%d, s5, 10' % S_ROT)
    for i in range(1, 16):
        E('s_add_u32 s%d, s%d, 1024\ns_and_b32 s%d, s%d, 0x3fff' % (S_ROT + i, S_ROT + i - 1, S_ROT + i, S_ROT + i))


def a1_grp(i):
    return ['buffer_load_dwordx4 v[%d:%d], v%d, %s, s%d offen' % (128 + i * 8 + b * 4, 131 + i * 8 + b * 4, 16 + b, srd('WS'), S_ROT + i) for b in range(2)]


def b1_grp(c, n):
    return ['s_add_u32 m0, s33, %d' % (c * 4 * 6144 + n * 1024),
            'buffer_load_dwordx4 v%d, %s, s%d offen lds' % (20 + n, srd('WS'), 28 + c)]


A1_PRE = 5

KPB, VPB, QPB = 16, 28, 40
def KP(hh, b): return KPB + hh * 6 + (b + 1) * 2
def VP(hh, b): return VPB + hh * 6 + (b + 1) * 2
def QP(hh, b): return QPB + hh * 4 + b * 2


def splitk_setup(which):
    NKS = 4 if which == 2 else 11
    KT = 16 if which == 2 else 43
    OFFW = OFF_WOF if which == 2 else OFF_W2F
    E('s_mul_i32 s6, s%d, %d\ns_add_u32 s6, s6, %d' % (S_J7, 4 * KT * 1024, OFFW))
    E('v_add_u32 v8, s6, v4')
    for q in range(1, 4):
        E('v_add_u32 v%d, %d, v8' % (8 + q, q * KT * 1024))
    if which == 2:
        E('s_and_b32 s80, s5, 3')
    else:
        E('s_mov_b32 s80, s%d' % S_J7)
    E('s_mul_i32 s81, s3, %d' % NKS)
    base = 52 if which == 2 else 52
    for pos in range(NKS):
        d = SKT + pos
        E('s_add_u32 s%d, s80, %d' % (d, pos))
        if which == 2:
            E('s_and_b32 s%d, s%d, 3' % (d, d))
        else:
            E('s_cmp_ge_u32 s%d, 11\ns_cselect_b32 s7, 11, 0\ns_sub_u32 s%d, s%d, s7' % (d, d, d))
        E('s_add_u32 s%d, s%d, s81\ns_lshl_b32 s%d, s%d, 10' % (d, d, d, d))


SKT = 52


def splitk_b_grps(which, pos):
    row = (P2_ROW if which == 2 else P4_ROW)[pos]
    grps = []
    for q in range(4):
        g_ = ['s_add_u32 m0, s%d, %d' % (S_QB, row * ROWB + q * 1024)]
        if which == 4:
            if q == 0:
                g_ += ['s_cmp_ge_u32 s%d, %d' % (SKT + pos, 43 * 1024), 's_cselect_b32 s63, 0x7f000000, s%d' % (SKT + pos)]
            g_.append('buffer_load_dwordx4 v%d, %s, s63 offen lds' % (8 + q, srd('WS')))
        else:
            g_.append('buffer_load_dwordx4 v%d, %s, s%d offen lds' % (8 + q, srd('WS'), SKT + pos))
        grps.append(g_)
    return grps


def p3_addr(u):
    return P3_ROW[u >> 2] * ROWB + (u & 3) * 4096


def p3_setup():
    E('s_lshl_b32 s6, s%d, 16\ns_lshl_b32 s7, s3, 14\ns_add_u32 s6, s6, s7\ns_add_u32 s6, s6, %d' % (S_PS, OFF_WF))
    E('v_add_u32 v12, s6, v4')
    E('v_add_u32 v13, 0x10000, v12')
    E('v_add_u32 v14, 0x20000, v12')


def p3_b_grp(u):
    return ['s_add_u32 m0, s%d, %d' % (S_W1K, p3_addr(u)),
            'buffer_load_dwordx4 v%d, %s, s%d offen lds' % (12 + (u >> 4), srd('WS'), S_ROT + (u & 15))]


def p3_units_w123(units):
    for n, u in enumerate(units):
        for l in p3_b_grp(u):
            E(l)
    E('s_lshl_b32 s6, s3, 14')
    E('v_subrev_u32 v5, s6, v%d' % (12 + (units[0] >> 4)))
    for w in range(1, 4):
        lsk = lab('H')
        E('s_cmp_lg_u32 s3, %d' % w)
        E('s_cbranch_scc1 ' + lsk)
        for u in units[w - 1::3]:
            assert (u >> 4) == (units[0] >> 4)
            E('s_mov_b32 m0, %d' % p3_addr(u))
            E('buffer_load_dwordx4 v5, %s, s%d offen lds' % (srd('WS'), S_ROT + (u & 15)))
        E(lsk + ':')


def phase1():
    vm.reset()
    stamp(0)
    E('s_lshl_b32 s6, s%d, 14\ns_add_u32 s6, s6, %d' % (S_ROW, OFF_XH))
    E('v_add_u32 v16, s6, v4')
    E('v_add_u32 v17, 0x4000, v16')
    E('s_mul_i32 s6, s5, %d\ns_add_u32 s6, s6, %d' % (6 * 16384, OFF_WQ))
    E('v_add_u32 v20, s6, v4')
    for t in range(1, 6):
        E('v_add_u32 v%d, %d, v20' % (20 + t, t * 16384))
    for c in range(4):
        E('s_add_u32 s%d, s%d, s%d\ns_add_u32 s%d, s%d, %d\ns_and_b32 s%d, s%d, 0x3fff' % (28 + c, S_ROT, S_W1K, 28 + c, 28 + c, c * 4096, 28 + c, 28 + c))
    E('s_mul_i32 s33, s3, 6144')
    lw, lw2 = lab('W'), lab('W')
    E('s_cmp_lg_u32 s3, 0')
    E('s_cbranch_scc1 ' + lw)
    E('v_lshlrev_b32 v28, 5, v1')
    for q in range(4):
        E('s_mov_b32 s6, %d' % (OFF_MODP + q * 12288))
        for h in range(4):
            r = 64 + (q * 4 + h) * 4
            E('buffer_load_dwordx4 v[%d:%d], v28, %s, s6 offen offset:%d' % (r, r + 3, srd('WS'), (h >> 1) * 2048 + (h & 1) * 16))
    E('s_branch ' + lw2)
    E(lw + ':')
    ut_loads()
    E(lw2 + ':')
    for n in range(6):
        vm.grp(b1_grp(0, n), ('b1', 0))
    for i in range(2):
        vm.grp(a1_grp(i), ('a', i))
    for n in range(6):
        vm.grp(b1_grp(1, n), ('b1', 1))
    for i in range(2, A1_PRE):
        vm.grp(a1_grp(i), ('a', i))
    E('s_lshl_b32 s6, s4, 17\ns_add_u32 s6, s6, %d' % (OFF_XH - 16384))
    E('s_cmp_eq_u32 s4, 0')
    E('s_cselect_b32 s6, 0x7f000000, s6')
    E('v_add_u32 v18, s6, v4')
    E('v_mov_b32 v32, %s' % f32(-1e30))
    E('s_or_b32 s6, s4, s3')
    E('s_cmp_eq_u32 s6, 0')
    E('s_cselect_b32 s7, 64, 0')
    for r in range(4):
        E('v_lshl_add_u32 v33, v3, 2, %d' % r)
        E('v_sub_u32 v33, v2, v33')
        E('v_and_b32 v34, 0x80000001, v33')
        E('v_cmp_eq_u32 vcc, 0, v34')
        E('v_cndmask_b32 v35, v32, 0, vcc')
        E('v_accvgpr_write_b32 a%d, v35' % (96 + r))
        E('v_add_u32 v33, 16, v33')
        E('v_and_b32 v34, 1, v33')
        E('v_lshl_add_u32 v34, v34, 6, v33')
        E('v_cmp_gt_u32 vcc, 15, v34')
        E('v_cndmask_b32 v35, v32, 0, vcc')
        E('v_accvgpr_write_b32 a%d, v35' % (100 + r))
        E('v_add_u32 v34, s7, v34')
        E('v_cmp_gt_u32 vcc, 15, v34')
        E('v_cndmask_b32 v35, v32, 0, vcc')
        E('v_accvgpr_write_b32 a%d, v35' % (104 + r))
    splitk_setup(2)
    p3_setup()
    E('v_add_u32 v19, 0x10000, v4')
    E('v_lshlrev_b32 v26, 6, v3')
    E('v_add_u32 v26, %d, v26' % L_TAB)
    E('s_waitcnt vmcnt(%d)' % len(vm.seq))
    lw, lw2 = lab('W'), lab('W')
    E('s_cmp_lg_u32 s3, 0')
    E('s_cbranch_scc1 ' + lw)
    for r in range(16):
        E('v_add_f32 v%d, v%d, v%d' % (64 + r, 64 + r, 80 + r))
        E('v_add_f32 v%d, v%d, v%d' % (96 + r, 96 + r, 112 + r))
    for r in range(16):
        E('v_add_f32 v%d, v%d, v%d' % (64 + r, 64 + r, 96 + r))
    for r in range(16):
        round_bf16(64 + r, 64 + r)
    for e in range(8):
        E('v_add_f32 v%d, 1.0, v%d' % (72 + e, 72 + e))
        round_bf16(72 + e, 72 + e)
    E('s_lshl_b32 s6, s5, 2')
    E('v_subrev_u32 v28, s6, v1')
    E('v_and_b32 v28, 63, v28')
    E('v_lshlrev_b32 v28, 6, v28')
    E('v_add_u32 v28, %d, v28' % L_TAB)
    E('ds_write_b128 v28, v[72:75]\nds_write_b128 v28, v[76:79] offset:16\nds_write_b128 v28, v[64:67] offset:32\nds_write_b128 v28, v[68:71] offset:48')
    E('s_mov_b64 exec, 1')
    for q in range(4):
        E('buffer_load_dword a%d, v4, %s, 0 offen' % (110 + q, srd('WS')))
    E('s_mov_b64 exec, -1')
    E('s_branch ' + lw2)
    E(lw + ':')
    ut_compute()
    E(lw2 + ':')
    vm.seq += [('ut', 0)] * 4
    stamp(1)
    ACC = 64
    TB = (32, 232)

    def bread(pos, buf, ts=range(6), dyn=None):
        out = []
        for t in ts:
            off = pos * 6144 + t * 1024
            d = buf * 24 + t * 4
            if dyn is not None:
                out.append('ds_read_b128 a[%d:%d], v%d offset:%d' % (d, d + 3, dyn, off))
            else:
                out.append('ds_read_b128 a[%d:%d], v%d offset:%d' % (d, d + 3, 4 if off < 65536 else 19, off & 0xffff))
        return out

    def tread(ks, T, base=26):
        return ['ds_read_b128 v[%d:%d], v%d offset:%d' % (T + 4 * q, T + 4 * q + 3, base, ks * 256 + q * 16) for q in range(4)]

    def modulate(src, T, tmp):
        un, fm, cv = [], [], []
        for p in range(4):
            un.append('v_lshlrev_b32 v%d, 16, v%d' % (tmp + 2 * p, src + p))
            un.append('v_and_b32 v%d, 0xffff0000, v%d' % (tmp + 2 * p + 1, src + p))
        for e in range(8):
            fm.append('v_fma_f32 v%d, v%d, v%d, v%d' % (tmp + e, tmp + e, T + e, T + 8 + e))
        for p in range(4):
            cv.append('v_cvt_pk_bf16_f32 v%d, v%d, v%d' % (src + p, tmp + 2 * p, tmp + 2 * p + 1))
        return un, fm, cv

    def mm(acc, af, bf, seg, first):
        c = '0' if first else 'v[%d:%d]' % (acc, acc + 3)
        if seg < 2:
            return 'v_mfma_f32_16x16x32_bf16 v[%d:%d], a[%d:%d], v[%d:%d], %s' % (acc, acc + 3, bf, bf + 3, af, af + 3, c)
        return 'v_mfma_f32_16x16x32_bf16 v[%d:%d], v[%d:%d], a[%d:%d], %s' % (acc, acc + 3, af, af + 3, bf, bf + 3, c)

    def mod2(ks):
        u0, f0, c0 = modulate(128 + ks * 8, 32, 48)
        u1, f1, c1 = modulate(132 + ks * 8, 32, 56)
        return u0 + u1, f0 + f1, c0 + c1

    bg = {ks: [] for ks in range(16)}
    for i in range(A1_PRE, 16):
        bg[i - A1_PRE].append((a1_grp(i), ('a', i)))
    for n in range(6):
        bg[n // 2].append((b1_grp(2, n), ('b1', 2)))
        bg[4 + n // 2].append((b1_grp(3, n), ('b1', 3)))
    for q in range(4):
        bg[11 + q // 2].append((['buffer_load_dwordx4 a[%d:%d], v18, %s, s%d offen' % (48 + 4 * q, 51 + 4 * q, srd('WS'), 82 + q)], ('h', 0)))
    k = 0
    for pos in range(3):
        for g_ in splitk_b_grps(2, pos):
            bg[13 + k // 4].append((g_, ('b2', pos)))
            k += 1
    for q in range(4):
        E('s_lshl_b32 s6, s3, 12\ns_add_u32 s6, s6, s%d\ns_add_u32 s6, s6, %d\ns_and_b32 s%d, s6, 0x3fff' % (S_ROT, q * 1024, 82 + q))
    E('s_waitcnt vmcnt(%d) lgkmcnt(0)' % vm.n_after([('b1', 0), ('a', 0)]))
    E('s_barrier')
    stamp(3)
    stamp(30, True)
    for o in tread(0, 32) + bread(0, 0):
        E(o)
    E('s_waitcnt lgkmcnt(6)')
    u0_, m0_, c0_ = mod2(0)
    for o in u0_ + m0_ + tread(1, 32) + c0_:
        E(o)
    for ks in range(16):
        buf = ks & 1
        if ks in (3, 7, 11):
            E('s_waitcnt vmcnt(%d)' % vm.n_after([('b1', (ks + 1) // 4)] + ([('ut', 0)] if ks == 7 else [])))
            E('s_barrier')
            if ks == 7:
                E('s_mov_b64 exec, 1')
                E('v_mov_b32 v5, 1')
                E('v_mov_b32 v6, %d' % CW)
                vm.op('buffer_atomic_add v5, v6, %s, s%d offen' % (srd('WS'), S_CNTJ), ('cw', 0))
                E('s_mov_b64 exec, -1')
        if ks + 1 < 16:
            E('s_waitcnt vmcnt(%d) lgkmcnt(4)' % vm.n_after([('a', ks + 1)]))
            u_, m_, c_ = mod2(ks + 1)
            side = bread(ks + 1, buf ^ 1) + u_ + ['s_waitcnt lgkmcnt(6)'] + m_ + (tread(ks + 2, 32) if ks + 2 < 16 else []) + c_
        else:
            E('s_waitcnt lgkmcnt(0)')
            side = []
        mf = [mm(ACC + (b * 6 + t) * 4, 128 + ks * 8 + 4 * b, buf * 24 + t * 4, t // 2, ks == 0) for t in range(6) for b in range(2)]
        grp = list(bg[ks])
        n = len(side)
        for i, x_ in enumerate(mf):
            E(x_)
            lo, hi = (i * n) // 10, ((i + 1) * n) // 10
            for o in side[lo:hi] if i < 10 else []:
                E(o)
            if grp and i % 3 == 1:
                g_, tag = grp.pop(0)
                vm.grp(g_, tag)
        assert not grp
    stamp(19)
    stamp(31, True)
    E('s_mul_i32 s6, s3, %d' % (4 * 6144))
    E('v_add_u32 v27, s6, v4')
    E('s_lshl_b32 s6, s3, 10')
    E('v_add_u32 v28, s6, v26')
    for q in range(4):
        for o in tread(q, 128 + 16 * q, 28):
            E(o)
    for q in range(2):
        for o in bread(q, q, range(2, 6), 27):
            E(o)
    E('s_waitcnt vmcnt(%d)' % vm.n_after([('h', 0)]))
    for r in range(16):
        E('v_accvgpr_read_b32 v%d, a%d' % (192 + r, 48 + r))
    E('s_waitcnt lgkmcnt(8)')
    for q2 in range(2):
        u0, f0, c0 = modulate(192 + 8 * q2, 128 + 32 * q2, 48)
        u1, f1, c1 = modulate(196 + 8 * q2, 144 + 32 * q2, 56)
        for o in u0 + u1 + f0 + f1 + c0 + c1:
            E(o)
    E('s_waitcnt lgkmcnt(0)')
    for q in range(2):
        for t in range(2, 6):
            E(mm(112 + (t - 2) * 4, 192 + 4 * q, q * 24 + t * 4, t // 2, q == 0))
    for q in range(2, 4):
        for o in bread(q, q & 1, range(2, 6), 27):
            E(o)
    for b in range(2):
        for hh in range(2):
            for seg, fn in ((0, QP), (1, KP), (2, VP)):
                a = ACC + (b * 6 + seg * 2 + hh) * 4
                d = fn(hh, b)
                E('v_cvt_pk_bf16_f32 v%d, v%d, v%d' % (d, a, a + 1))
                E('v_cvt_pk_bf16_f32 v%d, v%d, v%d' % (d + 1, a + 2, a + 3))
    E('s_waitcnt lgkmcnt(0)')
    for q in range(2, 4):
        for t in range(2, 6):
            E(mm(112 + (t - 2) * 4, 192 + 4 * q, (q & 1) * 24 + t * 4, t // 2, False))
    E('v_lshlrev_b32 v52, 3, v1')
    E('s_lshl_b32 s6, s3, 11\ns_add_u32 s6, s6, %d' % L_XCH)
    E('v_add_u32 v53, s6, v52')
    E('s_add_u32 s6, s3, 1\ns_and_b32 s6, s6, 3\ns_lshl_b32 s6, s6, 11\ns_add_u32 s6, s6, %d' % L_XCH)
    E('v_add_u32 v55, s6, v52')
    E('ds_write_b64 v55, v[%d:%d]' % (KP(0, 1), KP(0, 1) + 1))
    E('ds_write_b64 v55, v[%d:%d] offset:512' % (KP(1, 1), KP(1, 1) + 1))
    E('ds_write_b64 v55, v[%d:%d] offset:1024' % (VP(0, 1), VP(0, 1) + 1))
    E('ds_write_b64 v55, v[%d:%d] offset:1536' % (VP(1, 1), VP(1, 1) + 1))
    for r in range(12):
        E('v_accvgpr_read_b32 v%d, a%d' % (64 + r, 96 + r))
    E('v_add_u32 v54, s%d, v4' % S_QB)
    E('s_barrier')
    stamp(4)
    for t in range(4):
        E('ds_write_b128 v54, v[%d:%d] offset:%d' % (112 + 4 * t, 115 + 4 * t, L_HP + 1024 * t))
    for g_ in splitk_b_grps(2, 3):
        vm.grp(g_, ('b2', 3))
    for u in range(0, 8):
        vm.grp(p3_b_grp(u), ('b3', 0))
    E('s_mov_b32 s6, %s' % f32(0.25 * LOG2E))
    E('v_and_b32 v77, 1, v3')
    E('v_lshlrev_b32 v77, 9, v77')
    E('v_lshrrev_b32 v78, 1, v3')
    E('v_lshl_add_u32 v77, v78, 8, v77')
    E('v_lshl_add_u32 v77, v2, 4, v77')
    E('s_lshl_b32 s34, s%d, 14\ns_lshl_b32 s35, s5, 10\ns_add_u32 s34, s34, s35\ns_add_u32 s34, s34, %d' % (S_ROW, OFF_O))
    E('s_add_u32 s35, s34, 16384')
    E('s_waitcnt lgkmcnt(0)')
    E('s_barrier')
    lw0, ljn = lab('A0'), lab('AJ')
    E('s_cmp_eq_u32 s3, 0')
    E('s_cbranch_scc1 ' + lw0)
    E('ds_read_b64 v[%d:%d], v53' % (KP(0, -1), KP(0, -1) + 1))
    E('ds_read_b64 v[%d:%d], v53 offset:512' % (KP(1, -1), KP(1, -1) + 1))
    E('ds_read_b64 v[%d:%d], v53 offset:1024' % (VP(0, -1), VP(0, -1) + 1))
    E('ds_read_b64 v[%d:%d], v53 offset:1536' % (VP(1, -1), VP(1, -1) + 1))
    E('s_waitcnt lgkmcnt(0)')
    E('s_branch ' + ljn)
    E(lw0 + ':')
    for w in range(1, 4):
        for t in range(4):
            E('ds_read_b128 v[%d:%d], v54 offset:%d' % (128 + 16 * w + 4 * t, 131 + 16 * w + 4 * t, L_HP + w * 4096 + t * 1024))
    E('s_waitcnt lgkmcnt(0)')
    for r in range(16):
        E('v_add_f32 v%d, v%d, v%d' % (112 + r, 112 + r, 144 + r))
        E('v_add_f32 v%d, v%d, v%d' % (160 + r, 160 + r, 176 + r))
    for r in range(16):
        E('v_add_f32 v%d, v%d, v%d' % (112 + r, 112 + r, 160 + r))
    for t, d in enumerate((KP(0, -1), KP(1, -1), VP(0, -1), VP(1, -1))):
        E('v_cvt_pk_bf16_f32 v%d, v%d, v%d' % (d, 112 + 4 * t, 113 + 4 * t))
        E('v_cvt_pk_bf16_f32 v%d, v%d, v%d' % (d + 1, 114 + 4 * t, 115 + 4 * t))
    E(ljn + ':')
    combos = [(b, hh) for b in (1, 0) for hh in range(2)]
    for c, (b, hh) in enumerate(combos):
        S = 128 + c * 8
        E('v_mfma_f32_16x16x16_bf16 v[%d:%d], v[%d:%d], v[%d:%d], 0' % (S, S + 3, KP(hh, b - 1), KP(hh, b - 1) + 1, QP(hh, b), QP(hh, b) + 1))
        E('v_mfma_f32_16x16x16_bf16 v[%d:%d], v[%d:%d], v[%d:%d], 0' % (S + 4, S + 7, KP(hh, b), KP(hh, b) + 1, QP(hh, b), QP(hh, b) + 1))

    def each(fn):
        for c, (b, hh) in enumerate(combos):
            fn(c, b, hh, 128 + c * 8, 160 + c * 2, 168 + c * 4)
    each(lambda c, b, hh, S, M, PB: [E('v_fma_f32 v%d, v%d, s6, v%d' % (S + r, S + r, ((72 + r if b == 0 else 68 + r) if r < 4 else 64 + r - 4))) for r in range(8)])
    each(lambda c, b, hh, S, M, PB: (E('v_max3_f32 v%d, v%d, v%d, v%d' % (M, S, S + 1, S + 2)), E('v_max3_f32 v%d, v%d, v%d, v%d' % (M + 1, S + 3, S + 4, S + 5))))
    each(lambda c, b, hh, S, M, PB: (E('v_max3_f32 v%d, v%d, v%d, v%d' % (M, M, S + 6, S + 7)), E('v_max_f32 v%d, v%d, v%d' % (M, M, M + 1))))
    for sw in ('v_permlane32_swap_b32', 'v_permlane16_swap_b32'):
        each(lambda c, b, hh, S, M, PB: E('v_mov_b32 v%d, v%d' % (M + 1, M)))
        each(lambda c, b, hh, S, M, PB: E('%s v%d, v%d' % (sw, M, M + 1)))
        each(lambda c, b, hh, S, M, PB: E('v_max_f32 v%d, v%d, v%d' % (M, M, M + 1)))
    each(lambda c, b, hh, S, M, PB: [E('v_sub_f32 v%d, v%d, v%d' % (S + r, S + r, M)) for r in range(8)])
    each(lambda c, b, hh, S, M, PB: [E('v_exp_f32 v%d, v%d' % (S + r, S + r)) for r in range(8)])
    each(lambda c, b, hh, S, M, PB: (E('v_add_f32 v%d, v%d, v%d' % (M, S, S + 1)), E('v_add_f32 v%d, v%d, v%d' % (M + 1, S + 2, S + 3)),
                                     E('v_add_f32 v%d, v%d, v%d' % (PB, S + 4, S + 5)), E('v_add_f32 v%d, v%d, v%d' % (PB + 1, S + 6, S + 7))))
    each(lambda c, b, hh, S, M, PB: (E('v_add_f32 v%d, v%d, v%d' % (M, M, M + 1)), E('v_add_f32 v%d, v%d, v%d' % (PB, PB, PB + 1))))
    each(lambda c, b, hh, S, M, PB: E('v_add_f32 v%d, v%d, v%d' % (M, M, PB)))
    for sw in ('v_permlane32_swap_b32', 'v_permlane16_swap_b32'):
        each(lambda c, b, hh, S, M, PB: E('v_mov_b32 v%d, v%d' % (M + 1, M)))
        each(lambda c, b, hh, S, M, PB: E('%s v%d, v%d' % (sw, M, M + 1)))
        each(lambda c, b, hh, S, M, PB: E('v_add_f32 v%d, v%d, v%d' % (M, M, M + 1)))
    each(lambda c, b, hh, S, M, PB: E('v_rcp_f32 v%d, v%d' % (M, M)))
    each(lambda c, b, hh, S, M, PB: [E('v_mul_f32 v%d, v%d, v%d' % (S + r, S + r, M)) for r in range(8)])
    each(lambda c, b, hh, S, M, PB: [E('v_cvt_pk_bf16_f32 v%d, v%d, v%d' % (PB + p, S + 2 * p, S + 2 * p + 1)) for p in range(4)])
    each(lambda c, b, hh, S, M, PB: E('v_mfma_f32_16x16x32_bf16 v[%d:%d], v[%d:%d], v[%d:%d], 0' % (184 + c * 4, 187 + c * 4, VP(hh, b - 1), VP(hh, b - 1) + 3, PB, PB + 3)))
    for i, b in enumerate((1, 0)):
        O = 184 + i * 8
        D = 200 + i * 4
        for q in range(4):
            E('v_cvt_pk_bf16_f32 v%d, v%d, v%d' % (D + q, O + 2 * q, O + 2 * q + 1))
    for i, b in enumerate((1, 0)):
        D = 200 + i * 4
        E('v_permlane16_swap_b32 v%d, v%d' % (D, D + 2))
        E('v_permlane16_swap_b32 v%d, v%d' % (D + 1, D + 3))
        E('buffer_store_dwordx4 v[%d:%d], v77, %s, s%d offen sc1' % (D, D + 3, srd('WS'), 34 + b))
    stamp(5)


def ut_loads():
    E('s_sub_u32 s63, s3, 1')
    E('s_add_u32 s6, s%d, s63\ns_lshl_b32 s6, s6, 16\ns_lshl_b32 s7, s4, 10\ns_add_u32 s6, s6, s7\ns_add_u32 s6, s6, %d' % (S_PS, OFF_WF))
    for blk in range(4):
        E('s_add_u32 s7, s6, %d' % (blk * 16384))
        E('buffer_load_dwordx4 v[%d:%d], v4, %s, s7 offen' % (112 + 4 * blk, 115 + 4 * blk, srd('WS')))
    E('v_lshlrev_b32 v28, 5, v3')
    E('s_lshl_b32 s35, s4, 7')
    for q in range(4):
        E('s_add_u32 s6, s35, %d' % (OFF_MODP + q * 12288 + 1536 * 4))
        for h in range(4):
            r = 192 + (q * 4 + h) * 4
            E('buffer_load_dwordx4 v[%d:%d], v28, %s, s6 offen offset:%d' % (r, r + 3, srd('WS'), (h >> 1) * 2048 + (h & 1) * 16))
    E('v_lshlrev_b32 v29, 4, v2')
    E('s_cmp_eq_u32 s3, 2')
    E('s_cselect_b32 s6, 5, 2')
    E('s_cmp_eq_u32 s3, 3')
    E('s_cselect_b32 s6, 4, s6')
    E('s_lshl_b32 s6, s6, 9')
    E('s_add_u32 s6, s6, s%d\ns_lshl_b32 s35, s6, 2' % S_C0)
    for q in range(4):
        E('s_add_u32 s6, s35, %d' % (OFF_MODP + q * 12288))
        E('buffer_load_dwordx4 v[%d:%d], v29, %s, s6 offen' % (64 + 4 * q, 67 + 4 * q, srd('WS')))


def ut_compute():
    E('v_and_b32 v31, 3, v2')
    E('v_lshrrev_b32 v30, 2, v2')
    E('v_lshl_add_u32 v30, v30, 3, v31')
    E('v_lshlrev_b32 v30, 2, v30')
    E('v_lshrrev_b32 v31, 1, v3')
    E('s_movk_i32 s7, 384')
    E('v_mul_lo_u32 v31, v31, s7')
    E('v_add_u32 v30, v30, v31')
    E('s_lshl_b32 s34, s5, 4\ns_add_u32 s34, s34, s4\ns_mul_i32 s34, s34, 1536\ns_lshl_b32 s6, s63, 7\ns_add_u32 s34, s34, s6\ns_add_u32 s34, s34, %d' % OFF_UT)
    for r in range(16):
        E('v_add_f32 v%d, v%d, v%d' % (192 + r, 192 + r, 208 + r))
        E('v_add_f32 v%d, v%d, v%d' % (224 + r, 224 + r, 240 + r))
    for r in range(16):
        E('v_add_f32 v%d, v%d, v%d' % (192 + r, 192 + r, 224 + r))
    for e in range(8):
        round_bf16(200 + e, 200 + e)
        E('v_add_f32 v%d, 1.0, v%d' % (200 + e, 200 + e))
    for p in range(4):
        E('v_cvt_pk_bf16_f32 v%d, v%d, v%d' % (208 + p, 192 + 2 * p, 193 + 2 * p))
        E('v_cvt_pk_bf16_f32 v%d, v%d, v%d' % (212 + p, 200 + 2 * p, 201 + 2 * p))
    for blk in range(4):
        E('v_mov_b32 v%d, 0\nv_mov_b32 v%d, 0' % (224 + 2 * blk, 225 + 2 * blk))
    for p in range(4):
        for blk in range(4):
            E('v_dot2_f32_bf16 v%d, v%d, v%d, v%d' % (224 + 2 * blk, 112 + 4 * blk + p, 212 + p, 224 + 2 * blk))
            E('v_dot2_f32_bf16 v%d, v%d, v%d, v%d' % (225 + 2 * blk, 112 + 4 * blk + p, 208 + p, 225 + 2 * blk))
    for blk in range(4):
        E('v_permlane32_swap_b32 v%d, v%d' % (224 + 2 * blk, 225 + 2 * blk))
    for blk in range(4):
        E('v_add_f32 v%d, v%d, v%d' % (224 + 2 * blk, 224 + 2 * blk, 225 + 2 * blk))
    for blk in range(4):
        E('v_mov_b32 v%d, v%d' % (225 + 2 * blk, 224 + 2 * blk))
    for blk in range(4):
        E('v_permlane16_swap_b32 v%d, v%d' % (224 + 2 * blk, 225 + 2 * blk))
    for blk in range(4):
        E('v_add_f32 v%d, v%d, v%d' % (224 + 2 * blk, 224 + 2 * blk, 225 + 2 * blk))
    for blk in range(4):
        m, ct = blk >> 1, blk & 1
        E('buffer_store_dword v%d, v30, %s, s34 offen offset:%d sc1' % (224 + 2 * blk, srd('WS'), m * 768 + ct * 16))
    E('s_cmp_eq_u32 s3, 3')
    E('s_cselect_b32 s6, 1.0, 0')
    for r in range(4):
        E('v_add_f32 v%d, v%d, v%d' % (64 + r, 64 + r, 68 + r))
        E('v_add_f32 v%d, v%d, v%d' % (72 + r, 72 + r, 76 + r))
        E('v_add_f32 v%d, v%d, v%d' % (64 + r, 64 + r, 72 + r))
        round_bf16(64 + r, 64 + r)
        E('v_add_f32 v%d, s6, v%d' % (64 + r, 64 + r))
        round_bf16(64 + r, 64 + r)
    E('s_lshl_b32 s6, s63, 8\ns_add_u32 s6, s6, %d' % L_GA)
    E('v_add_u32 v5, s6, v29')
    E('ds_write_b128 v5, v[64:67]')


def gather_ut(half):
    E('s_mul_i32 s34, s5, %d\ns_add_u32 s34, s34, %d' % (16 * 1536, OFF_UT + half * 1024))
    if half:
        E('s_mov_b32 exec_lo, -1\ns_mov_b32 exec_hi, 0')
    for kg in range(16):
        E('s_add_u32 s35, s34, %d' % (kg * 1536))
        E('buffer_load_dwordx4 v[%d:%d], v4, %s, s35 offen sc1' % (128 + 4 * kg, 131 + 4 * kg, srd('WS')))
    E('s_waitcnt vmcnt(0)')
    for step in (8, 4, 2, 1):
        for kg in range(step):
            for r in range(4):
                E('v_add_f32 v%d, v%d, v%d' % (128 + 4 * kg + r, 128 + 4 * kg + r, 128 + 4 * (kg + step) + r))
    E('v_add_u32 v5, %d, v4' % (L_UT + half * 1024))
    E('ds_write_b128 v5, v[128:131]')
    E('s_mov_b64 exec, -1')
    E('s_waitcnt lgkmcnt(0)')


def sync_window(cnt, common, jobs):
    E('s_waitcnt vmcnt(0)')
    E('s_barrier')
    lo, le = lab('SO'), lab('SE')
    E('s_cmp_lg_u32 s3, 0')
    E('s_cbranch_scc1 ' + lo)
    arrive(S_CNTG, cnt)
    poll_ge(S_CNTG, cnt, 16)
    E('s_branch ' + le)
    E(lo + ':')
    if common:
        common()
    for w in jobs:
        lsk = lab('SJ')
        E('s_cmp_lg_u32 s3, %d' % w)
        E('s_cbranch_scc1 ' + lsk)
        jobs[w]()
        E(lsk + ':')
    E(le + ':')
    E('s_barrier')


def splitk_phase(which, nb_pre, bg_loop=(), bg_red=()):
    NKS = 4 if which == 2 else 11
    KTOT = 16 if which == 2 else 43
    AOFF = OFF_O if which == 2 else OFF_HH
    ROW = P2_ROW if which == 2 else P4_ROW
    NRES = 4 if which == 2 else 9
    APRE = 3
    st0 = 6 if which == 2 else 11
    stamp(st0)
    vm.reset()
    E('s_lshr_b32 s6, s%d, 4' % S_R0)
    for d in range(4):
        E('s_add_u32 s7, s3, %d\ns_and_b32 s7, s7, 3\ns_add_u32 s7, s7, s6\ns_mul_i32 s7, s7, %d\ns_add_u32 s7, s7, %d' % (d, KTOT * 1024, AOFF))
        E('v_add_u32 v%d, s7, v4' % (20 + d))

    def a_grps(pos):
        grps = []
        for d in range(4):
            g_ = []
            so = SKT + pos
            if which == 4:
                if d == 0:
                    g_.append('s_min_u32 s35, s%d, %d' % (SKT + pos, 42 * 1024))
                so = 35
            r = (pos * 4 + d) * 4
            g_.append('buffer_load_dwordx4 a[%d:%d], v%d, %s, s%d offen sc1' % (r, r + 3, 20 + d, srd('WS'), so))
            grps.append(g_)
        return grps
    for pos in range(min(APRE, NKS)):
        for g_ in a_grps(pos):
            vm.grp(g_, ('a', pos))
    E('s_lshl_b32 s34, s3, 4\ns_add_u32 s34, s34, s%d' % S_R0)
    E('v_add_u32 v24, s34, v2')
    E('v_lshlrev_b32 v25, 10, v24')
    E('v_lshl_add_u32 v25, v3, 4, v25')
    E('v_add_u32 v16, s%d, v4' % S_QB)
    E('v_add_u32 v17, 0x10000, v16\nv_add_u32 v18, 0x20000, v16')
    ACC = 64
    BF = 128

    def bread(pos, buf):
        out = []
        for ct in range(4):
            off = ROW[pos] * ROWB + ct * 1024
            dreg = BF + buf * 16 + ct * 4
            out.append('ds_read_b128 v[%d:%d], v%d offset:%d' % (dreg, dreg + 3, 16 + (off >> 16), off & 0xffff))
        return out
    bgq = list(bg_loop)
    nb = nb_pre
    E('s_waitcnt vmcnt(%d)' % vm.n_after([('a', 0)]))
    for o in bread(0, 0):
        E(o)
    for pos in range(NKS):
        nxt = []
        if pos + 1 < NKS:
            E('s_waitcnt vmcnt(%d) lgkmcnt(0)' % vm.n_after([('a', pos), ('b', pos + 1)]))
            nxt = bread(pos + 1, (pos + 1) & 1)
        else:
            E('s_waitcnt vmcnt(%d) lgkmcnt(0)' % vm.n_after([('a', pos)]))
        grp = []
        if pos + APRE < NKS:
            grp += [(g_, ('a', pos + APRE)) for g_ in a_grps(pos + APRE)]
        if nb < NKS and nb - NRES <= pos:
            grp += [(g_, ('b', nb)) for g_ in splitk_b_grps(which, nb)]
            nb += 1
        if which == 2 and pos == 1:
            grp.append((['s_lshl_b32 s35, s%d, 1' % S_C0, 'buffer_load_dwordx4 v[160:163], v25, %s, s35 offen' % srd('X'),
                         'buffer_load_dwordx4 v[164:167], v25, %s, s35 offen offset:64' % srd('X')], ('x', 0)))
        while bgq and len(grp) < 8 and pos + APRE >= NKS:
            grp.append((bgq.pop(0), ('bg', 0)))
        i = 0
        for d in range(4):
            for ct in range(4):
                acc = ACC + (d * 4 + ct) * 4
                bf = BF + (pos & 1) * 16 + ct * 4
                af = (pos * 4 + d) * 4
                c = '0' if pos == 0 else 'v[%d:%d]' % (acc, acc + 3)
                E('v_mfma_f32_16x16x32_bf16 v[%d:%d], v[%d:%d], a[%d:%d], %s' % (acc, acc + 3, bf, bf + 3, af, af + 3, c))
                if i < len(nxt):
                    E(nxt[i])
                if grp and i % 2 == 1:
                    g_, tag = grp.pop(0)
                    vm.grp(g_, tag)
                i += 1
        assert not grp
    assert not bgq
    stamp(st0 + 1)
    for d in range(1, 4):
        E('s_add_u32 s7, s3, %d\ns_and_b32 s7, s7, 3\ns_lshl_b32 s7, s7, 12\ns_add_u32 s7, s7, %d' % (d, (RED_ROW + d - 1) * ROWB))
        E('v_add_u32 v%d, s7, v4' % (26 + d))
    E('v_lshlrev_b32 v22, 5, v3')
    E('v_add_u32 v22, %d, v22' % L_GA)
    go = 0 if which == 2 else 256
    for c in range(2):
        for hlf in range(2):
            E('ds_read_b128 v[%d:%d], v22 offset:%d' % (168 + c * 8 + hlf * 4, 171 + c * 8 + hlf * 4, go + c * 128 + hlf * 16))
    if which == 2:
        for c in range(2):
            for hlf in range(2):
                E('ds_read_b128 v[%d:%d], v22 offset:%d' % (208 + c * 8 + hlf * 4, 211 + c * 8 + hlf * 4, 512 + c * 128 + hlf * 16))
    E('s_barrier')
    for d in range(1, 4):
        for ct in range(4):
            acc = ACC + (d * 4 + ct) * 4
            E('ds_write_b128 v%d, v[%d:%d] offset:%d' % (26 + d, acc, acc + 3, ct * 1024))
    for g_ in bg_red:
        vm.grp(g_, ('bg', 0))
    if which == 4:
        for r in range(8):
            E('v_accvgpr_read_b32 v%d, a%d' % (160 + r, 200 + r))
    else:
        E('s_waitcnt vmcnt(%d)' % vm.n_after([('x', 0)]))
    for i in range(16):
        src = 160 + i // 2
        if i % 2 == 0:
            E('v_lshlrev_b32 v%d, 16, v%d' % (192 + i, src))
        else:
            E('v_and_b32 v%d, 0xffff0000, v%d' % (192 + i, src))
    E('v_add_u32 v26, %d, v16' % (RED_ROW * ROWB))
    E('s_waitcnt lgkmcnt(0)')
    E('s_barrier')
    for d in range(1, 4):
        for ct in range(4):
            acc = ACC + (d * 4 + ct) * 4
            E('ds_read_b128 v[%d:%d], v26 offset:%d' % (acc, acc + 3, (d - 1) * ROWB + ct * 1024))
    E('s_waitcnt lgkmcnt(8)')
    for r in range(16):
        E('v_add_f32 v%d, v%d, v%d' % (ACC + r, ACC + r, ACC + 16 + r))
    E('s_waitcnt lgkmcnt(0)')
    for r in range(16):
        E('v_add_f32 v%d, v%d, v%d' % (ACC + 32 + r, ACC + 32 + r, ACC + 48 + r))
    for r in range(16):
        E('v_add_f32 v%d, v%d, v%d' % (ACC + r, ACC + r, ACC + 32 + r))
    for i in range(16):
        E('v_fma_f32 v%d, v%d, v%d, v%d' % (ACC + i, ACC + i, 168 + i, 192 + i))
    for p in range(8):
        E('v_cvt_pk_bf16_f32 v%d, v%d, v%d' % (184 + p, ACC + 2 * p, ACC + 2 * p + 1))
    if which == 2:
        for p in range(8):
            E('v_lshlrev_b32 v%d, 16, v%d' % (ACC + 2 * p, 184 + p))
            E('v_and_b32 v%d, 0xffff0000, v%d' % (ACC + 2 * p + 1, 184 + p))
        for i in range(16):
            E('v_mul_f32 v%d, v%d, v%d' % (208 + i, ACC + i, 208 + i))
        for p in range(8):
            E('v_cvt_pk_bf16_f32 v%d, v%d, v%d' % (224 + p, 208 + 2 * p, 209 + 2 * p))
        E('s_lshr_b32 s34, s%d, 4\ns_add_u32 s34, s34, s3\ns_lshl_b32 s34, s34, 14' % S_R0)
        E('s_lshl_b32 s35, s%d, 5\ns_add_u32 s34, s34, s35\ns_add_u32 s34, s34, %d' % (S_C0, OFF_X1))
        E('buffer_store_dwordx4 v[224:227], v4, %s, s34 offen sc1' % srd('WS'))
        E('buffer_store_dwordx4 v[228:231], v4, %s, s34 offen offset:1024 sc1' % srd('WS'))
        for step in (8, 4, 2, 1):
            for i in range(step):
                E('v_add_f32 v%d, v%d, v%d' % (96 + i, (ACC if step == 8 else 96) + i, (ACC if step == 8 else 96) + i + step))
        allreduce_lg('v_add_f32', 96, 28)
        E('v_mul_f32 v26, %s, v96' % f32(1.0 / 64))
        for i in range(16):
            E('v_sub_f32 v%d, v%d, v26' % (ACC + i, ACC + i))
        for i in range(4):
            E('v_mul_f32 v%d, v%d, v%d' % (96 + i, ACC + i, ACC + i))
        for i in range(4, 16):
            E('v_fmac_f32 v%d, v%d, v%d' % (96 + (i & 3), ACC + i, ACC + i))
        E('v_add_f32 v96, v96, v97\nv_add_f32 v98, v98, v99\nv_add_f32 v27, v96, v98')
        allreduce_lg('v_add_f32', 27, 28)
        E('v_lshlrev_b32 v28, 3, v24')
        E('s_lshl_b32 s35, s%d, 14\ns_add_u32 s35, s35, %d' % (S_J7, OFF_ST))
        E('s_mov_b64 exec, 0xffff')
        E('buffer_store_dwordx2 v[26:27], v28, %s, s35 offen sc1' % srd('WS'))
        E('s_mov_b64 exec, -1')
        for r in range(8):
            E('v_accvgpr_write_b32 a%d, v%d' % (200 + r, 184 + r))
    else:
        E('s_lshl_b32 s35, s%d, 1' % S_C0)
        E('buffer_store_dwordx4 v[184:187], v25, %s, s35 offen' % srd('OUT'))
        E('buffer_store_dwordx4 v[188:191], v25, %s, s35 offen offset:64' % srd('OUT'))
    stamp(st0 + 2)


A3_PRE = 6


def phase3():
    stamp(9)
    vm.reset()
    E('s_lshl_b32 s6, s%d, 14\ns_add_u32 s6, s6, %d' % (S_ROW, OFF_X1))
    E('v_add_u32 v20, s6, v4')
    E('v_add_u32 v21, 0x4000, v20')
    E('s_lshl_b32 s7, s%d, 7\ns_add_u32 s7, s7, %d' % (S_ROW, OFF_ST))
    E('v_lshlrev_b32 v22, 3, v2')
    E('v_add_u32 v22, s7, v22')

    def a_grp(i):
        return ['buffer_load_dwordx4 a[%d:%d], v%d, %s, s%d offen sc1' % (i * 8 + b * 4, i * 8 + b * 4 + 3, 20 + b, srd('WS'), S_ROT + i) for b in range(2)]
    for i in range(A3_PRE):
        vm.grp(a_grp(i), ('a', i))
    for t in range(8):
        E('s_mov_b32 s35, %d' % (t * 16384))
        for b in range(2):
            vm.op('buffer_load_dwordx2 v[%d:%d], v22, %s, s35 offen offset:%d sc1' % (192 + b * 16 + 2 * t, 193 + b * 16 + 2 * t, srd('WS'), b * 128), ('st', 0))
    E('v_add_u32 v16, 0x10000, v4')
    E('v_add_u32 v17, 0x20000, v4')
    E('v_lshlrev_b32 v18, 5, v3')
    E('v_add_u32 v18, %d, v18' % L_UT)
    E('s_mul_i32 s6, s%d, %d\ns_lshl_b32 s7, s%d, 10\ns_add_u32 s6, s6, s7\ns_add_u32 s6, s6, %d' % (S_ROW, 43 * 1024, S_PS, OFF_HH))
    E('v_add_u32 v23, s6, v4')
    E('v_add_u32 v24, %d, v23' % (43 * 1024))
    E('s_mov_b32 s34, %s' % f32(-LOG2E))
    splitk_setup(4)
    E('s_waitcnt vmcnt(%d)' % vm.n_after([('a', 0)]))
    E('s_barrier')

    def stats_ops():
        ops = []
        for b in range(2):
            B = 192 + b * 16
            mean, rs, t1, t2 = 26 + 2 * b, 27 + 2 * b, 30 + 2 * b, 31 + 2 * b
            ops.append('v_add_f32 v%d, v%d, v%d' % (mean, B, B + 2))
            ops.append('v_add_f32 v%d, v%d, v%d' % (rs, B + 1, B + 3))
            for t in range(2, 8):
                ops.append('v_add_f32 v%d, v%d, v%d' % (mean, mean, B + 2 * t))
                ops.append('v_add_f32 v%d, v%d, v%d' % (rs, rs, B + 2 * t + 1))
            ops.append('v_mul_f32 v%d, %s, v%d' % (mean, f32(0.125), mean))
            ops.append('v_mov_b32 v%d, 0' % t2)
            for t in range(8):
                ops.append('v_sub_f32 v%d, v%d, v%d' % (t1, B + 2 * t, mean))
                ops.append('v_fmac_f32 v%d, v%d, v%d' % (t2, t1, t1))
            ops.append('v_mov_b32 v%d, %s' % (t1, f32(64.0)))
            ops.append('v_fmac_f32 v%d, v%d, v%d' % (rs, t2, t1))
            ops.append('v_mul_f32 v%d, %s, v%d' % (rs, f32(1.0 / 512), rs))

            def rnd(x):
                ops.append('v_cvt_pk_bf16_f32 v%d, v%d, v%d' % (x, x, x))
                ops.append('v_and_b32 v%d, 0xffff0000, v%d' % (x, x))
            rnd(mean); rnd(rs)
            ops.append('v_add_f32 v%d, %s, v%d' % (rs, f32(1e-5), rs))
            rnd(rs)
            ops.append('v_sqrt_f32 v%d, v%d' % (rs, rs))
            rnd(rs)
            ops.append('v_rcp_f32 v%d, v%d' % (rs, rs))
        return ops

    def bread(u):
        out = []
        for q in range(4):
            d = 128 + (u % 3) * 16 + q * 4
            off = p3_addr(u) + q * 1024
            out.append('ds_read_b128 v[%d:%d], v%d offset:%d' % (d, d + 3, (4, 16, 17)[off >> 16], off & 0xffff))
        return out

    def utread(p):
        ops = []
        for m in range(2):
            for ut in range(2):
                d = 176 + (m * 2 + ut) * 8
                off = (m * 2 + ut) * 384 + p * 128
                ops.append('ds_read_b128 v[%d:%d], v18 offset:%d' % (d, d + 3, off))
                ops.append('ds_read_b128 v[%d:%d], v18 offset:%d' % (d + 4, d + 7, off + 16))
        return ops

    def epilogue(p):
        ops = []
        A0 = 64 + (p & 1) * 32
        for b in range(2):
            mean, rs = 26 + 2 * b, 27 + 2 * b
            T = 208 + b * 8
            regs = []
            for e in range(8):
                ct, r = e >> 2, e & 3
                regs.append((A0 + (b * 4 + 0 + ct) * 4 + r, A0 + (b * 4 + 2 + ct) * 4 + r))
            for e, (ga, ua) in enumerate(regs):
                ops.append('v_fma_f32 v%d, -v%d, v%d, v%d' % (ga, mean, 176 + e, ga))
                ops.append('v_fma_f32 v%d, -v%d, v%d, v%d' % (ua, mean, 192 + e, ua))
            for e, (ga, ua) in enumerate(regs):
                ops.append('v_fma_f32 v%d, v%d, v%d, v%d' % (ga, ga, rs, 184 + e))
                ops.append('v_fma_f32 v%d, v%d, v%d, v%d' % (ua, ua, rs, 200 + e))
            for e, (ga, ua) in enumerate(regs):
                ops.append('v_mul_f32 v%d, s34, v%d' % (T + e, ga))
            for e, (ga, ua) in enumerate(regs):
                ops.append('v_exp_f32 v%d, v%d' % (T + e, T + e))
                ops.append('v_mul_f32 v%d, v%d, v%d' % (ga, ga, ua))
            for e, (ga, ua) in enumerate(regs):
                ops.append('v_add_f32 v%d, 1.0, v%d' % (T + e, T + e))
            for e, (ga, ua) in enumerate(regs):
                ops.append('v_rcp_f32 v%d, v%d' % (T + e, T + e))
            for e, (ga, ua) in enumerate(regs):
                ops.append('v_mul_f32 v%d, v%d, v%d' % (T + e, T + e, ga))
            D = 224 + b * 4
            for q in range(4):
                ops.append('v_cvt_pk_bf16_f32 v%d, v%d, v%d' % (D + q, T + 2 * q, T + 2 * q + 1))
            ops.append('buffer_store_dwordx4 v[%d:%d], v%d, %s, 0 offen offset:%d sc1' % (D, D + 3, 23 + b, srd('WS'), p * 1024))
        return ops

    for o in bread(0) + bread(1):
        E(o)
    pend = []
    bgq = []
    for p in range(3):
        A0 = 64 + (p & 1) * 32
        for ks in range(16):
            u = p * 16 + ks
            if ks == 0 and p >= 1:
                for o in utread(p - 1):
                    E(o)
                E('s_waitcnt lgkmcnt(0)')
                if p == 2:
                    E('s_waitcnt vmcnt(%d)' % vm.n_after([('b3', 0)]))
                E('s_barrier')
                stamp(20 + p)
                if p == 1:
                    bgq = [(p3_b_grp(uu), ('b3', 0)) for uu in range(36, 48)] + [(g_, ('b4', 0)) for g_ in splitk_b_grps(4, 0)]
                else:
                    bgq = [(g_, ('b4', pos)) for pos in range(1, 5) for g_ in splitk_b_grps(4, pos)]
                pend = epilogue(p - 1)
            if p == 0 and ks == 8:
                E('s_waitcnt vmcnt(%d)' % vm.n_after([('st', 0)]))
                pend = stats_ops()
            lds = bread(u + 2) if u + 2 < 48 else []
            nl = 4 if u + 1 < 48 else 0
            if p == 0:
                E('s_waitcnt vmcnt(%d) lgkmcnt(%d)' % (vm.n_after([('a', ks)]), nl))
            else:
                E('s_waitcnt lgkmcnt(%d)' % nl)
            grp = []
            if p == 0 and ks + A3_PRE < 16:
                grp.append((a_grp(ks + A3_PRE), ('a', ks + A3_PRE)))
            elif bgq:
                grp.append(bgq.pop(0))
            i = 0
            for q in range(4):
                for b in range(2):
                    acc = A0 + (b * 4 + q) * 4
                    bf = 128 + (u % 3) * 16 + q * 4
                    af = ks * 8 + b * 4
                    c = '0' if ks == 0 else 'v[%d:%d]' % (acc, acc + 3)
                    E('v_mfma_f32_16x16x32_bf16 v[%d:%d], v[%d:%d], a[%d:%d], %s' % (acc, acc + 3, bf, bf + 3, af, af + 3, c))
                    n = 2
                    if i < len(lds):
                        E(lds[i]); n = 1
                    if i == 5 and grp:
                        g_, tag = grp.pop(0)
                        vm.grp(g_, tag)
                        n = 0
                    i += 1
                    for _ in range(n):
                        if pend:
                            o = pend.pop(0)
                            if o.startswith('buffer_'):
                                vm.op(o, ('hs', 0))
                            else:
                                E(o)
        for o in pend:
            if o.startswith('buffer_'):
                vm.op(o, ('hs', 0))
            else:
                E(o)
        pend = []
        assert not bgq
    stamp(23)
    for o in utread(2):
        E(o)
    E('s_waitcnt lgkmcnt(0)')
    for o in epilogue(2):
        E(o)
    stamp(10)


def stop_here(n):
    if STOP == n:
        E('s_waitcnt vmcnt(0)')
        finish()
        return True
    return False


def main():
    kernel0()
    k1_prologue()
    phase1()
    if stop_here(1):
        return
    sync_window(CO, None, {1: lambda: (poll_ge(S_CNTJ, CW, 64), gather_ut(0)), 2: lambda: (poll_ge(S_CNTJ, CW, 64), gather_ut(1))})
    splitk_phase(2, 4,
                 bg_loop=[p3_b_grp(u) for u in range(8, 20)],
                 bg_red=[p3_b_grp(u) for u in range(20, 24)])
    if stop_here(2):
        return
    sync_window(C1, lambda: (p3_units_w123(list(range(24, 32))), p3_units_w123(list(range(32, 36)))),
                {})
    phase3()
    if stop_here(3):
        return

    def own_b4():
        for pos in range(5, 9):
            for g_ in splitk_b_grps(4, pos):
                for l in g_:
                    E(l)
    sync_window(CH, own_b4, {})
    lsk = lab('Z')
    E('s_cmp_lg_u32 s3, 0')
    E('s_cbranch_scc1 ' + lsk)
    own_b4()
    E(lsk + ':')
    splitk_phase(4, 9)
    E('s_waitcnt vmcnt(0)')
    finish()


main()
hdr = ['; @launch kernel=k0_kernel grid=(256,1,1) block=(256,1,1) lds=32768',
       '; @launch kernel=k1_kernel grid=(256,1,1) block=(256,1,1) lds=%d' % LDS_TOTAL,
       '.amdgcn_target "amdgcn-amd-amdhsa--gfx950"', '.text']
tail = ''
for name, nv, ao in (('k0_kernel', 128, 128), ('k1_kernel', 512, 256)):
    tail += """.section .rodata,"a"
.p2align 6
.amdhsa_kernel %s
  .amdhsa_next_free_vgpr %d
  .amdhsa_next_free_sgpr 102
  .amdhsa_accum_offset %d
  .amdhsa_group_segment_fixed_size 0
  .amdhsa_kernarg_size 96
  .amdhsa_user_sgpr_count 2
  .amdhsa_user_sgpr_kernarg_segment_ptr 1
  .amdhsa_system_sgpr_workgroup_id_x 1
.end_amdhsa_kernel
""" % (name, nv, ao)
print('\n'.join(hdr) + '\n' + E.text() + tail)
sys.stderr.write('instructions: %d\n' % E.nins)
```

```python
import sys, os, struct
from emit import Emitter

STOP = int(os.environ.get('STOP', '99'))
STAMPS = int(os.environ.get('STAMPS', '0'))

OFF_CNT = 0x0000000
OFF_MODP = 0x0010000
OFF_XH = 0x0100000
OFF_O = 0x0400000
OFF_X1 = 0x0700000
OFF_ST = 0x0A00000
OFF_HH = 0x0B00000
OFF_WF = 0x1100000
OFF_UT = 0x1400000
OFF_WQ = 0x1500000
OFF_WOF = 0x1700000
OFF_W2F = 0x1800000
OFF_STAMP = 0x8000000
CO, C1, CH, CW, CV, CHA, CHB = 128, 256, 384, 512, 640, 768, 896

SRD = dict(X=8, WQKV=12, WO=16, W1=20, W3=24, W2=28, C=32, WMOD=36, OUT=40, WS=48)
PTR = dict(X=64, WQKV=66, WO=68, W1=72, W3=74, W2=76, C=78, WMOD=80, OUT=82, WS=86)
SIZE = dict(X=2048 * 512 * 2, WQKV=512 * 1536 * 2, WO=512 * 512 * 2, W1=512 * 1376 * 2, W3=512 * 1376 * 2,
            W2=1376 * 512 * 2, C=1024, WMOD=512 * 3072 * 2, OUT=2048 * 512 * 2, WS=0x10000000)
LOG2E = 1.4426950408889634
SPIN_MAX = 400000

ROWB = 16384
L_MISC = 147456
L_TAB = L_MISC
L_XCH = L_MISC + 4096
L_UT = L_MISC + 12544
L_GA = L_MISC + 14080
LDS_TOTAL = 163840
P3_ROW = [6, 7, 8, 3, 4, 5, 0, 1, 2, 6, 7, 8]
RED_ROW = 0
L_STAMP = L_MISC + 14848
L_SCR = L_MISC + 15872
L_HP = 2 * ROWB

S_PS = 65
S_R0 = 66
S_C0 = 67
S_CNTG = 68
S_ROW = 69
S_QB = 70
S_J7 = 71
S_CNTJ = 64
S_W1K = 76
S_RT = 77
S_ROT = 12


def srd(n):
    return 's[%d:%d]' % (SRD[n], SRD[n] + 3)


def f32(x):
    return '0x%08x' % struct.unpack('<I', struct.pack('<f', x))[0]


E = Emitter()
_lab = [0]


def lab(p='L'):
    _lab[0] += 1
    return '%s_%d' % (p, _lab[0])


def stamp(slot, cyc=False):
    if not STAMPS:
        return
    E('s_memtime s[92:93]' if cyc else 's_memrealtime s[92:93]')
    E('s_lshl_b32 s91, s3, 8')
    E('s_add_u32 s91, s91, %d' % (L_STAMP + 4 * slot))
    E('s_waitcnt lgkmcnt(0)')
    E('v_mov_b32 v5, s92')
    E('v_mov_b32 v6, s91')
    E('ds_write_b32 v6, v5')
    E('s_waitcnt lgkmcnt(0)')


def finish():
    if STAMPS:
        E('s_lshl_b32 s92, s2, 2\ns_add_u32 s92, s92, s3\ns_lshl_b32 s92, s92, 8\ns_add_u32 s92, s92, %d' % OFF_STAMP)
        E('s_lshl_b32 s94, s3, 8\ns_add_u32 s94, s94, %d' % L_STAMP)
        E('v_lshlrev_b32 v6, 2, v1')
        E('v_add_u32 v7, s94, v6')
        E('s_mov_b32 exec_lo, -1\ns_mov_b32 exec_hi, 0xff')
        E('ds_read_b32 v5, v7')
        E('s_waitcnt lgkmcnt(0)')
        E('buffer_store_dword v5, v6, %s, s92 offen' % srd('WS'))
        E('s_waitcnt vmcnt(0)')
    E('s_endpgm')


class VM:
    def __init__(self):
        self.seq = []

    def reset(self):
        self.seq = []

    def op(self, text, tag=None):
        E(text)
        self.seq.append(tag)

    def grp(self, lines, tag=None):
        for l in lines:
            if l.startswith('buffer_'):
                self.op(l, tag)
            else:
                E(l)

    def n_after(self, tags):
        idx = max([i for i, t in enumerate(self.seq) if t in tags] + [-1])
        return min(63, len(self.seq) - 1 - idx)


vm = VM()


BGS = []
PACE0 = int(os.environ.get('PACE0', '6'))
PACE1 = int(os.environ.get('PACE1', '24'))
_E0 = E
_pace = {'n': 0, 'cnt': 0}


class PacedE:
    def __getattr__(self, k):
        return getattr(_E0, k)

    def __setattr__(self, k, v):
        setattr(_E0, k, v)

    def __call__(self, text):
        _E0(text)
        if _pace['n'] and BGS and not text.startswith(('s_cmp', 's_cselect', 's_add_u32 m0', 'v_cmp', 's_mov_b64 exec')):
            _pace['cnt'] += text.count('\n') + 1
            if _pace['cnt'] >= _pace['n']:
                _pace['cnt'] = 0
                g_ = BGS.pop(0)
                n = _pace['n']
                _pace['n'] = 0
                vm.grp(g_, ('bg', 0))
                _pace['n'] = n


E = PacedE()


def pace_on(n):
    _pace['n'] = n
    _pace['cnt'] = 0


def pace_off():
    _pace['n'] = 0


def allreduce_lg(op, v, tmp):
    E('v_mov_b32 v%d, v%d' % (tmp, v))
    E('v_permlane32_swap_b32 v%d, v%d' % (v, tmp))
    E('%s v%d, v%d, v%d' % (op, v, v, tmp))
    E('v_mov_b32 v%d, v%d' % (tmp, v))
    E('v_permlane16_swap_b32 v%d, v%d' % (v, tmp))
    E('%s v%d, v%d, v%d' % (op, v, v, tmp))


def round_bf16(dst, src):
    E('v_cvt_pk_bf16_f32 v%d, v%d, v%d' % (dst, src, src))
    E('v_and_b32 v%d, 0xffff0000, v%d' % (dst, dst))


def arrive(soff_reg, extra):
    E('s_mov_b64 exec, 1')
    E('v_mov_b32 v5, 1')
    E('v_mov_b32 v6, %d' % extra)
    E('buffer_atomic_add v5, v6, %s, s%d offen' % (srd('WS'), soff_reg))
    E('s_mov_b64 exec, -1')


def poll_ge(soff_reg, extra, target):
    l0, l1 = lab('P'), lab('P')
    E('s_mov_b64 exec, 1')
    E('v_mov_b32 v6, %d' % extra)
    E('s_mov_b32 s90, 0')
    E(l0 + ':')
    E('buffer_load_dword v5, v6, %s, s%d offen sc1' % (srd('WS'), soff_reg))
    E('s_add_u32 s90, s90, 1')
    E('s_cmp_gt_u32 s90, %d' % SPIN_MAX)
    E('s_cbranch_scc1 ' + l1)
    E('s_waitcnt vmcnt(0)')
    E('v_cmp_gt_u32 vcc, %d, v5' % target)
    E('s_cbranch_vccnz ' + l0)
    E(l1 + ':')
    E('s_mov_b64 exec, -1')


def reduce8(A):
    for sh in (4, 8):
        for e in range(8):
            E('v_add_f32_dpp v%d, v%d, v%d row_ror:%d row_mask:0xf bank_mask:0xf' % (A + e, A + e, A + e, sh))
    for e in range(4):
        E('v_permlane32_swap_b32 v%d, v%d' % (A + e, A + 4 + e))
    for e in range(4):
        E('v_add_f32 v%d, v%d, v%d' % (A + e, A + e, A + 4 + e))
    for e in range(2):
        E('v_permlane16_swap_b32 v%d, v%d' % (A + e, A + 2 + e))
    for e in range(2):
        E('v_add_f32 v%d, v%d, v%d' % (A + e, A + e, A + 2 + e))


def dot_rows(A, W, SC):
    for p in range(4):
        E('v_dot2_f32_bf16 v%d, v%d, v%d, v%d' % (A + 2 * p, W + p, SC, A + 2 * p))
        E('v_dot2_f32_bf16 v%d, v%d, v%d, v%d' % (A + 2 * p + 1, W + p, SC + 1, A + 2 * p + 1))


def prologue(name, nwg, bufs):
    E.raw('.globl %s\n.p2align 8\n.type %s,@function\n%s:' % (name, name, name))
    E.hist = []
    E('s_cmp_lt_u32 s2, %d' % nwg)
    E('s_cbranch_scc1 L_go_%s' % name)
    E('s_endpgm')
    E('L_go_%s:' % name)
    E('s_load_dwordx16 s[64:79], s[0:1], 0')
    E('s_load_dwordx8 s[80:87], s[0:1], 64')
    E('v_and_b32 v1, 63, v0')
    E('v_and_b32 v2, 15, v0')
    E('v_bfe_u32 v3, v0, 4, 2')
    E('v_lshrrev_b32 v4, 6, v0')
    E('v_readfirstlane_b32 s3, v4')
    E('v_lshlrev_b32 v4, 4, v1')
    MAP = os.environ.get('MAP', '42')
    if MAP == '81':
        E('s_and_b32 s4, s2, 7\ns_lshl_b32 s4, s4, 1\ns_bfe_u32 s5, s2, 0x10003\ns_or_b32 s4, s4, s5\ns_lshr_b32 s5, s2, 4')
    elif MAP == '42':
        E('s_bfe_u32 s4, s2, 0x20001\ns_lshl_b32 s4, s4, 2\ns_lshr_b32 s5, s2, 6\ns_or_b32 s4, s4, s5')
        E('s_and_b32 s5, s2, 1\ns_lshl_b32 s5, s5, 3\ns_bfe_u32 s6, s2, 0x30003\ns_or_b32 s5, s5, s6')
    else:
        E('s_bfe_u32 s4, s2, 0x10002\ns_lshl_b32 s4, s4, 3\ns_lshr_b32 s5, s2, 5\ns_or_b32 s4, s4, s5')
        E('s_and_b32 s5, s2, 3\ns_lshl_b32 s5, s5, 2\ns_bfe_u32 s6, s2, 0x20003\ns_or_b32 s5, s5, s6')
    E('s_waitcnt lgkmcnt(0)')
    for b in bufs:
        r = SRD[b]
        E('s_mov_b32 s%d, s%d\ns_and_b32 s%d, s%d, 0xffff\ns_mov_b32 s%d, 0x%x\ns_mov_b32 s%d, 0x20000' % (
            r, PTR[b], r + 1, PTR[b] + 1, r + 2, SIZE[b], r + 3))


def kernel0():
    prologue('k0_kernel', 256, list(SRD))
    if STAMPS:
        E('s_memrealtime s[94:95]')
    E('v_lshrrev_b32 v7, 2, v1')
    E('v_and_b32 v8, 3, v1')
    E('s_lshl_b32 s%d, s4, 10' % S_CNTG)
    lw23, lj = lab('W23'), lab('J')
    E('s_cmp_ge_u32 s3, 2')
    E('s_cbranch_scc1 ' + lw23)
    E('v_and_b32 v11, 7, v1')
    E('v_lshrrev_b32 v12, 3, v1')
    E('v_lshlrev_b32 v13, 10, v12')
    E('v_lshl_add_u32 v13, v11, 4, v13')
    E('v_lshlrev_b32 v14, 10, v11')
    E('v_lshl_add_u32 v14, v12, 4, v14')
    E('s_lshl_b32 s6, s4, 7\ns_lshl_b32 s7, s5, 3\ns_add_u32 s6, s6, s7\ns_lshl_b32 s54, s6, 10')
    E('s_lshl_b32 s7, s3, 9\ns_add_u32 s55, s54, s7')
    for i in range(8):
        E('buffer_load_dwordx4 v[%d:%d], v13, %s, s54 offen offset:%d' % (64 + 4 * i, 67 + 4 * i, srd('X'), i * 128))
    for i in range(4):
        E('buffer_load_dwordx4 v[%d:%d], v14, %s, s55 offen offset:%d' % (96 + 4 * i, 99 + 4 * i, srd('X'), i * 128))
    E('v_lshlrev_b32 v16, 7, v1')
    E('v_mov_b32 v19, 0')
    E('s_lshl_b32 s6, s3, 4\ns_or_b32 s6, s6, s5')
    E('s_cmp_eq_u32 s6, 0')
    E('s_cselect_b32 s58, s%d, 0x7f000000' % S_CNTG)
    E('s_mov_b64 exec, 0xff')
    E('buffer_store_dword v19, v16, %s, s58 offen' % srd('WS'))
    E('s_mov_b64 exec, 1')
    for q in range(3):
        E('buffer_load_dword v%d, v4, %s, 0 offen' % (60 + q, srd('C')))
    E('s_mov_b64 exec, -1')
    E('s_branch ' + lj)
    E(lw23 + ':')
    E('s_movk_i32 s6, 6144')
    E('v_mul_lo_u32 v9, v7, s6')
    E('v_lshl_add_u32 v9, v8, 4, v9')
    E('s_and_b32 s63, s2, 3')
    E('s_lshr_b32 s53, s2, 2\ns_lshl_b32 s53, s53, 1\ns_and_b32 s7, s3, 1\ns_add_u32 s53, s53, s7')
    E('v_lshlrev_b32 v10, 1, v7')
    E('s_lshl_b32 s6, s63, 8')
    for n in range(8):
        E('buffer_load_ushort v%d, v10, %s, s6 offen offset:%d' % (16 + n, srd('C'), n * 32))
    E('s_mul_i32 s58, s63, %d\ns_lshl_b32 s59, s53, 6\ns_add_u32 s58, s58, s59' % (128 * 6144))
    E('s_cmp_ge_u32 s2, 192')
    E('s_cselect_b32 s58, 0x7f000000, s58')
    for n in range(8):
        E('s_add_u32 s59, s58, %d' % (n * 16 * 6144))
        E('buffer_load_dwordx4 v[%d:%d], v9, %s, s59 offen' % (64 + 4 * n, 67 + 4 * n, srd('WMOD')))
    E(lj + ':')
    E('s_mul_i32 s52, s2, 3\ns_add_u32 s52, s52, s3')
    E('s_lshl_b32 s%d, s3, 13' % S_QB)

    def tile_params(rnd):
        d0, d1, nat = 72 + 2 * rnd, 73 + 2 * rnd, 80 + rnd
        la, lb = lab('TA'), lab('TB')
        E('s_mov_b64 s[56:57], s[%d:%d]\ns_mov_b32 s58, 0x%x' % (SRD['WQKV'], SRD['WQKV'] + 1, SIZE['WQKV']))
        E('s_mul_i32 s6, s52, 1366\ns_lshr_b32 s6, s6, 16\ns_mul_i32 s7, s6, 48\ns_sub_u32 s7, s52, s7')
        E('s_mul_i32 s54, s6, %d\ns_lshl_b32 s60, s7, 6\ns_add_u32 s54, s54, s60\ns_movk_i32 s55, 3072' % (32 * 3072))
        E('s_and_b32 s60, s7, 15\ns_mul_i32 s60, s60, %d\ns_lshr_b32 s61, s7, 4\ns_lshl_b32 s61, s61, 15\ns_add_u32 s60, s60, s61' % (6 * 16384))
        E('s_lshl_b32 s6, s6, 10\ns_add_u32 s60, s60, s6\ns_add_u32 s%d, s60, %d\ns_add_u32 s%d, s%d, 16384' % (d0, OFF_WQ, d1, d0))
        E('s_mov_b32 s%d, 1' % nat)
        E('s_cmp_eq_u32 s3, 3')
        E('s_cselect_b32 s54, 0x7f000000, s54\ns_cselect_b32 s%d, 0x7f000000, s%d\ns_cselect_b32 s%d, 0x7f000000, s%d' % (d0, d0, d1, d1))
        E(lb + ':')
        if rnd:
            E('s_mov_b32 s%d, 0' % nat)
        E('s_mov_b32 s59, 0x20000')
        E('v_mul_lo_u32 v44, v7, s55')
        E('v_lshl_add_u32 v44, v8, 4, v44')
        E('s_add_u32 m0, s%d, %d' % (S_QB, rnd * 2048))
        E('buffer_load_dwordx4 v44, s[56:59], s54 offen lds')
        E('s_lshl_b32 s55, s55, 4\ns_add_u32 s54, s54, s55')
        E('s_add_u32 m0, s%d, %d' % (S_QB, rnd * 2048 + 1024))
        E('buffer_load_dwordx4 v44, s[56:59], s54 offen lds')
    tile_params(0)
    lw23, lj = lab('W23'), lab('J')
    E('s_cmp_ge_u32 s3, 2')
    E('s_cbranch_scc1 ' + lw23)
    E('v_lshlrev_b32 v48, 8, v12')
    E('v_lshl_add_u32 v48, v11, 4, v48')
    E('v_add_u32 v49, 4096, v48')
    E('s_lshl_b32 s6, s4, 3\ns_lshr_b32 s7, s5, 1\ns_add_u32 s6, s6, s7\ns_lshl_b32 s6, s6, 14')
    E('s_and_b32 s7, s5, 1\ns_lshl_b32 s7, s7, 7\ns_add_u32 s6, s6, s7')
    E('s_lshl_b32 s59, s3, 13\ns_add_u32 s6, s6, s59\ns_add_u32 s60, s6, %d' % OFF_XH)
    E('v_lshlrev_b32 v50, 5, v11')
    E('v_mov_b32 v20, 0\nv_mov_b32 v21, 0\nv_mov_b32 v22, 0x3f803f80\nv_mov_b32 v23, 0\nv_mov_b32 v24, 0')
    for i in range(8):
        E('s_waitcnt vmcnt(%d)' % (17 - i))
        for p in range(4):
            r = 64 + 4 * i + p
            E('v_dot2_f32_bf16 v%d, v%d, v22, v%d' % (20 + 3 * (p & 1), r, 20 + 3 * (p & 1)))
            E('v_dot2_f32_bf16 v%d, v%d, v%d, v%d' % (21 + 3 * (p & 1), r, r, 21 + 3 * (p & 1)))
    E('v_add_f32 v20, v20, v23\nv_add_f32 v21, v21, v24')
    for mod_ in ('quad_perm:[1,0,3,2]', 'quad_perm:[2,3,0,1]', 'row_half_mirror'):
        E('v_add_f32_dpp v20, v20, v20 %s row_mask:0xf bank_mask:0xf' % mod_)
        E('v_add_f32_dpp v21, v21, v21 %s row_mask:0xf bank_mask:0xf' % mod_)
    E('v_mul_f32 v20, %s, v20' % f32(1.0 / 512))
    E('v_mul_f32 v21, %s, v21' % f32(1.0 / 512))
    E('v_fma_f32 v21, -v20, v20, v21')
    E('v_max_f32 v21, 0, v21')
    round_bf16(20, 20)
    round_bf16(21, 21)
    E('v_add_f32 v21, %s, v21' % f32(1e-5))
    round_bf16(21, 21)
    E('v_sqrt_f32 v21, v21')
    round_bf16(21, 21)
    E('v_rcp_f32 v21, v21')
    E('ds_bpermute_b32 v20, v50, v20')
    E('ds_bpermute_b32 v21, v50, v21')
    E('s_waitcnt vmcnt(6) lgkmcnt(0)')
    for i in range(4):
        for p in range(4):
            src = 96 + 4 * i + p
            E('v_lshlrev_b32 v%d, 16, v%d' % (24 + 2 * p, src))
            E('v_and_b32 v%d, 0xffff0000, v%d' % (25 + 2 * p, src))
        for e in range(8):
            E('v_sub_f32 v%d, v%d, v20' % (24 + e, 24 + e))
        for p in range(4):
            E('v_cvt_pk_bf16_f32 v%d, v%d, v%d' % (32 + p, 24 + 2 * p, 25 + 2 * p))
        for p in range(4):
            E('v_lshlrev_b32 v%d, 16, v%d' % (24 + 2 * p, 32 + p))
            E('v_and_b32 v%d, 0xffff0000, v%d' % (25 + 2 * p, 32 + p))
        for e in range(8):
            E('v_mul_f32 v%d, v%d, v21' % (24 + e, 24 + e))
        for p in range(4):
            E('v_cvt_pk_bf16_f32 v%d, v%d, v%d' % (32 + p, 24 + 2 * p, 25 + 2 * p))
        for p in range(4):
            E('v_lshlrev_b32 v%d, 16, v%d' % (24 + 2 * p, 32 + p))
            E('v_and_b32 v%d, 0xffff0000, v%d' % (25 + 2 * p, 32 + p))
        for e in range(8):
            E('v_cvt_f16_f32 v%d, v%d' % (24 + e, 24 + e))
        for p in range(4):
            E('v_pack_b32_f16 v%d, v%d, v%d' % (112 + 4 * i + p, 24 + 2 * p, 25 + 2 * p))
        E('buffer_store_dwordx4 v[%d:%d], v%d, %s, s60 offen offset:%d %s' % (
            112 + 4 * i, 115 + 4 * i, 48 + (i >> 1), srd('WS'), (i & 1) * 2048, os.environ.get('K0ST', '')))
    E('s_waitcnt vmcnt(4)')
    E('s_branch ' + lj)
    E(lw23 + ':')
    E('s_waitcnt vmcnt(10)')
    for n in range(8):
        E('v_lshlrev_b32 v%d, 16, v%d' % (16 + n, 16 + n))
    for n in range(8):
        E('v_mul_f32 v%d, %s, v%d' % (24 + n, f32(-LOG2E), 16 + n))
    for n in range(8):
        E('v_exp_f32 v%d, v%d' % (24 + n, 24 + n))
    for n in range(8):
        E('v_add_f32 v%d, 1.0, v%d' % (24 + n, 24 + n))
    for n in range(8):
        E('v_rcp_f32 v%d, v%d' % (24 + n, 24 + n))
    for n in range(8):
        E('v_mul_f32 v%d, v%d, v%d' % (16 + n, 16 + n, 24 + n))
    for n in range(8):
        E('v_cvt_pk_bf16_f32 v%d, v%d, v%d' % (16 + n, 16 + n, 16 + n))
    for n in range(8):
        E('v_and_b32 v%d, 0xffff, v%d' % (100 + 2 * n, 16 + n))
        E('v_and_b32 v%d, 0xffff0000, v%d' % (101 + 2 * n, 16 + n))
    for e in range(8):
        E('v_mov_b32 v%d, 0' % (50 + e))
    for n in range(8):
        E('s_waitcnt vmcnt(%d)' % (9 - n))
        dot_rows(50, 64 + 4 * n, 100 + 2 * n)
    reduce8(50)
    E('v_lshlrev_b32 v28, 5, v8')
    E('v_lshl_add_u32 v28, v3, 3, v28')
    E('s_mul_i32 s58, s63, 12288\ns_lshl_b32 s59, s53, 7\ns_add_u32 s58, s58, s59\ns_add_u32 s58, s58, %d' % OFF_MODP)
    E('s_cmp_ge_u32 s2, 192')
    E('s_cselect_b32 s58, 0x7f000000, s58')
    E('v_cmp_gt_u32 vcc, 4, v2')
    E('s_mov_b64 exec, vcc')
    E('buffer_store_dwordx2 v[50:51], v28, %s, s58 offen' % srd('WS'))
    E('s_mov_b64 exec, -1')
    E('s_waitcnt vmcnt(1)')
    E(lj + ':')
    E('v_lshrrev_b32 v30, 2, v2')
    E('v_lshl_add_u32 v30, v3, 3, v30')
    E('v_lshlrev_b32 v30, 6, v30')
    E('v_add_u32 v30, s%d, v30' % S_QB)
    E('v_and_b32 v31, 3, v2')
    E('v_lshl_add_u32 v32, v31, 4, v30')
    E('v_lshl_add_u32 v33, v31, 3, v30')
    E('s_cmp_eq_u32 s80, 1')
    E('s_cselect_b32 s6, 32, 8')
    E('s_cselect_b64 vcc, -1, 0')
    E('v_cndmask_b32 v34, v32, v33, vcc')
    E('v_add_u32 v35, s6, v34')
    for rnd in range(1):
        for ct in range(2):
            T = 64 + (rnd * 2 + ct) * 4
            if rnd == 0:
                base, off = 34 + ct, 0
            else:
                base, off = 32, rnd * 2048 + ct * 8
            E('ds_read_b64_tr_b16 v[%d:%d], v%d offset:%d' % (T, T + 1, base, off))
            E('ds_read_b64_tr_b16 v[%d:%d], v%d offset:%d' % (T + 2, T + 3, base, off + 256))
        if rnd == 1:
            E('s_waitcnt lgkmcnt(0)')
    E('s_waitcnt lgkmcnt(0)')
    for rnd in range(1):
        for ct in range(2):
            T = 64 + (rnd * 2 + ct) * 4
            E('buffer_store_dwordx4 v[%d:%d], v4, %s, s%d offen %s' % (T, T + 3, srd('WS'), 72 + 2 * rnd + ct, os.environ.get('K0ST', '')))
    if STAMPS:
        E('s_memrealtime s[96:97]')
        E('s_waitcnt vmcnt(0)')
        E('s_memrealtime s[98:99]')
        E('s_waitcnt lgkmcnt(0)')
        E('s_lshl_b32 s92, s2, 2\ns_add_u32 s92, s92, s3\ns_lshl_b32 s92, s92, 8\ns_add_u32 s92, s92, %d' % (OFF_STAMP + 160))
        E('v_mov_b32 v5, s92\nv_mov_b32 v6, s94\nv_mov_b32 v7, s96\nv_mov_b32 v8, s98')
        E('s_mov_b64 exec, 1')
        E('buffer_store_dword v6, v5, %s, 0 offen' % srd('WS'))
        E('buffer_store_dword v7, v5, %s, 0 offen offset:4' % srd('WS'))
        E('buffer_store_dword v8, v5, %s, 0 offen offset:8' % srd('WS'))
    E('s_endpgm')


L_STG = 6 * ROWB


def tile_dma(m0a, m0b):
    E('s_mov_b32 s59, 0x20000')
    E('v_mul_lo_u32 v44, v7, s55')
    E('v_lshl_add_u32 v44, v8, 4, v44')
    E(m0a)
    E('buffer_load_dwordx4 v44, s[56:59], s54 offen lds')
    E('s_lshl_b32 s55, s55, 4\ns_add_u32 s54, s54, s55')
    E(m0b)
    E('buffer_load_dwordx4 v44, s[56:59], s54 offen lds')


def k1_prologue():
    prologue('k1_kernel', 256, ['X', 'OUT', 'WS'])
    for n, W in enumerate(('WO', 'W1', 'W3', 'W2')):
        E('s_mov_b32 s%d, s%d\ns_and_b32 s%d, s%d, 0xffff' % (94 + 2 * n, PTR[W], 95 + 2 * n, PTR[W] + 1))
    E('s_mul_i32 s%d, s5, 0x5556\ns_lshr_b32 s%d, s%d, 13' % (S_PS, S_PS, S_PS))
    E('s_lshl_b32 s6, s4, 7\ns_lshr_b32 s7, s5, 3\ns_lshl_b32 s7, s7, 6\ns_add_u32 s%d, s6, s7' % S_R0)
    E('s_and_b32 s%d, s5, 7\ns_lshl_b32 s%d, s%d, 6' % (S_J7, S_C0, S_J7))
    E('s_lshl_b32 s%d, s4, 10' % S_CNTG)
    E('s_lshl_b32 s%d, s5, 10' % S_CNTJ)
    E('s_lshl_b32 s6, s4, 3\ns_lshl_b32 s7, s3, 1\ns_add_u32 s%d, s6, s7' % S_ROW)
    E('s_lshl_b32 s%d, s3, 12' % S_QB)
    E('s_lshl_b32 s%d, s3, 10' % S_W1K)
    ROT = os.environ.get('ROT', 'j')
    if ROT == 'jg':
        E('s_lshl_b32 s6, s4, 2\ns_add_u32 s6, s6, s5\ns_and_b32 s%d, s6, 15' % S_RT)
    elif ROT == 'j':
        E('s_mov_b32 s%d, s5' % S_RT)
    elif ROT == 'j2':
        E('s_lshl_b32 s6, s5, 1\ns_and_b32 s%d, s6, 15' % S_RT)
    else:
        E('s_mov_b32 s%d, 0' % S_RT)


def relayout_issue():
    E('v_lshrrev_b32 v7, 2, v1')
    E('v_and_b32 v8, 3, v1')
    E('s_mul_i32 s89, s3, 6144\ns_add_u32 s89, s89, %d' % L_STG)
    E('s_lshl_b32 s6, s4, 1\ns_lshr_b32 s7, s5, 3\ns_add_u32 s6, s6, s7\ns_lshl_b32 s7, s3, 5\ns_add_u32 s52, s6, s7')
    l2, ld = lab('R2'), lab('RD')
    E('s_cmp_ge_u32 s52, 32')
    E('s_cbranch_scc1 ' + l2)
    E('s_mov_b64 s[56:57], s[94:95]\ns_mov_b32 s58, 0x%x' % SIZE['WO'])
    E('s_lshr_b32 s6, s52, 1\ns_and_b32 s7, s52, 1\ns_lshl_b32 s60, s%d, 1\ns_add_u32 s7, s7, s60' % S_J7)
    E('s_lshl_b32 s60, s7, 15\ns_lshl_b32 s61, s6, 10\ns_add_u32 s60, s60, s61\ns_add_u32 s86, s60, %d\ns_add_u32 s87, s86, 16384' % OFF_WOF)
    E('s_branch ' + ld)
    E(l2 + ':')
    E('s_mov_b64 s[56:57], s[100:101]\ns_mov_b32 s58, 0x%x' % SIZE['W2'])
    E('s_sub_u32 s52, s52, 32')
    E('s_lshr_b32 s6, s52, 1\ns_and_b32 s7, s52, 1\ns_lshl_b32 s60, s%d, 1\ns_add_u32 s7, s7, s60' % S_J7)
    E('s_mul_i32 s60, s7, %d\ns_lshl_b32 s61, s6, 10\ns_add_u32 s60, s60, s61\ns_add_u32 s86, s60, %d\ns_add_u32 s87, s86, %d' % (2 * 43 * 1024, OFF_W2F, 43 * 1024))
    E('s_cmp_ge_u32 s6, 43')
    E('s_cselect_b32 s86, 0x7f000000, s86\ns_cselect_b32 s87, 0x7f000000, s87')
    E(ld + ':')
    E('s_lshl_b32 s54, s6, 15\ns_lshl_b32 s60, s7, 6\ns_add_u32 s54, s54, s60\ns_movk_i32 s55, 1024')
    tile_dma('s_mov_b32 m0, s89', 's_add_u32 m0, s89, 1024')
    lsk = lab('RS')
    E('s_cmp_eq_u32 s3, 0')
    E('s_cbranch_scc1 ' + lsk)
    E('s_add_u32 s60, s%d, s3\ns_sub_u32 s60, s60, 1' % S_PS)
    E('s_lshl_b32 s88, s60, 16\ns_lshl_b32 s6, s4, 10\ns_add_u32 s88, s88, s6\ns_add_u32 s88, s88, %d' % OFF_WF)
    for m, W in enumerate(('W1', 'W3')):
        E('s_mov_b64 s[56:57], s[%d:%d]\ns_mov_b32 s58, 0x%x' % (96 + 2 * m, 97 + 2 * m, SIZE[W]))
        E('s_mul_i32 s54, s4, %d\ns_lshl_b32 s6, s60, 6\ns_add_u32 s54, s54, s6\ns_movk_i32 s55, 2752' % (32 * 2752))
        tile_dma('s_add_u32 m0, s89, %d' % (2048 + m * 2048), 's_add_u32 m0, s89, %d' % (3072 + m * 2048))
    lsk2 = lab('RS')
    E('s_branch ' + lsk2)
    E(lsk + ':')
    E('s_mov_b64 exec, 1')
    for q in range(4):
        E('buffer_load_dword a%d, v4, %s, 0 offen' % (152 + q, srd('WS')))
    E('s_mov_b64 exec, -1')
    E(lsk2 + ':')
    vm.seq += [('rd', 0)] * 6


def rot_table():
    E('s_lshl_b32 s%d, s5, 10' % S_ROT)
    for i in range(1, 16):
        E('s_add_u32 s%d, s%d, 1024\ns_and_b32 s%d, s%d, 0x3fff' % (S_ROT + i, S_ROT + i - 1, S_ROT + i, S_ROT + i))


def relayout_process():
    E('v_lshrrev_b32 v128, 2, v2')
    E('v_lshl_add_u32 v128, v3, 3, v128')
    E('v_lshlrev_b32 v128, 6, v128')
    E('v_and_b32 v129, 3, v2')
    E('v_lshl_add_u32 v128, v129, 4, v128')
    E('v_add_u32 v128, s89, v128')
    for ct in range(2):
        E('ds_read_b64_tr_b16 v[%d:%d], v128 offset:%d' % (132 + 4 * ct, 133 + 4 * ct, ct * 8))
        E('ds_read_b64_tr_b16 v[%d:%d], v128 offset:%d' % (134 + 4 * ct, 135 + 4 * ct, ct * 8 + 256))
    l0, l1 = lab('RP'), lab('RP')
    E('s_cmp_eq_u32 s3, 0')
    E('s_cbranch_scc1 ' + l0)
    for blk in range(4):
        m, ct = blk >> 1, blk & 1
        E('ds_read_b64_tr_b16 v[%d:%d], v128 offset:%d' % (140 + 4 * blk, 141 + 4 * blk, 2048 + m * 2048 + ct * 8))
        E('ds_read_b64_tr_b16 v[%d:%d], v128 offset:%d' % (142 + 4 * blk, 143 + 4 * blk, 2048 + m * 2048 + ct * 8 + 256))
    for r in range(8):
        E('v_accvgpr_read_b32 v%d, a%d' % (172 + r, 144 + r))
    E('v_add_f32 v172, v172, v173\nv_add_f32 v174, v174, v175\nv_add_f32 v176, v176, v177\nv_add_f32 v178, v178, v179')
    E('v_add_f32 v172, v172, v174\nv_add_f32 v176, v176, v178')
    round_bf16(172, 172)
    round_bf16(176, 176)
    E('v_cmp_lt_u32 vcc, 31, v1')
    E('v_cndmask_b32 v173, 0, 1.0, vcc')
    E('v_add_f32 v172, v172, v173')
    E('s_cmp_eq_u32 s3, 3')
    E('s_cselect_b32 s6, 1.0, 0')
    E('v_add_f32 v176, s6, v176')
    round_bf16(176, 176)
    E('v_cvt_pk_bf16_f32 v172, v172, v172')
    E('s_lshl_b32 s6, s3, 7\ns_add_u32 s6, s6, %d' % L_SCR)
    E('v_lshlrev_b32 v173, 1, v1')
    E('v_add_u32 v173, s6, v173')
    E('ds_write_b16 v173, v172')
    E('s_lshl_b32 s7, s3, 8\ns_add_u32 s7, s7, %d' % (L_GA - 256))
    E('v_lshlrev_b32 v174, 2, v1')
    E('v_add_u32 v174, s7, v174')
    E('ds_write_b32 v174, v176')
    E('v_lshlrev_b32 v173, 4, v3')
    E('v_add_u32 v173, s6, v173')
    E('s_waitcnt lgkmcnt(0)')
    E('ds_read_b128 v[156:159], v173\nds_read_b128 v[160:163], v173 offset:64')
    E('v_lshrrev_b32 v130, 2, v2')
    E('v_lshl_add_u32 v130, v130, 3, v129')
    E('v_lshlrev_b32 v130, 2, v130')
    E('v_lshrrev_b32 v131, 1, v3')
    E('s_movk_i32 s7, 384')
    E('v_mul_lo_u32 v131, v131, s7')
    E('v_add_u32 v130, v130, v131')
    E('s_lshl_b32 s34, s5, 4\ns_add_u32 s34, s34, s4\ns_mul_i32 s34, s34, 1536\ns_lshl_b32 s6, s3, 7\ns_add_u32 s34, s34, s6\ns_add_u32 s34, s34, %d' % (OFF_UT - 128))
    for blk in range(4):
        E('v_mov_b32 v%d, 0\nv_mov_b32 v%d, 0' % (164 + 2 * blk, 165 + 2 * blk))
    E('s_waitcnt lgkmcnt(0)')
    for blk in range(4):
        E('s_add_u32 s7, s88, %d' % (blk * 16384))
        E('buffer_store_dwordx4 v[%d:%d], v4, %s, s7 offen sc1' % (140 + 4 * blk, 143 + 4 * blk, srd('WS')))
    for p in range(4):
        for blk in range(4):
            E('v_dot2_f32_bf16 v%d, v%d, v%d, v%d' % (164 + 2 * blk, 140 + 4 * blk + p, 160 + p, 164 + 2 * blk))
            E('v_dot2_f32_bf16 v%d, v%d, v%d, v%d' % (165 + 2 * blk, 140 + 4 * blk + p, 156 + p, 165 + 2 * blk))
    for blk in range(4):
        E('v_permlane32_swap_b32 v%d, v%d' % (164 + 2 * blk, 165 + 2 * blk))
    for blk in range(4):
        E('v_add_f32 v%d, v%d, v%d' % (164 + 2 * blk, 164 + 2 * blk, 165 + 2 * blk))
    for blk in range(4):
        E('v_mov_b32 v%d, v%d' % (165 + 2 * blk, 164 + 2 * blk))
    for blk in range(4):
        E('v_permlane16_swap_b32 v%d, v%d' % (164 + 2 * blk, 165 + 2 * blk))
    for blk in range(4):
        E('v_add_f32 v%d, v%d, v%d' % (164 + 2 * blk, 164 + 2 * blk, 165 + 2 * blk))
    for blk in range(4):
        m, ct = blk >> 1, blk & 1
        E('buffer_store_dword v%d, v130, %s, s34 offen offset:%d sc1' % (164 + 2 * blk, srd('WS'), m * 768 + ct * 16))
    E('s_branch ' + l1)
    E(l0 + ':')
    E('s_mov_b64 exec, 1')
    for q in range(8):
        E('buffer_load_dword a%d, v4, %s, 0 offen' % (136 + q, srd('WS')))
    E('s_mov_b64 exec, -1')
    E('s_waitcnt lgkmcnt(0)')
    E(l1 + ':')
    for ct in range(2):
        E('buffer_store_dwordx4 v[%d:%d], v4, %s, s%d offen sc1' % (132 + 4 * ct, 135 + 4 * ct, srd('WS'), 86 + ct))
    vm.seq += [('rl', 0)] * 10


def a1_grp(i):
    return ['buffer_load_dwordx4 v[%d:%d], v%d, %s, s%d offen' % (128 + i * 8 + b * 4, 131 + i * 8 + b * 4, 16 + b, srd('WS'), S_ROT + i) for b in range(2)]


def b1_grp(c, n):
    return ['s_add_u32 m0, s33, %d' % (c * 4 * 6144 + n * 1024),
            'buffer_load_dwordx4 v%d, %s, s%d offen lds' % (20 + n, srd('WS'), 28 + c)]


A1_PRE = int(os.environ.get('A1P', '5'))

KPB, VPB, QPB = 16, 28, 40
def KP(hh, b): return KPB + hh * 6 + (b + 1) * 2
def VP(hh, b): return VPB + hh * 6 + (b + 1) * 2
def QP(hh, b): return QPB + hh * 4 + b * 2


SKT = {2: 36, 4: 52}
BVO = {2: 8, 4: 248}


def splitk_setup(which):
    NKS = 4 if which == 2 else 11
    KT = 16 if which == 2 else 43
    OFFW = OFF_WOF if which == 2 else OFF_W2F
    SB = 44 if which == 2 else 72
    E('s_mul_i32 s%d, s%d, %d\ns_add_u32 s%d, s%d, %d' % (SB, S_J7, 4 * KT * 1024, SB, SB, OFFW))
    if os.environ.get('HACK'):
        E('s_mov_b32 s%d, %d' % (SB, OFFW))
    E('v_add_u32 v%d, s%d, v4' % (8 if which == 2 else 9, SB))
    if which == 2:
        if os.environ.get('ROT', 'j') == '0':
            E('s_mov_b32 s80, 0')
        else:
            E('s_and_b32 s80, s5, 3')
    else:
        if os.environ.get('ROT', 'j') == '0':
            E('s_mov_b32 s80, 0')
        else:
            E('s_mov_b32 s80, s%d' % S_J7)
    E('s_mul_i32 s81, s3, %d' % NKS)
    for pos in range(NKS):
        d = SKT[which] + pos
        if which == 2:
            E('s_add_u32 s%d, s80, %d' % (d, pos))
            E('s_and_b32 s%d, s%d, 3' % (d, d))
            E('s_add_u32 s%d, s%d, s81\ns_lshl_b32 s%d, s%d, 10' % (d, d, d, d))
        elif pos < 4:
            E('s_add_u32 s7, s3, %d\ns_mul_i32 s7, s7, 0x5556\ns_lshr_b32 s7, s7, 13\ns_lshl_b32 s%d, s7, 10' % (4 * pos, d))
        elif pos < 8:
            E('s_add_u32 s%d, s%d, 1024' % (d, d - 4))
        else:
            E('s_add_u32 s7, s3, %d\ns_lshr_b32 s6, s7, 1\ns_lshl_b32 s6, s6, 3\ns_and_b32 s%d, s7, 1\ns_mul_i32 s%d, s%d, 3\ns_add_u32 s6, s6, s%d\ns_add_u32 s6, s6, 4' % (4 * (pos - 8), d, d, d, d))
            E('s_add_u32 s7, s7, 32\ns_cmp_ge_u32 s7, 42\ns_cselect_b32 s6, s7, s6\ns_lshl_b32 s%d, s6, 10' % d)


def breg(which, pos, q):
    if which == 2:
        return 'a', 64 + (pos * 4 + q) * 4
    if pos < 7:
        return 'a', 128 + (pos * 4 + q) * 4
    return 'v', 176 + ((pos - 7) * 4 + q) * 4


def areg(which, pos, d):
    if pos < 8:
        return 'a', (pos * 4 + d) * 4
    return 'v', 128 + ((pos - 8) * 4 + d) * 4


def splitk_b_grps(which, pos):
    KT = 16 if which == 2 else 43
    grps = []
    for q in range(4):
        k, r = breg(which, pos, q)
        g_ = []
        if which == 4 and q == 0:
            g_ += ['s_cmp_ge_u32 s%d, %d' % (SKT[4] + pos, 43 * 1024), 's_cselect_b32 s63, 0x7f000000, s%d' % (SKT[4] + pos)]
        src = 63 if which == 4 else SKT[2] + pos
        if q:
            g_.append('s_add_u32 s79, s%d, %d' % (src, q * KT * 1024))
            src = 79
        g_.append('buffer_load_dwordx4 %s[%d:%d], v%d, %s, s%d offen sc1' % (k, r, r + 3, 8 if which == 2 else 9, srd('WS'), src))
        grps.append(g_)
    return grps


B4L_ROW = [4, 5, 0, 1]


def b4_lds_grps(pos):
    grps = []
    for q in range(4):
        g_ = []
        if q == 0:
            g_ += ['s_cmp_ge_u32 s%d, %d' % (SKT[4] + pos, 43 * 1024), 's_cselect_b32 s63, 0x7f000000, s%d' % (SKT[4] + pos)]
        src = 63
        if q:
            g_.append('s_add_u32 s79, s63, %d' % (q * 43 * 1024))
            src = 79
        g_ += ['s_add_u32 m0, s%d, %d' % (S_QB, B4L_ROW[pos - 7] * ROWB + q * 1024),
               'buffer_load_dwordx4 v9, %s, s%d offen sc1 lds' % (srd('WS'), src)]
        grps.append(g_)
    return grps


def p3_addr(u):
    return P3_ROW[u >> 2] * ROWB + (u & 3) * 4096


def p3_setup():
    E('s_lshl_b32 s6, s%d, 16\ns_lshl_b32 s7, s3, 14\ns_add_u32 s6, s6, s7\ns_add_u32 s6, s6, %d' % (S_PS, OFF_WF))
    if os.environ.get('HACK'):
        E('s_add_u32 s6, s7, %d' % OFF_WF)
    E('v_add_u32 v12, s6, v4')
    E('v_add_u32 v13, 0x10000, v12')
    E('v_add_u32 v14, 0x20000, v12')


def p3_b_grp(u):
    return ['s_add_u32 m0, s%d, %d' % (S_W1K, p3_addr(u)),
            'buffer_load_dwordx4 v%d, %s, s%d offen sc1 lds' % (12 + (u >> 4), srd('WS'), S_ROT + (u & 15))]


def p3_units_w123(units):
    for n, u in enumerate(units):
        for l in p3_b_grp(u):
            E(l)
    E('s_lshl_b32 s6, s3, 14')
    E('v_subrev_u32 v5, s6, v%d' % (12 + (units[0] >> 4)))
    for w in range(1, 4):
        lsk = lab('H')
        E('s_cmp_lg_u32 s3, %d' % w)
        E('s_cbranch_scc1 ' + lsk)
        for u in units[w - 1::3]:
            assert (u >> 4) == (units[0] >> 4)
            E('s_mov_b32 m0, %d' % p3_addr(u))
            E('buffer_load_dwordx4 v5, %s, s%d offen sc1 lds' % (srd('WS'), S_ROT + (u & 15)))
        E(lsk + ':')


def late_setup():
    E('v_mov_b32 v32, %s' % f32(-1e30))
    E('s_or_b32 s6, s4, s3')
    E('s_cmp_eq_u32 s6, 0')
    E('s_cselect_b32 s7, 64, 0')
    for r in range(4):
        E('v_lshl_add_u32 v33, v3, 2, %d' % r)
        E('v_sub_u32 v33, v2, v33')
        E('v_and_b32 v34, 0x80000001, v33')
        E('v_cmp_eq_u32 vcc, 0, v34')
        E('v_cndmask_b32 v35, v32, 0, vcc')
        E('v_accvgpr_write_b32 a%d, v35' % (240 + r))
        E('v_add_u32 v33, 16, v33')
        E('v_and_b32 v34, 1, v33')
        E('v_lshl_add_u32 v34, v34, 6, v33')
        E('v_cmp_gt_u32 vcc, 15, v34')
        E('v_cndmask_b32 v35, v32, 0, vcc')
        E('v_accvgpr_write_b32 a%d, v35' % (244 + r))
        E('v_add_u32 v34, s7, v34')
        E('v_cmp_gt_u32 vcc, 15, v34')
        E('v_cndmask_b32 v35, v32, 0, vcc')
        E('v_accvgpr_write_b32 a%d, v35' % (248 + r))
    splitk_setup(2)
    splitk_setup(4)
    p3_setup()


def phase1():
    vm.reset()
    stamp(0)
    E('v_lshlrev_b32 v28, 3, v0')
    for q in range(4):
        E('s_mov_b32 s6, %d' % (OFF_MODP + q * 12288))
        for h in range(2):
            r = 64 + (q * 2 + h) * 2
            vm.op('buffer_load_dwordx2 v[%d:%d], v28, %s, s6 offen offset:%d' % (r, r + 1, srd('WS'), h * 2048), ('tb', 0))
    E('s_lshl_b32 s%d, s%d, 10' % (S_ROT, S_RT))
    E('s_add_u32 s%d, s%d, 1024\ns_and_b32 s%d, s%d, 0x3fff' % (S_ROT + 1, S_ROT, S_ROT + 1, S_ROT + 1))
    E('s_mul_i32 s6, s5, %d\ns_add_u32 s6, s6, %d' % (6 * 16384, OFF_WQ))
    if os.environ.get('HACK'):
        E('s_mov_b32 s6, %d' % OFF_WQ)
    E('v_add_u32 v20, s6, v4')
    for t in range(1, 6):
        E('v_add_u32 v%d, %d, v20' % (20 + t, t * 16384))
    E('s_add_u32 s28, s%d, s%d\ns_and_b32 s28, s28, 0x3fff' % (S_ROT, S_W1K))
    E('s_mul_i32 s33, s3, 6144')
    for n in range(6):
        vm.grp(b1_grp(0, n), ('b1', 0))
    E('s_lshl_b32 s6, s%d, 14\ns_add_u32 s6, s6, %d' % (S_ROW, OFF_XH))
    E('v_add_u32 v16, s6, v4')
    E('v_add_u32 v17, 0x4000, v16')
    for i in range(2):
        vm.grp(a1_grp(i), ('a', i))
    for i in range(2, 16):
        E('s_add_u32 s%d, s%d, 1024\ns_and_b32 s%d, s%d, 0x3fff' % (S_ROT + i, S_ROT + i - 1, S_ROT + i, S_ROT + i))
    for c in range(1, 4):
        E('s_add_u32 s%d, s%d, 4096\ns_and_b32 s%d, s%d, 0x3fff' % (28 + c, 27 + c, 28 + c, 28 + c))
    for n in range(6):
        vm.grp(b1_grp(1, n), ('b1', 1))
    for i in range(2, A1_PRE):
        vm.grp(a1_grp(i), ('a', i))
    E('s_lshl_b32 s6, s%d, 4' % S_RT)
    E('v_subrev_u32 v29, s6, v0')
    E('v_and_b32 v29, 0xff, v29')
    E('v_lshrrev_b32 v30, 2, v29')
    E('v_lshlrev_b32 v30, 6, v30')
    E('v_and_b32 v29, 3, v29')
    E('v_lshl_add_u32 v30, v29, 3, v30')
    E('v_add_u32 v30, %d, v30' % L_TAB)
    E('v_add_u32 v19, 0x10000, v4')
    E('v_lshlrev_b32 v26, 6, v3')
    E('v_add_u32 v26, %d, v26' % L_TAB)
    E('s_waitcnt vmcnt(%d)' % vm.n_after([('tb', 0)]))
    for r in range(4):
        E('v_add_f32 v%d, v%d, v%d' % (64 + r, 64 + r, 68 + r))
        E('v_add_f32 v%d, v%d, v%d' % (72 + r, 72 + r, 76 + r))
    for r in range(4):
        E('v_add_f32 v%d, v%d, v%d' % (64 + r, 64 + r, 72 + r))
    for r in range(4):
        round_bf16(64 + r, 64 + r)
    for e in range(2):
        E('v_add_f32 v%d, 1.0, v%d' % (66 + e, 66 + e))
        round_bf16(66 + e, 66 + e)
    E('ds_write_b64 v30, v[66:67]\nds_write_b64 v30, v[64:65] offset:32')
    E('v_and_b32 v29, 31, v1')
    E('v_lshrrev_b32 v31, 5, v1')
    E('v_lshlrev_b32 v31, 11, v31')
    E('v_lshl_add_u32 v29, v29, 2, v31')
    E('s_lshl_b32 s35, s4, 7')
    for q in range(4):
        E('s_add_u32 s6, s35, %d' % (OFF_MODP + q * 12288 + 1536 * 4))
        vm.op('buffer_load_dword a%d, v29, %s, s6 offen' % (144 + q, srd('WS')), ('sm', 0))
    E('v_lshlrev_b32 v29, 2, v1')
    E('s_cmp_eq_u32 s3, 2')
    E('s_cselect_b32 s6, 5, 2')
    E('s_cmp_eq_u32 s3, 3')
    E('s_cselect_b32 s6, 4, s6')
    E('s_lshl_b32 s6, s6, 9')
    E('s_add_u32 s6, s6, s%d\ns_lshl_b32 s35, s6, 2' % S_C0)
    for q in range(4):
        E('s_add_u32 s6, s35, %d' % (OFF_MODP + q * 12288))
        vm.op('buffer_load_dword a%d, v29, %s, s6 offen' % (148 + q, srd('WS')), ('sm', 0))
    relayout_issue()
    stamp(1)
    ACC = 64
    TB = (32, 232)

    def bread(pos, buf, ts=range(6), dyn=None):
        out = []
        for t in ts:
            off = pos * 6144 + t * 1024
            d = buf * 24 + t * 4
            if dyn is not None:
                out.append('ds_read_b128 a[%d:%d], v%d offset:%d' % (d, d + 3, dyn, off))
            else:
                out.append('ds_read_b128 a[%d:%d], v%d offset:%d' % (d, d + 3, 4 if off < 65536 else 19, off & 0xffff))
        return out

    def tread(ks, T, base=26):
        return ['ds_read_b128 v[%d:%d], v%d offset:%d' % (T + 4 * q + (2 if q >= 2 else 0), T + 4 * q + 3 + (2 if q >= 2 else 0), base, ks * 256 + q * 16) for q in range(4)]

    TMP = {48: [51 + e for e in range(8)], 56: [59, 60, 61, 62, 63, 40, 41, 50]}
    TMP[56] = [59, 60, 61, 62, 63, 248, 249, 250] if False else [59, 60, 61, 62, 63, 28, 29, 30]

    def modulate(src, T, tmp):
        t = TMP[tmp]
        un, fm, cv = [], [], []
        for e in range(8):
            fm.append('v_fma_mix_f32 v%d, v%d, v%d, v%d op_sel:[%d,0,0] op_sel_hi:[1,0,0]' % (t[e], src + e // 2, T + e, T + 10 + e, e & 1))
        for p in range(4):
            cv.append('v_cvt_pk_bf16_f32 v%d, v%d, v%d' % (src + p, t[2 * p], t[2 * p + 1]))
        return un, fm, cv

    def mm(acc, af, bf, seg, first):
        c = '0' if first else 'v[%d:%d]' % (acc, acc + 3)
        if seg < 2:
            return 'v_mfma_f32_16x16x32_bf16 v[%d:%d], a[%d:%d], v[%d:%d], %s' % (acc, acc + 3, bf, bf + 3, af, af + 3, c)
        return 'v_mfma_f32_16x16x32_bf16 v[%d:%d], v[%d:%d], a[%d:%d], %s' % (acc, acc + 3, af, af + 3, bf, bf + 3, c)

    def mod2(ks):
        u0, f0, c0 = modulate(128 + ks * 8, 32, 48)
        u1, f1, c1 = modulate(132 + ks * 8, 32, 56)
        return u0 + u1, f0 + f1, c0 + c1

    bg = {ks: [] for ks in range(16)}
    for i in range(A1_PRE, 16):
        bg[i - A1_PRE].append((a1_grp(i), ('a', i)))
    for n in range(6):
        bg[n // 2].append((b1_grp(2, n), ('b1', 2)))
        bg[4 + n // 2].append((b1_grp(3, n), ('b1', 3)))
    for q in range(4):
        bg[11 + q // 2].append((['buffer_load_dwordx4 a[%d:%d], v18, %s, s%d offen' % (48 + 4 * q, 51 + 4 * q, srd('WS'), 82 + q)], ('h', 0)))
    global BGS
    BGS = [p3_b_grp(u) for u in range(0, 12)]
    BGS2 = [p3_b_grp(u) for u in range(12, 24)]
    E('s_lshl_b32 s6, s4, 17\ns_add_u32 s6, s6, %d' % (OFF_XH - 16384))
    E('s_cmp_eq_u32 s4, 0')
    E('s_cselect_b32 s6, 0x7f000000, s6')
    E('v_add_u32 v18, s6, v4')
    for q in range(4):
        E('s_lshl_b32 s6, s3, 12\ns_add_u32 s6, s6, s%d\ns_add_u32 s6, s6, %d\ns_and_b32 s%d, s6, 0x3fff' % (S_ROT, q * 1024, 82 + q))
    late_setup()
    E('s_waitcnt vmcnt(%d) lgkmcnt(0)' % vm.n_after([('b1', 0), ('a', 0)]))
    E('s_barrier')
    stamp(3)
    stamp(30, True)
    for o in tread(0, 32) + bread(0, 0):
        E(o)
    E('s_waitcnt lgkmcnt(6)')
    u0_, m0_, c0_ = mod2(0)
    for o in u0_ + m0_ + tread(1, 32) + c0_:
        E(o)
    for ks in range(16):
        buf = ks & 1
        if ks in (3, 7, 11):
            E('s_waitcnt vmcnt(%d)' % vm.n_after([('b1', (ks + 1) // 4)] + ([('rl', 0)] if ks == 11 else []) + ([('rd', 0), ('sm', 0)] if ks == 7 else [])))
            E('s_barrier')
            if ks == 7:
                relayout_process()
        if ks == 13:
            arrive_u(CW, barrier=False, soff=S_CNTJ)
            E('s_lshl_b32 s35, s%d, 10' % S_J7)
            arrive_u(CV, barrier=False, soff=35)
        if ks + 1 < 16:
            E('s_waitcnt lgkmcnt(4)')
            u_, m_, c_ = mod2(ks + 1)
            valu = m_ + c_
            br = bread(ks + 1, buf ^ 1)
            tr = tread(ks + 2, 32) if ks + 2 < 16 else []
        else:
            E('s_waitcnt lgkmcnt(0)')
            valu, br, tr = [], [], []
        mf = [mm(ACC + (b * 6 + t) * 4, 128 + ks * 8 + 4 * b, buf * 24 + t * 4, t // 2, ks == 0) for t in range(6) for b in range(2)]
        grp = list(bg[ks])
        for i, x_ in enumerate(mf):
            E(x_)
            if i < 6 and br:
                E(br.pop(0))
            if i == 2 and valu:
                E('s_waitcnt vmcnt(%d) lgkmcnt(3)' % vm.n_after([('a', ks + 1)]))
            if 2 <= i < 6:
                for o in valu[4 * (i - 2):4 * (i - 2) + 4]:
                    E(o)
            if 6 <= i < 10:
                if tr:
                    E(tr.pop(0))
                for o in valu[16 + 2 * (i - 6):16 + 2 * (i - 6) + 2]:
                    E(o)
            if grp and i % 3 == 1:
                g_, tag = grp.pop(0)
                vm.grp(g_, tag)
        assert not grp
    stamp(19)
    stamp(31, True)
    E('s_mul_i32 s6, s3, %d' % (4 * 6144))
    E('v_add_u32 v27, s6, v4')
    E('s_lshl_b32 s6, s3, 10')
    E('v_add_u32 v31, s6, v26')
    for q in range(4):
        for o in tread(q, 128 + 20 * q, 31):
            E(o)
    for q in range(2):
        for o in bread(q, q, range(2, 6), 27):
            E(o)
    E('s_waitcnt vmcnt(%d)' % vm.n_after([('h', 0)]))
    for r in range(16):
        E('v_accvgpr_read_b32 v%d, a%d' % (208 + r, 48 + r))
    E('s_waitcnt lgkmcnt(8)')
    for q2 in range(2):
        u0, f0, c0 = modulate(208 + 8 * q2, 128 + 40 * q2, 48)
        u1, f1, c1 = modulate(212 + 8 * q2, 148 + 40 * q2, 56)
        for o in u0 + u1 + f0 + f1 + c0 + c1:
            E(o)
    E('s_waitcnt lgkmcnt(0)')
    for q in range(2):
        for t in range(2, 6):
            E(mm(112 + (t - 2) * 4, 208 + 4 * q, q * 24 + t * 4, t // 2, q == 0))
    for q in range(2, 4):
        for o in bread(q, q & 1, range(2, 6), 27):
            E(o)
    E('v_mov_b32 v6, %d' % CW)
    E('s_lshl_b32 s6, s%d, 10' % S_J7)
    vm.op('buffer_load_dword v7, v6, %s, s%d offen sc1' % (srd('WS'), S_CNTJ), ('ck', 0))
    vm.op('buffer_load_dword v15, v6, %s, s6 offen offset:128 sc1' % srd('WS'), ('ck', 0))
    for b in range(2):
        for hh in range(2):
            for seg, fn in ((0, QP), (1, KP), (2, VP)):
                a = ACC + (b * 6 + seg * 2 + hh) * 4
                d = fn(hh, b)
                E('v_cvt_pk_bf16_f32 v%d, v%d, v%d' % (d, a, a + 1))
                E('v_cvt_pk_bf16_f32 v%d, v%d, v%d' % (d + 1, a + 2, a + 3))
    E('s_waitcnt lgkmcnt(0)')
    for q in range(2, 4):
        for t in range(2, 6):
            E(mm(112 + (t - 2) * 4, 208 + 4 * q, (q & 1) * 24 + t * 4, t // 2, False))
    E('v_lshlrev_b32 v52, 3, v1')
    E('s_lshl_b32 s6, s3, 11\ns_add_u32 s6, s6, %d' % L_XCH)
    E('v_add_u32 v53, s6, v52')
    E('s_add_u32 s6, s3, 1\ns_and_b32 s6, s6, 3\ns_lshl_b32 s6, s6, 11\ns_add_u32 s6, s6, %d' % L_XCH)
    E('v_add_u32 v55, s6, v52')
    E('ds_write_b64 v55, v[%d:%d]' % (KP(0, 1), KP(0, 1) + 1))
    E('ds_write_b64 v55, v[%d:%d] offset:512' % (KP(1, 1), KP(1, 1) + 1))
    E('ds_write_b64 v55, v[%d:%d] offset:1024' % (VP(0, 1), VP(0, 1) + 1))
    E('ds_write_b64 v55, v[%d:%d] offset:1536' % (VP(1, 1), VP(1, 1) + 1))
    for r in range(12):
        E('v_accvgpr_read_b32 v%d, a%d' % (64 + r, 240 + r))
    E('v_add_u32 v54, s%d, v4' % S_QB)
    E('s_barrier')
    stamp(4)
    E('s_waitcnt vmcnt(0)')
    lok1, lok2 = lab('CK'), lab('CK')
    E('v_cmp_gt_u32 vcc, 16, v7')
    E('s_cbranch_vccz ' + lok1)
    poll_ge(S_CNTJ, CW, 16)
    E(lok1 + ':')
    E('v_cmp_gt_u32 vcc, 32, v15')
    E('s_cbranch_vccz ' + lok2)
    E('s_lshl_b32 s35, s%d, 10' % S_J7)
    poll_ge(35, CV, 32)
    E(lok2 + ':')
    for pos in range(4):
        for g_ in splitk_b_grps(2, pos):
            vm.grp(g_, ('b2', pos))
    pace_on(PACE0)
    for t in range(4):
        E('ds_write_b128 v54, v[%d:%d] offset:%d' % (112 + 4 * t, 115 + 4 * t, L_HP + 1024 * t))
    BGS += BGS2
    E('s_mov_b32 s6, %s' % f32(0.25 * LOG2E))
    E('v_and_b32 v77, 1, v3')
    E('v_lshlrev_b32 v77, 9, v77')
    E('v_lshrrev_b32 v78, 1, v3')
    E('v_lshl_add_u32 v77, v78, 8, v77')
    E('v_lshl_add_u32 v77, v2, 4, v77')
    E('s_lshl_b32 s34, s%d, 14\ns_lshl_b32 s35, s5, 10\ns_add_u32 s34, s34, s35\ns_add_u32 s34, s34, %d' % (S_ROW, OFF_O))
    E('s_add_u32 s35, s34, 16384')
    E('s_waitcnt lgkmcnt(0)')
    E('s_barrier')
    pace_off()
    lw0, ljn = lab('A0'), lab('AJ')
    E('s_cmp_eq_u32 s3, 0')
    E('s_cbranch_scc1 ' + lw0)
    E('ds_read_b64 v[%d:%d], v53' % (KP(0, -1), KP(0, -1) + 1))
    E('ds_read_b64 v[%d:%d], v53 offset:512' % (KP(1, -1), KP(1, -1) + 1))
    E('ds_read_b64 v[%d:%d], v53 offset:1024' % (VP(0, -1), VP(0, -1) + 1))
    E('ds_read_b64 v[%d:%d], v53 offset:1536' % (VP(1, -1), VP(1, -1) + 1))
    E('s_waitcnt lgkmcnt(0)')
    E('s_branch ' + ljn)
    E(lw0 + ':')
    for w in range(1, 4):
        for t in range(4):
            E('ds_read_b128 v[%d:%d], v54 offset:%d' % (128 + 16 * w + 4 * t, 131 + 16 * w + 4 * t, L_HP + w * 4096 + t * 1024))
    E('s_waitcnt lgkmcnt(0)')
    for r in range(16):
        E('v_add_f32 v%d, v%d, v%d' % (112 + r, 112 + r, 144 + r))
        E('v_add_f32 v%d, v%d, v%d' % (160 + r, 160 + r, 176 + r))
    for r in range(16):
        E('v_add_f32 v%d, v%d, v%d' % (112 + r, 112 + r, 160 + r))
    for t, d in enumerate((KP(0, -1), KP(1, -1), VP(0, -1), VP(1, -1))):
        E('v_cvt_pk_bf16_f32 v%d, v%d, v%d' % (d, 112 + 4 * t, 113 + 4 * t))
        E('v_cvt_pk_bf16_f32 v%d, v%d, v%d' % (d + 1, 114 + 4 * t, 115 + 4 * t))
    E(ljn + ':')
    pace_on(PACE1)
    combos = [(b, hh) for b in (1, 0) for hh in range(2)]
    for c, (b, hh) in enumerate(combos):
        S = 128 + c * 8
        E('v_mfma_f32_16x16x16_bf16 v[%d:%d], v[%d:%d], v[%d:%d], 0' % (S, S + 3, KP(hh, b - 1), KP(hh, b - 1) + 1, QP(hh, b), QP(hh, b) + 1))
        E('v_mfma_f32_16x16x16_bf16 v[%d:%d], v[%d:%d], v[%d:%d], 0' % (S + 4, S + 7, KP(hh, b), KP(hh, b) + 1, QP(hh, b), QP(hh, b) + 1))

    def each(fn):
        for c, (b, hh) in enumerate(combos):
            fn(c, b, hh, 128 + c * 8, 160 + c * 2, 168 + c * 4)
    each(lambda c, b, hh, S, M, PB: [E('v_fma_f32 v%d, v%d, s6, v%d' % (S + r, S + r, ((72 + r if b == 0 else 68 + r) if r < 4 else 64 + r - 4))) for r in range(8)])
    each(lambda c, b, hh, S, M, PB: (E('v_max3_f32 v%d, v%d, v%d, v%d' % (M, S, S + 1, S + 2)), E('v_max3_f32 v%d, v%d, v%d, v%d' % (M + 1, S + 3, S + 4, S + 5))))
    each(lambda c, b, hh, S, M, PB: (E('v_max3_f32 v%d, v%d, v%d, v%d' % (M, M, S + 6, S + 7)), E('v_max_f32 v%d, v%d, v%d' % (M, M, M + 1))))
    for sw in ('v_permlane32_swap_b32', 'v_permlane16_swap_b32'):
        each(lambda c, b, hh, S, M, PB: E('v_mov_b32 v%d, v%d' % (M + 1, M)))
        each(lambda c, b, hh, S, M, PB: E('%s v%d, v%d' % (sw, M, M + 1)))
        each(lambda c, b, hh, S, M, PB: E('v_max_f32 v%d, v%d, v%d' % (M, M, M + 1)))
    each(lambda c, b, hh, S, M, PB: [E('v_sub_f32 v%d, v%d, v%d' % (S + r, S + r, M)) for r in range(8)])
    each(lambda c, b, hh, S, M, PB: [E('v_exp_f32 v%d, v%d' % (S + r, S + r)) for r in range(8)])
    each(lambda c, b, hh, S, M, PB: (E('v_add_f32 v%d, v%d, v%d' % (M, S, S + 1)), E('v_add_f32 v%d, v%d, v%d' % (M + 1, S + 2, S + 3)),
                                     E('v_add_f32 v%d, v%d, v%d' % (PB, S + 4, S + 5)), E('v_add_f32 v%d, v%d, v%d' % (PB + 1, S + 6, S + 7))))
    each(lambda c, b, hh, S, M, PB: (E('v_add_f32 v%d, v%d, v%d' % (M, M, M + 1)), E('v_add_f32 v%d, v%d, v%d' % (PB, PB, PB + 1))))
    each(lambda c, b, hh, S, M, PB: E('v_add_f32 v%d, v%d, v%d' % (M, M, PB)))
    for sw in ('v_permlane32_swap_b32', 'v_permlane16_swap_b32'):
        each(lambda c, b, hh, S, M, PB: E('v_mov_b32 v%d, v%d' % (M + 1, M)))
        each(lambda c, b, hh, S, M, PB: E('%s v%d, v%d' % (sw, M, M + 1)))
        each(lambda c, b, hh, S, M, PB: E('v_add_f32 v%d, v%d, v%d' % (M, M, M + 1)))
    each(lambda c, b, hh, S, M, PB: E('v_rcp_f32 v%d, v%d' % (M, M)))
    each(lambda c, b, hh, S, M, PB: [E('v_mul_f32 v%d, v%d, v%d' % (S + r, S + r, M)) for r in range(8)])
    each(lambda c, b, hh, S, M, PB: [E('v_cvt_pk_bf16_f32 v%d, v%d, v%d' % (PB + p, S + 2 * p, S + 2 * p + 1)) for p in range(4)])
    each(lambda c, b, hh, S, M, PB: E('v_mfma_f32_16x16x32_bf16 v[%d:%d], v[%d:%d], v[%d:%d], 0' % (184 + c * 4, 187 + c * 4, VP(hh, b - 1), VP(hh, b - 1) + 3, PB, PB + 3)))
    pace_off()
    for i, b in enumerate((1, 0)):
        O = 184 + i * 8
        D = 200 + i * 4
        for q in range(4):
            E('v_cvt_pk_bf16_f32 v%d, v%d, v%d' % (D + q, O + 2 * q, O + 2 * q + 1))
    for i, b in enumerate((1, 0)):
        D = 200 + i * 4
        E('v_permlane16_swap_b32 v%d, v%d' % (D, D + 2))
        E('v_permlane16_swap_b32 v%d, v%d' % (D + 1, D + 3))
        E('buffer_store_dwordx4 v[%d:%d], v77, %s, s%d offen sc1' % (D, D + 3, srd('WS'), 34 + b))
    stamp(5)


def ut_loads():
    E('s_sub_u32 s63, s3, 1')
    E('v_lshlrev_b32 v28, 5, v3')
    E('s_lshl_b32 s35, s4, 7')
    for q in range(4):
        E('s_add_u32 s6, s35, %d' % (OFF_MODP + q * 12288 + 1536 * 4))
        for h in range(4):
            r = 192 + (q * 4 + h) * 4
            E('buffer_load_dwordx4 v[%d:%d], v28, %s, s6 offen offset:%d' % (r, r + 3, srd('WS'), (h >> 1) * 2048 + (h & 1) * 16))
    E('v_lshlrev_b32 v29, 4, v2')
    E('s_cmp_eq_u32 s3, 2')
    E('s_cselect_b32 s6, 5, 2')
    E('s_cmp_eq_u32 s3, 3')
    E('s_cselect_b32 s6, 4, s6')
    E('s_lshl_b32 s6, s6, 9')
    E('s_add_u32 s6, s6, s%d\ns_lshl_b32 s35, s6, 2' % S_C0)
    for q in range(4):
        E('s_add_u32 s6, s35, %d' % (OFF_MODP + q * 12288))
        E('buffer_load_dwordx4 v[%d:%d], v29, %s, s6 offen' % (64 + 4 * q, 67 + 4 * q, srd('WS')))


def ut_compute():
    for r in range(16):
        E('v_add_f32 v%d, v%d, v%d' % (192 + r, 192 + r, 208 + r))
        E('v_add_f32 v%d, v%d, v%d' % (224 + r, 224 + r, 240 + r))
    for r in range(16):
        E('v_add_f32 v%d, v%d, v%d' % (192 + r, 192 + r, 224 + r))
    for e in range(8):
        round_bf16(200 + e, 200 + e)
        E('v_add_f32 v%d, 1.0, v%d' % (200 + e, 200 + e))
    for p in range(4):
        E('v_cvt_pk_bf16_f32 v%d, v%d, v%d' % (208 + p, 192 + 2 * p, 193 + 2 * p))
        E('v_cvt_pk_bf16_f32 v%d, v%d, v%d' % (212 + p, 200 + 2 * p, 201 + 2 * p))
    for r in range(8):
        E('v_accvgpr_write_b32 a%d, v%d' % (128 + r, 208 + r))
    E('s_cmp_eq_u32 s3, 3')
    E('s_cselect_b32 s6, 1.0, 0')
    for r in range(4):
        E('v_add_f32 v%d, v%d, v%d' % (64 + r, 64 + r, 68 + r))
        E('v_add_f32 v%d, v%d, v%d' % (72 + r, 72 + r, 76 + r))
        E('v_add_f32 v%d, v%d, v%d' % (64 + r, 64 + r, 72 + r))
        round_bf16(64 + r, 64 + r)
        E('v_add_f32 v%d, s6, v%d' % (64 + r, 64 + r))
        round_bf16(64 + r, 64 + r)
    E('s_lshl_b32 s6, s63, 8\ns_add_u32 s6, s6, %d' % L_GA)
    E('v_add_u32 v5, s6, v29')
    E('ds_write_b128 v5, v[64:67]')


def gather_ut(half):
    E('s_mul_i32 s34, s5, %d\ns_add_u32 s34, s34, %d' % (16 * 1536, OFF_UT + half * 1024))
    if half:
        E('s_mov_b32 exec_lo, -1\ns_mov_b32 exec_hi, 0')
    for kg in range(16):
        E('s_add_u32 s35, s34, %d' % (kg * 1536))
        E('buffer_load_dwordx4 v[%d:%d], v4, %s, s35 offen sc1' % (128 + 4 * kg, 131 + 4 * kg, srd('WS')))
    E('s_waitcnt vmcnt(0)')
    for step in (8, 4, 2, 1):
        for kg in range(step):
            for r in range(4):
                E('v_add_f32 v%d, v%d, v%d' % (128 + 4 * kg + r, 128 + 4 * kg + r, 128 + 4 * (kg + step) + r))
    E('v_add_u32 v5, %d, v4' % (L_UT + half * 1024))
    E('ds_write_b128 v5, v[128:131]')
    E('s_mov_b64 exec, -1')
    E('s_waitcnt lgkmcnt(0)')


def sync_window(cnt, common, jobs):
    E('s_waitcnt vmcnt(0)')
    E('s_barrier')
    lo, le = lab('SO'), lab('SE')
    E('s_cmp_lg_u32 s3, 0')
    E('s_cbranch_scc1 ' + lo)
    arrive(S_CNTG, cnt)
    poll_ge(S_CNTG, cnt, 16)
    E('s_branch ' + le)
    E(lo + ':')
    if common:
        common()
    for w in jobs:
        lsk = lab('SJ')
        E('s_cmp_lg_u32 s3, %d' % w)
        E('s_cbranch_scc1 ' + lsk)
        jobs[w]()
        E(lsk + ':')
    E(le + ':')
    E('s_barrier')


def splitk_phase(which, nb_pre, bg_loop=(), bg_red=()):
    NKS = 4 if which == 2 else 11
    KTOT = 16 if which == 2 else 43
    AOFF = OFF_O if which == 2 else OFF_HH
    APRE = int(os.environ.get('APRE', '4'))
    st0 = 6 if which == 2 else 11
    stamp(st0)
    if which == 2:
        vm.reset()
    E('s_lshr_b32 s6, s%d, 4' % S_R0)
    for d in range(4):
        E('s_add_u32 s7, s3, %d\ns_and_b32 s7, s7, 3\ns_add_u32 s7, s7, s6\ns_mul_i32 s7, s7, %d\ns_add_u32 s7, s7, %d' % (d, KTOT * 1024, AOFF))
        E('v_add_u32 v%d, s7, v4' % (20 + d))

    def a_grps(pos):
        grps = []
        for d in range(4):
            g_ = []
            so = SKT[which] + pos
            if which == 4:
                if d == 0:
                    g_.append('s_min_u32 s35, s%d, %d' % (so, 42 * 1024))
                so = 35
            k, r = areg(which, pos, d)
            g_.append('buffer_load_dwordx4 %s[%d:%d], v%d, %s, s%d offen sc1' % (k, r, r + 3, 20 + d, srd('WS'), so))
            grps.append(g_)
        return grps
    TA = 'a' if which == 2 else 'a4'
    if which == 4:
        E('s_waitcnt vmcnt(%d)' % vm.n_after([('cka', 0)]))
        check_or_poll(7, CHA)
    for pos in range(min(APRE, NKS)):
        for g_ in a_grps(pos):
            vm.grp(g_, (TA, pos))
    if which == 4:
        E('v_mov_b32 v6, %d' % CHB)
        vm.op('buffer_load_dword v7, v6, %s, s%d offen sc1' % (srd('WS'), S_CNTG), ('ckb', 0))
        E('s_waitcnt vmcnt(%d)' % vm.n_after([('hs2', 0)]))
        arrive_u(CH)
    E('s_lshl_b32 s34, s3, 4\ns_add_u32 s34, s34, s%d' % S_R0)
    E('v_add_u32 v24, s34, v2')
    E('v_lshlrev_b32 v25, 10, v24')
    E('v_lshl_add_u32 v25, v3, 4, v25')
    E('v_add_u32 v16, s%d, v4' % S_QB)
    ACC = 64
    if which == 2:
        vm.grp(['s_lshl_b32 s35, s%d, 1' % S_C0, 'buffer_load_dwordx4 v[160:163], v25, %s, s35 offen' % srd('X'),
                'buffer_load_dwordx4 v[164:167], v25, %s, s35 offen offset:64' % srd('X')], ('x', 0))
    bgq = list(bg_loop)
    nb = nb_pre
    for pos in range(NKS):
        if which == 4 and pos == 0:
            E('s_waitcnt vmcnt(%d)' % vm.n_after([('ckb', 0)]))
            check_or_poll(7, CHB)
        if which == 4 and pos == 3:
            E('v_mov_b32 v6, %d' % CH)
            vm.op('buffer_load_dword v7, v6, %s, s%d offen sc1' % (srd('WS'), S_CNTG), ('ckc', 0))
        if which == 4 and pos == 4:
            E('s_waitcnt vmcnt(%d)' % vm.n_after([('ckc', 0)]))
            check_or_poll(7, CH)
        E('s_waitcnt vmcnt(%d)' % vm.n_after([(TA, pos), ('b', pos)]))
        if which == 4 and pos == 1:
            E('v_add_u32 v17, 0x10000, v16')
            for pp in range(7, 11):
                for q in range(4):
                    k_, r_ = breg(4, pp, q)
                    off = B4L_ROW[pp - 7] * ROWB + q * 1024
                    E('ds_read_b128 v[%d:%d], v%d offset:%d' % (r_, r_ + 3, 16 + (off >> 16), off & 0xffff))
        if which == 4 and pos == 7:
            E('s_waitcnt lgkmcnt(0)')
        grp = []
        if pos + APRE < NKS:
            grp += [(g_, (TA, pos + APRE)) for g_ in a_grps(pos + APRE)]
        if nb < NKS:
            grp += [(g_, ('b', nb)) for g_ in splitk_b_grps(which, nb)]
            nb += 1
        while bgq and len(grp) < 8 and pos + APRE >= NKS:
            grp.append((bgq.pop(0), ('bg', 0)))
        i = 0
        for d in range(4):
            for ct in range(4):
                acc = ACC + (d * 4 + ct) * 4
                bk, bf = breg(which, pos, ct)
                ak, af = areg(which, pos, d)
                c = '0' if pos == 0 else 'v[%d:%d]' % (acc, acc + 3)
                E('v_mfma_f32_16x16x32_bf16 v[%d:%d], %s[%d:%d], %s[%d:%d], %s' % (acc, acc + 3, bk, bf, bf + 3, ak, af, af + 3, c))
                if grp and i % 2 == 1:
                    g_, tag = grp.pop(0)
                    vm.grp(g_, tag)
                i += 1
        assert not grp
    assert not bgq
    stamp(st0 + 1)
    for d in range(1, 4):
        E('s_add_u32 s7, s3, %d\ns_and_b32 s7, s7, 3\ns_lshl_b32 s7, s7, 12\ns_add_u32 s7, s7, %d' % (d, (RED_ROW + d - 1) * ROWB))
        E('v_add_u32 v%d, s7, v4' % (26 + d))
    E('v_lshlrev_b32 v22, 5, v3')
    E('v_add_u32 v22, %d, v22' % L_GA)
    go = 0 if which == 2 else 256
    for c in range(2):
        for hlf in range(2):
            E('ds_read_b128 v[%d:%d], v22 offset:%d' % (168 + c * 8 + hlf * 4, 171 + c * 8 + hlf * 4, go + c * 128 + hlf * 16))
    if which == 2:
        for c in range(2):
            for hlf in range(2):
                E('ds_read_b128 v[%d:%d], v22 offset:%d' % (208 + c * 8 + hlf * 4, 211 + c * 8 + hlf * 4, 512 + c * 128 + hlf * 16))
    if which == 4:
        E('s_barrier')
    for d in range(1, 4):
        for ct in range(4):
            acc = ACC + (d * 4 + ct) * 4
            E('ds_write_b128 v%d, v[%d:%d] offset:%d' % (26 + d, acc, acc + 3, ct * 1024))
    for g_ in bg_red:
        vm.grp(g_, ('bg', 0))
    if which == 4:
        for r in range(8):
            E('v_accvgpr_read_b32 v%d, a%d' % (160 + r, 240 + r))
    else:
        E('s_waitcnt vmcnt(%d)' % vm.n_after([('x', 0)]))
    for i in range(16):
        src = 160 + i // 2
        if i % 2 == 0:
            E('v_lshlrev_b32 v%d, 16, v%d' % (192 + i, src))
        else:
            E('v_and_b32 v%d, 0xffff0000, v%d' % (192 + i, src))
    E('v_add_u32 v26, %d, v16' % (RED_ROW * ROWB))
    E('s_waitcnt lgkmcnt(0)')
    E('s_barrier')
    for d in range(1, 4):
        for ct in range(4):
            acc = ACC + (d * 4 + ct) * 4
            E('ds_read_b128 v[%d:%d], v26 offset:%d' % (acc, acc + 3, (d - 1) * ROWB + ct * 1024))
    E('s_waitcnt lgkmcnt(8)')
    for r in range(16):
        E('v_add_f32 v%d, v%d, v%d' % (ACC + r, ACC + r, ACC + 16 + r))
    E('s_waitcnt lgkmcnt(0)')
    for r in range(16):
        E('v_add_f32 v%d, v%d, v%d' % (ACC + 32 + r, ACC + 32 + r, ACC + 48 + r))
    for r in range(16):
        E('v_add_f32 v%d, v%d, v%d' % (ACC + r, ACC + r, ACC + 32 + r))
    for i in range(16):
        E('v_fma_f32 v%d, v%d, v%d, v%d' % (ACC + i, ACC + i, 168 + i, 192 + i))
    for p in range(8):
        E('v_cvt_pk_bf16_f32 v%d, v%d, v%d' % (184 + p, ACC + 2 * p, ACC + 2 * p + 1))
    if which == 2:
        for p in range(8):
            E('v_lshlrev_b32 v%d, 16, v%d' % (ACC + 2 * p, 184 + p))
            E('v_and_b32 v%d, 0xffff0000, v%d' % (ACC + 2 * p + 1, 184 + p))
        for i in range(16):
            E('v_mul_f32 v%d, v%d, v%d' % (208 + i, ACC + i, 208 + i))
        for p in range(8):
            E('v_cvt_pk_bf16_f32 v%d, v%d, v%d' % (224 + p, 208 + 2 * p, 209 + 2 * p))
        E('s_lshr_b32 s34, s%d, 4\ns_add_u32 s34, s34, s3\ns_lshl_b32 s34, s34, 14' % S_R0)
        E('s_lshl_b32 s35, s%d, 5\ns_add_u32 s34, s34, s35\ns_add_u32 s34, s34, %d' % (S_C0, OFF_X1))
        E('buffer_store_dwordx4 v[224:227], v4, %s, s34 offen sc1' % srd('WS'))
        E('buffer_store_dwordx4 v[228:231], v4, %s, s34 offen offset:1024 sc1' % srd('WS'))
        for step in (8, 4, 2, 1):
            for i in range(step):
                E('v_add_f32 v%d, v%d, v%d' % (96 + i, (ACC if step == 8 else 96) + i, (ACC if step == 8 else 96) + i + step))
        allreduce_lg('v_add_f32', 96, 28)
        E('v_mul_f32 v26, %s, v96' % f32(1.0 / 64))
        for i in range(16):
            E('v_sub_f32 v%d, v%d, v26' % (ACC + i, ACC + i))
        for i in range(4):
            E('v_mul_f32 v%d, v%d, v%d' % (96 + i, ACC + i, ACC + i))
        for i in range(4, 16):
            E('v_fmac_f32 v%d, v%d, v%d' % (96 + (i & 3), ACC + i, ACC + i))
        E('v_add_f32 v96, v96, v97\nv_add_f32 v98, v98, v99\nv_add_f32 v27, v96, v98')
        allreduce_lg('v_add_f32', 27, 28)
        E('v_lshlrev_b32 v28, 3, v24')
        E('s_lshl_b32 s35, s%d, 14\ns_add_u32 s35, s35, %d' % (S_J7, OFF_ST))
        E('s_mov_b64 exec, 0xffff')
        E('buffer_store_dwordx2 v[26:27], v28, %s, s35 offen sc1' % srd('WS'))
        E('s_mov_b64 exec, -1')
        for r in range(8):
            E('v_accvgpr_write_b32 a%d, v%d' % (240 + r, 184 + r))
    else:
        E('s_lshl_b32 s35, s%d, 1' % S_C0)
        E('buffer_store_dwordx4 v[184:187], v25, %s, s35 offen' % srd('OUT'))
        E('buffer_store_dwordx4 v[188:191], v25, %s, s35 offen offset:64' % srd('OUT'))
    stamp(st0 + 2)


A3_PRE = int(os.environ.get('A3P', '6'))
NB4_EARLY = int(os.environ.get('NB4E', '2'))


def arrive_u(cnt, barrier=True, soff=None, n=1):
    if barrier:
        E('s_barrier')
    E('s_cmp_eq_u32 s3, 0')
    E('s_cselect_b32 s6, s%d, 0x7f000000' % (soff if soff is not None else S_CNTG))
    E('s_mov_b64 exec, 1')
    E('v_mov_b32 v5, 1')
    E('v_mov_b32 v6, %d' % cnt)
    vm.op('buffer_atomic_add v5, v6, %s, s6 offen' % srd('WS'), ('arr', 0))
    E('s_mov_b64 exec, -1')


def check_or_poll(reg, cnt):
    lok = lab('CK')
    E('v_cmp_gt_u32 vcc, 16, v%d' % reg)
    E('s_cbranch_vccz ' + lok)
    poll_ge(S_CNTG, cnt, 16)
    E(lok + ':')


def phase3():
    stamp(9)
    vm.reset()
    E('s_lshl_b32 s6, s%d, 14\ns_add_u32 s6, s6, %d' % (S_ROW, OFF_X1))
    E('v_add_u32 v20, s6, v4')
    E('v_add_u32 v21, 0x4000, v20')
    E('s_lshl_b32 s7, s%d, 7\ns_add_u32 s7, s7, %d' % (S_ROW, OFF_ST))
    E('v_lshlrev_b32 v22, 3, v2')
    E('v_add_u32 v22, s7, v22')

    def a_grp(i):
        return ['buffer_load_dwordx4 a[%d:%d], v%d, %s, s%d offen sc1' % (i * 8 + b * 4, i * 8 + b * 4 + 3, 20 + b, srd('WS'), S_ROT + i) for b in range(2)]
    for i in range(A3_PRE):
        vm.grp(a_grp(i), ('a', i))
    for t in range(8):
        E('s_mov_b32 s35, %d' % (t * 16384))
        for b in range(2):
            vm.op('buffer_load_dwordx2 v[%d:%d], v22, %s, s35 offen offset:%d sc1' % (192 + b * 16 + 2 * t, 193 + b * 16 + 2 * t, srd('WS'), b * 128), ('st', 0))
    E('v_add_u32 v16, 0x10000, v4')
    E('v_add_u32 v17, 0x20000, v4')
    E('v_lshlrev_b32 v18, 5, v3')
    E('v_add_u32 v18, %d, v18' % L_UT)
    E('s_mul_i32 s6, s%d, %d\ns_lshl_b32 s7, s%d, 10\ns_add_u32 s6, s6, s7\ns_add_u32 s6, s6, %d' % (S_ROW, 43 * 1024, S_PS, OFF_HH))
    E('v_add_u32 v23, s6, v4')
    E('v_add_u32 v24, %d, v23' % (43 * 1024))
    E('s_add_u32 s6, s5, 1\ns_mul_i32 s6, s6, 0x5556\ns_lshr_b32 s6, s6, 13\ns_sub_u32 s6, s6, s%d' % S_PS)
    E('s_cmp_eq_u32 s5, 15')
    E('s_cselect_b32 s6, 3, s6')
    E('s_cmp_eq_u32 s6, 2')
    E('s_cselect_b32 s32, 0x7f000000, 0')
    E('s_mov_b32 s34, %s' % f32(-LOG2E))
    E('s_waitcnt vmcnt(%d)' % vm.n_after([('a', 0)]))
    E('s_barrier')

    def stats_ops():
        ops = []
        for b in range(2):
            B = 192 + b * 16
            mean, rs, t1, t2 = 26 + 2 * b, 27 + 2 * b, 30 + 2 * b, 31 + 2 * b
            ops.append('v_add_f32 v%d, v%d, v%d' % (mean, B, B + 2))
            ops.append('v_add_f32 v%d, v%d, v%d' % (rs, B + 1, B + 3))
            for t in range(2, 8):
                ops.append('v_add_f32 v%d, v%d, v%d' % (mean, mean, B + 2 * t))
                ops.append('v_add_f32 v%d, v%d, v%d' % (rs, rs, B + 2 * t + 1))
            ops.append('v_mul_f32 v%d, %s, v%d' % (mean, f32(0.125), mean))
            ops.append('v_mov_b32 v%d, 0' % t2)
            for t in range(8):
                ops.append('v_sub_f32 v%d, v%d, v%d' % (t1, B + 2 * t, mean))
                ops.append('v_fmac_f32 v%d, v%d, v%d' % (t2, t1, t1))
            ops.append('v_mov_b32 v%d, %s' % (t1, f32(64.0)))
            ops.append('v_fmac_f32 v%d, v%d, v%d' % (rs, t2, t1))
            ops.append('v_mul_f32 v%d, %s, v%d' % (rs, f32(1.0 / 512), rs))

            def rnd(x):
                ops.append('v_cvt_pk_bf16_f32 v%d, v%d, v%d' % (x, x, x))
                ops.append('v_and_b32 v%d, 0xffff0000, v%d' % (x, x))
            rnd(mean); rnd(rs)
            ops.append('v_add_f32 v%d, %s, v%d' % (rs, f32(1e-5), rs))
            rnd(rs)
            ops.append('v_sqrt_f32 v%d, v%d' % (rs, rs))
            rnd(rs)
            ops.append('v_rcp_f32 v%d, v%d' % (rs, rs))
        return ops

    def bread(u):
        out = []
        for q in range(4):
            d = 128 + (u % 3) * 16 + q * 4
            off = p3_addr(u) + q * 1024
            out.append('ds_read_b128 v[%d:%d], v%d offset:%d' % (d, d + 3, (4, 16, 17)[off >> 16], off & 0xffff))
        return out

    def utread(p):
        ops = []
        for m in range(2):
            for ut in range(2):
                d = 176 + (m * 2 + ut) * 8
                off = (m * 2 + ut) * 384 + p * 128
                ops.append('ds_read_b128 v[%d:%d], v18 offset:%d' % (d, d + 3, off))
                ops.append('ds_read_b128 v[%d:%d], v18 offset:%d' % (d + 4, d + 7, off + 16))
        return ops

    def epilogue(p):
        ops = []
        A0 = 64 + (p & 1) * 32
        for b in range(2):
            mean, rs = 26 + 2 * b, 27 + 2 * b
            T = 208 + b * 8
            regs = []
            for e in range(8):
                ct, r = e >> 2, e & 3
                regs.append((A0 + (b * 4 + 0 + ct) * 4 + r, A0 + (b * 4 + 2 + ct) * 4 + r))
            for e, (ga, ua) in enumerate(regs):
                ops.append('v_fma_f32 v%d, -v%d, v%d, v%d' % (ga, mean, 176 + e, ga))
                ops.append('v_fma_f32 v%d, -v%d, v%d, v%d' % (ua, mean, 192 + e, ua))
            for e, (ga, ua) in enumerate(regs):
                ops.append('v_fma_f32 v%d, v%d, v%d, v%d' % (ga, ga, rs, 184 + e))
                ops.append('v_fma_f32 v%d, v%d, v%d, v%d' % (ua, ua, rs, 200 + e))
            for e, (ga, ua) in enumerate(regs):
                ops.append('v_mul_f32 v%d, s34, v%d' % (T + e, ga))
            for e, (ga, ua) in enumerate(regs):
                ops.append('v_exp_f32 v%d, v%d' % (T + e, T + e))
                ops.append('v_mul_f32 v%d, v%d, v%d' % (ga, ga, ua))
            for e, (ga, ua) in enumerate(regs):
                ops.append('v_add_f32 v%d, 1.0, v%d' % (T + e, T + e))
            for e, (ga, ua) in enumerate(regs):
                ops.append('v_rcp_f32 v%d, v%d' % (T + e, T + e))
            for e, (ga, ua) in enumerate(regs):
                ops.append('v_mul_f32 v%d, v%d, v%d' % (T + e, T + e, ga))
            D = 224 + b * 4
            for q in range(4):
                ops.append('v_cvt_pk_bf16_f32 v%d, v%d, v%d' % (D + q, T + 2 * q, T + 2 * q + 1))
            ops.append('buffer_store_dwordx4 v[%d:%d], v%d, %s, %s offen offset:%d sc1' % (D, D + 3, 23 + b, srd('WS'), 's32' if p == 2 else '0', p * 1024))
        return ops

    for o in bread(0) + bread(1):
        E(o)
    pend = []
    bgq = [(p3_b_grp(uu), ('b3a', 0)) for uu in range(24, 36)]
    for p in range(3):
        A0 = 64 + (p & 1) * 32
        for ks in range(16):
            u = p * 16 + ks
            if ks == 0 and p >= 1:
                for o in utread(p - 1):
                    E(o)
                E('s_waitcnt lgkmcnt(0)')
                if p == 1:
                    E('s_waitcnt vmcnt(%d)' % vm.n_after([('b3a', 0)]))
                if p == 2:
                    E('s_waitcnt vmcnt(%d)' % vm.n_after([('b3', 0), ('hs', 0)]))
                E('s_barrier')
                stamp(20 + p)
                if p == 2:
                    arrive_u(CHA, barrier=False)
                if p == 1:
                    bgq = [(p3_b_grp(uu), ('b3', 0)) for uu in range(36, 48)] + [(g_, ('b4', 0)) for pos in range(0, 3) for g_ in splitk_b_grps(4, pos)]
                else:
                    bgq = [(g_, ('b4', 0)) for pos in range(3, 7) for g_ in splitk_b_grps(4, pos)] + [(g_, ('b4l', 0)) for pos in range(7, 11) for g_ in b4_lds_grps(pos)]
                pend = epilogue(p - 1)
            if p == 0 and ks == 8:
                E('s_waitcnt vmcnt(%d)' % vm.n_after([('st', 0)]))
                pend = stats_ops()
            lds = bread(u + 2) if u + 2 < 48 else []
            nl = 4 if u + 1 < 48 else 0
            if p == 0:
                E('s_waitcnt vmcnt(%d) lgkmcnt(%d)' % (vm.n_after([('a', ks)]), nl))
            else:
                E('s_waitcnt lgkmcnt(%d)' % nl)
            grp = []
            if p == 0 and ks + A3_PRE < 16:
                grp.append((a_grp(ks + A3_PRE), ('a', ks + A3_PRE)))
            else:
                for _ in range(2):
                    if bgq:
                        grp.append(bgq.pop(0))
            i = 0
            for q in range(4):
                for b in range(2):
                    acc = A0 + (b * 4 + q) * 4
                    bf = 128 + (u % 3) * 16 + q * 4
                    af = ks * 8 + b * 4
                    c = '0' if ks == 0 else 'v[%d:%d]' % (acc, acc + 3)
                    E('v_mfma_f32_16x16x32_bf16 v[%d:%d], v[%d:%d], a[%d:%d], %s' % (acc, acc + 3, bf, bf + 3, af, af + 3, c))
                    n = 2
                    if i < len(lds):
                        E(lds[i]); n = 1
                    if i in (4, 6) and grp:
                        g_, tag = grp.pop(0)
                        vm.grp(g_, tag)
                        n = 0
                    i += 1
                    for _ in range(n):
                        if pend:
                            o = pend.pop(0)
                            if o.startswith('buffer_'):
                                vm.op(o, ('hs', 0))
                            else:
                                E(o)
        for o in pend:
            if o.startswith('buffer_'):
                vm.op(o, ('hs', 0))
            else:
                E(o)
        pend = []
        assert not bgq
    stamp(23)
    for o in utread(2):
        E(o)
    E('s_waitcnt vmcnt(%d) lgkmcnt(0)' % vm.n_after([('hs', 0)]))
    arrive_u(CHB)
    E('v_mov_b32 v6, %d' % CHA)
    vm.op('buffer_load_dword v7, v6, %s, s%d offen sc1' % (srd('WS'), S_CNTG), ('cka', 0))
    for o in epilogue(2):
        if o.startswith('buffer_'):
            vm.op(o, ('hs2', 0))
        else:
            E(o)
    stamp(10)


def stop_here(n):
    if STOP == n:
        E('s_waitcnt vmcnt(0)')
        finish()
        return True
    return False


def main():
    kernel0()
    k1_prologue()
    phase1()
    if stop_here(1):
        return
    left = list(BGS)
    del BGS[:]
    sys.stderr.write('bg left after P1: %d\n' % len(left))
    sync_window(CO, None, {1: lambda: gather_ut(0), 2: lambda: gather_ut(1)})
    allbg = left
    splitk_phase(2, 4, bg_loop=allbg[:32], bg_red=allbg[32:])
    if stop_here(2):
        return
    sync_window(C1, None, {})
    phase3()
    if stop_here(3):
        return
    splitk_phase(4, 11)
    E('s_waitcnt vmcnt(0)')
    finish()


main()
hdr = ['; @launch kernel=k0_kernel grid=(256,1,1) block=(256,1,1) lds=32768',
       '; @launch kernel=k1_kernel grid=(256,1,1) block=(256,1,1) lds=%d' % LDS_TOTAL,
       '.amdgcn_target "amdgcn-amd-amdhsa--gfx950"', '.text']
tail = ''
for name, nv, ao in (('k0_kernel', 128, 128), ('k1_kernel', 512, 256)):
    tail += """.section .rodata,"a"
.p2align 6
.amdhsa_kernel %s
  .amdhsa_next_free_vgpr %d
  .amdhsa_next_free_sgpr 102
  .amdhsa_accum_offset %d
  .amdhsa_group_segment_fixed_size 0
  .amdhsa_kernarg_size 96
  .amdhsa_user_sgpr_count 2
  .amdhsa_user_sgpr_kernarg_segment_ptr 1
  .amdhsa_system_sgpr_workgroup_id_x 1
.end_amdhsa_kernel
""" % (name, nv, ao)
print('\n'.join(hdr) + '\n' + E.text() + tail)
sys.stderr.write('instructions: %d\n' % E.nins)
```

```python
import sys, os, struct
from emit import Emitter

STOP = int(os.environ.get('STOP', '99'))
STAMPS = int(os.environ.get('STAMPS', '0'))

OFF_CNT = 0x0000000
OFF_MODP = 0x0010000
OFF_XH = 0x0100000
OFF_O = 0x0400000
OFF_X1 = 0x0700000
OFF_ST = 0x0A00000
OFF_HH = 0x0B00000
OFF_WF = 0x1100000
OFF_UT = 0x1400000
OFF_WQ = 0x1500000
OFF_WOF = 0x1700000
OFF_W2F = 0x1800000
OFF_STAMP = 0x8000000
CO, C1, CH, CW, CV, CHA, CHB = 128, 256, 384, 512, 640, 768, 896

SRD = dict(X=8, WQKV=12, WO=16, W1=20, W3=24, W2=28, C=32, WMOD=36, OUT=40, WS=48)
PTR = dict(X=64, WQKV=66, WO=68, W1=72, W3=74, W2=76, C=78, WMOD=80, OUT=82, WS=86)
SIZE = dict(X=2048 * 512 * 2, WQKV=512 * 1536 * 2, WO=512 * 512 * 2, W1=512 * 1376 * 2, W3=512 * 1376 * 2,
            W2=1376 * 512 * 2, C=1024, WMOD=512 * 3072 * 2, OUT=2048 * 512 * 2, WS=0x10000000)
LOG2E = 1.4426950408889634
SPIN_MAX = 400000

ROWB = 16384
L_MISC = 147456
L_TAB = L_MISC
L_XCH = L_MISC + 4096
L_UT = L_MISC + 12544
L_GA = L_MISC + 14080
LDS_TOTAL = 163840
P3_ROW = [6, 7, 8, 3, 4, 5, 0, 1, 2, 6, 7, 8]
RED_ROW = 0
L_STAMP = L_MISC + 14848
L_SCR = L_MISC + 15872
L_HP = 2 * ROWB

S_PS = 65
S_R0 = 66
S_C0 = 67
S_CNTG = 68
S_ROW = 69
S_QB = 70
S_J7 = 71
S_CNTJ = 64
S_W1K = 76
S_RT = 77
S_ROT = 12


def srd(n):
    return 's[%d:%d]' % (SRD[n], SRD[n] + 3)


def f32(x):
    return '0x%08x' % struct.unpack('<I', struct.pack('<f', x))[0]


E = Emitter()
_lab = [0]


def lab(p='L'):
    _lab[0] += 1
    return '%s_%d' % (p, _lab[0])


def stamp(slot, cyc=False):
    if not STAMPS:
        return
    E('s_memtime s[92:93]' if cyc else 's_memrealtime s[92:93]')
    E('s_lshl_b32 s91, s3, 8')
    E('s_add_u32 s91, s91, %d' % (L_STAMP + 4 * slot))
    E('s_waitcnt lgkmcnt(0)')
    E('v_mov_b32 v5, s92')
    E('v_mov_b32 v6, s91')
    E('ds_write_b32 v6, v5')
    E('s_waitcnt lgkmcnt(0)')


def finish():
    if STAMPS:
        E('s_lshl_b32 s92, s2, 2\ns_add_u32 s92, s92, s3\ns_lshl_b32 s92, s92, 8\ns_add_u32 s92, s92, %d' % OFF_STAMP)
        E('s_lshl_b32 s94, s3, 8\ns_add_u32 s94, s94, %d' % L_STAMP)
        E('v_lshlrev_b32 v6, 2, v1')
        E('v_add_u32 v7, s94, v6')
        E('s_mov_b32 exec_lo, -1\ns_mov_b32 exec_hi, 0xff')
        E('ds_read_b32 v5, v7')
        E('s_waitcnt lgkmcnt(0)')
        E('buffer_store_dword v5, v6, %s, s92 offen' % srd('WS'))
        E('s_waitcnt vmcnt(0)')
    E('s_endpgm')


class VM:
    def __init__(self):
        self.seq = []

    def reset(self):
        self.seq = []

    def op(self, text, tag=None):
        E(text)
        self.seq.append(tag)

    def grp(self, lines, tag=None):
        for l in lines:
            if l.startswith('buffer_'):
                self.op(l, tag)
            else:
                E(l)

    def n_after(self, tags):
        idx = max([i for i, t in enumerate(self.seq) if t in tags] + [-1])
        return min(63, len(self.seq) - 1 - idx)


vm = VM()


BGS = []
PACE0 = int(os.environ.get('PACE0', '6'))
PACE1 = int(os.environ.get('PACE1', '24'))
_E0 = E
_pace = {'n': 0, 'cnt': 0}


class PacedE:
    def __getattr__(self, k):
        return getattr(_E0, k)

    def __setattr__(self, k, v):
        setattr(_E0, k, v)

    def __call__(self, text):
        _E0(text)
        if _pace['n'] and BGS and not text.startswith(('s_cmp', 's_cselect', 's_add_u32 m0', 'v_cmp', 's_mov_b64 exec')):
            _pace['cnt'] += text.count('\n') + 1
            if _pace['cnt'] >= _pace['n']:
                _pace['cnt'] = 0
                g_ = BGS.pop(0)
                n = _pace['n']
                _pace['n'] = 0
                vm.grp(g_, ('bg', 0))
                _pace['n'] = n


E = PacedE()


def pace_on(n):
    _pace['n'] = n
    _pace['cnt'] = 0


def pace_off():
    _pace['n'] = 0


def allreduce_lg(op, v, tmp):
    E('v_mov_b32 v%d, v%d' % (tmp, v))
    E('v_permlane32_swap_b32 v%d, v%d' % (v, tmp))
    E('%s v%d, v%d, v%d' % (op, v, v, tmp))
    E('v_mov_b32 v%d, v%d' % (tmp, v))
    E('v_permlane16_swap_b32 v%d, v%d' % (v, tmp))
    E('%s v%d, v%d, v%d' % (op, v, v, tmp))


def round_bf16(dst, src):
    E('v_cvt_pk_bf16_f32 v%d, v%d, v%d' % (dst, src, src))
    E('v_and_b32 v%d, 0xffff0000, v%d' % (dst, dst))


def arrive(soff_reg, extra):
    E('s_mov_b64 exec, 1')
    E('v_mov_b32 v5, 1')
    E('v_mov_b32 v6, %d' % extra)
    E('buffer_atomic_add v5, v6, %s, s%d offen' % (srd('WS'), soff_reg))
    E('s_mov_b64 exec, -1')


def poll_ge(soff_reg, extra, target):
    l0, l1 = lab('P'), lab('P')
    E('s_mov_b64 exec, 1')
    E('v_mov_b32 v6, %d' % extra)
    E('s_mov_b32 s90, 0')
    E(l0 + ':')
    E('buffer_load_dword v5, v6, %s, s%d offen sc1' % (srd('WS'), soff_reg))
    E('s_add_u32 s90, s90, 1')
    E('s_cmp_gt_u32 s90, %d' % SPIN_MAX)
    E('s_cbranch_scc1 ' + l1)
    E('s_waitcnt vmcnt(0)')
    E('v_cmp_gt_u32 vcc, %d, v5' % target)
    E('s_cbranch_vccnz ' + l0)
    E(l1 + ':')
    E('s_mov_b64 exec, -1')


def reduce8(A):
    for sh in (4, 8):
        for e in range(8):
            E('v_add_f32_dpp v%d, v%d, v%d row_ror:%d row_mask:0xf bank_mask:0xf' % (A + e, A + e, A + e, sh))
    for e in range(4):
        E('v_permlane32_swap_b32 v%d, v%d' % (A + e, A + 4 + e))
    for e in range(4):
        E('v_add_f32 v%d, v%d, v%d' % (A + e, A + e, A + 4 + e))
    for e in range(2):
        E('v_permlane16_swap_b32 v%d, v%d' % (A + e, A + 2 + e))
    for e in range(2):
        E('v_add_f32 v%d, v%d, v%d' % (A + e, A + e, A + 2 + e))


def dot_rows(A, W, SC):
    for p in range(4):
        E('v_dot2_f32_bf16 v%d, v%d, v%d, v%d' % (A + 2 * p, W + p, SC, A + 2 * p))
        E('v_dot2_f32_bf16 v%d, v%d, v%d, v%d' % (A + 2 * p + 1, W + p, SC + 1, A + 2 * p + 1))


def prologue(name, nwg, bufs):
    E.raw('.globl %s\n.p2align 8\n.type %s,@function\n%s:' % (name, name, name))
    E.hist = []
    E('s_cmp_lt_u32 s2, %d' % nwg)
    E('s_cbranch_scc1 L_go_%s' % name)
    E('s_endpgm')
    E('L_go_%s:' % name)
    E('s_load_dwordx16 s[64:79], s[0:1], 0')
    E('s_load_dwordx8 s[80:87], s[0:1], 64')
    E('v_and_b32 v1, 63, v0')
    E('v_and_b32 v2, 15, v0')
    E('v_bfe_u32 v3, v0, 4, 2')
    E('v_lshrrev_b32 v4, 6, v0')
    E('v_readfirstlane_b32 s3, v4')
    E('v_lshlrev_b32 v4, 4, v1')
    MAP = os.environ.get('MAP', '42')
    if MAP == '81':
        E('s_and_b32 s4, s2, 7\ns_lshl_b32 s4, s4, 1\ns_bfe_u32 s5, s2, 0x10003\ns_or_b32 s4, s4, s5\ns_lshr_b32 s5, s2, 4')
    elif MAP == '42':
        E('s_bfe_u32 s4, s2, 0x20001\ns_lshl_b32 s4, s4, 2\ns_lshr_b32 s5, s2, 6\ns_or_b32 s4, s4, s5')
        E('s_and_b32 s5, s2, 1\ns_lshl_b32 s5, s5, 3\ns_bfe_u32 s6, s2, 0x30003\ns_or_b32 s5, s5, s6')
    else:
        E('s_bfe_u32 s4, s2, 0x10002\ns_lshl_b32 s4, s4, 3\ns_lshr_b32 s5, s2, 5\ns_or_b32 s4, s4, s5')
        E('s_and_b32 s5, s2, 3\ns_lshl_b32 s5, s5, 2\ns_bfe_u32 s6, s2, 0x20003\ns_or_b32 s5, s5, s6')
    E('s_waitcnt lgkmcnt(0)')
    for b in bufs:
        r = SRD[b]
        E('s_mov_b32 s%d, s%d\ns_and_b32 s%d, s%d, 0xffff\ns_mov_b32 s%d, 0x%x\ns_mov_b32 s%d, 0x20000' % (
            r, PTR[b], r + 1, PTR[b] + 1, r + 2, SIZE[b], r + 3))


def kernel0():
    prologue('k0_kernel', 256, list(SRD))
    if STAMPS:
        E('s_memrealtime s[94:95]')
    E('v_lshrrev_b32 v7, 2, v1')
    E('v_and_b32 v8, 3, v1')
    E('s_lshl_b32 s%d, s4, 10' % S_CNTG)
    lw23, lj = lab('W23'), lab('J')
    E('s_cmp_ge_u32 s3, 2')
    E('s_cbranch_scc1 ' + lw23)
    E('v_and_b32 v11, 7, v1')
    E('v_lshrrev_b32 v12, 3, v1')
    E('v_lshlrev_b32 v13, 10, v12')
    E('v_lshl_add_u32 v13, v11, 4, v13')
    E('v_lshlrev_b32 v14, 10, v11')
    E('v_lshl_add_u32 v14, v12, 4, v14')
    E('s_lshl_b32 s6, s4, 7\ns_lshl_b32 s7, s5, 3\ns_add_u32 s6, s6, s7\ns_lshl_b32 s54, s6, 10')
    E('s_lshl_b32 s7, s3, 9\ns_add_u32 s55, s54, s7')
    for i in range(8):
        E('buffer_load_dwordx4 v[%d:%d], v13, %s, s54 offen offset:%d' % (64 + 4 * i, 67 + 4 * i, srd('X'), i * 128))
    for i in range(4):
        E('buffer_load_dwordx4 v[%d:%d], v14, %s, s55 offen offset:%d' % (96 + 4 * i, 99 + 4 * i, srd('X'), i * 128))
    E('v_lshlrev_b32 v16, 7, v1')
    E('v_mov_b32 v19, 0')
    E('s_lshl_b32 s6, s3, 4\ns_or_b32 s6, s6, s5')
    E('s_cmp_eq_u32 s6, 0')
    E('s_cselect_b32 s58, s%d, 0x7f000000' % S_CNTG)
    E('s_mov_b64 exec, 0xff')
    E('buffer_store_dword v19, v16, %s, s58 offen' % srd('WS'))
    E('s_mov_b64 exec, 1')
    for q in range(3):
        E('buffer_load_dword v%d, v4, %s, 0 offen' % (60 + q, srd('C')))
    E('s_mov_b64 exec, -1')
    E('s_branch ' + lj)
    E(lw23 + ':')
    E('s_movk_i32 s6, 6144')
    E('v_mul_lo_u32 v9, v7, s6')
    E('v_lshl_add_u32 v9, v8, 4, v9')
    E('s_and_b32 s63, s2, 3')
    E('s_lshr_b32 s53, s2, 2\ns_lshl_b32 s53, s53, 1\ns_and_b32 s7, s3, 1\ns_add_u32 s53, s53, s7')
    E('v_lshlrev_b32 v10, 1, v7')
    E('s_lshl_b32 s6, s63, 8')
    for n in range(8):
        E('buffer_load_ushort v%d, v10, %s, s6 offen offset:%d' % (16 + n, srd('C'), n * 32))
    E('s_mul_i32 s58, s63, %d\ns_lshl_b32 s59, s53, 6\ns_add_u32 s58, s58, s59' % (128 * 6144))
    E('s_cmp_ge_u32 s2, 192')
    E('s_cselect_b32 s58, 0x7f000000, s58')
    for n in range(8):
        E('s_add_u32 s59, s58, %d' % (n * 16 * 6144))
        E('buffer_load_dwordx4 v[%d:%d], v9, %s, s59 offen' % (64 + 4 * n, 67 + 4 * n, srd('WMOD')))
    E(lj + ':')
    E('s_lshl_b32 s52, s2, 2\ns_add_u32 s52, s52, s3')
    E('s_lshl_b32 s%d, s3, 13' % S_QB)

    def tile_params(rnd):
        d0, d1, nat = 72 + 2 * rnd, 73 + 2 * rnd, 80 + rnd
        la, lb = lab('TA'), lab('TB')
        if rnd == 0:
            E('s_cmp_ge_u32 s52, 768')
            E('s_cbranch_scc1 ' + la)
            E('s_mov_b64 s[56:57], s[%d:%d]\ns_mov_b32 s58, 0x%x' % (SRD['WQKV'], SRD['WQKV'] + 1, SIZE['WQKV']))
            E('s_mul_i32 s6, s52, 1366\ns_lshr_b32 s6, s6, 16\ns_mul_i32 s7, s6, 48\ns_sub_u32 s7, s52, s7')
            E('s_mul_i32 s54, s6, %d\ns_lshl_b32 s60, s7, 6\ns_add_u32 s54, s54, s60\ns_movk_i32 s55, 3072' % (32 * 3072))
            E('s_and_b32 s60, s7, 15\ns_mul_i32 s60, s60, %d\ns_lshr_b32 s61, s7, 4\ns_lshl_b32 s61, s61, 15\ns_add_u32 s60, s60, s61' % (6 * 16384))
            E('s_lshl_b32 s6, s6, 10\ns_add_u32 s60, s60, s6\ns_add_u32 s%d, s60, %d\ns_add_u32 s%d, s%d, 16384' % (d0, OFF_WQ, d1, d0))
            E('s_mov_b32 s%d, 1' % nat)
            E('s_branch ' + lb)
            E(la + ':')
            E('s_mov_b64 s[56:57], s[%d:%d]\ns_mov_b32 s58, 0x%x' % (SRD['WO'], SRD['WO'] + 1, SIZE['WO']))
            E('s_sub_u32 s7, s52, 768\ns_lshr_b32 s6, s7, 4\ns_and_b32 s7, s7, 15')
            E('s_lshl_b32 s54, s6, 15\ns_lshl_b32 s60, s7, 6\ns_add_u32 s54, s54, s60\ns_movk_i32 s55, 1024')
            E('s_lshl_b32 s60, s7, 15\ns_lshl_b32 s6, s6, 10\ns_add_u32 s60, s60, s6\ns_add_u32 s%d, s60, %d\ns_add_u32 s%d, s%d, 16384' % (d0, OFF_WOF, d1, d0))
            E('s_mov_b32 s%d, 0' % nat)
        else:
            if rnd < 3:
                E('s_cmp_ge_u32 s52, 688')
                E('s_cbranch_scc1 ' + la)
                W = 'W1' if rnd == 1 else 'W3'
                E('s_mov_b64 s[56:57], s[%d:%d]\ns_mov_b32 s58, 0x%x' % (SRD[W], SRD[W] + 1, SIZE[W]))
                E('s_mul_i32 s6, s52, 1525\ns_lshr_b32 s6, s6, 16\ns_mul_i32 s7, s6, 43\ns_sub_u32 s7, s52, s7')
                E('s_mul_i32 s54, s6, %d\ns_lshl_b32 s60, s7, 6\ns_add_u32 s54, s54, s60\ns_movk_i32 s55, 2752' % (32 * 2752))
                E('s_lshl_b32 s60, s7, 16\ns_lshl_b32 s6, s6, 10\ns_add_u32 s60, s60, s6\ns_add_u32 s%d, s60, %d\ns_add_u32 s%d, s%d, 16384' % (
                    d0, OFF_WF + (rnd - 1) * 32768, d1, d0))
                E('s_branch ' + lb)
                E(la + ':')
                E('s_add_u32 s7, s52, %d' % ((rnd - 1) * 336 - 688))
            else:
                E('s_add_u32 s7, s52, 672')
            E('s_mov_b64 s[56:57], s[%d:%d]\ns_mov_b32 s58, 0x%x' % (SRD['W2'], SRD['W2'] + 1, SIZE['W2']))
            E('s_and_b32 s6, s7, 15\ns_lshr_b32 s7, s7, 4')
            E('s_lshl_b32 s54, s7, 15\ns_lshl_b32 s60, s6, 6\ns_add_u32 s54, s54, s60\ns_movk_i32 s55, 1024')
            E('s_mul_i32 s60, s6, %d\ns_lshl_b32 s61, s7, 10\ns_add_u32 s60, s60, s61\ns_add_u32 s%d, s60, %d\ns_add_u32 s%d, s%d, %d' % (
                2 * 43 * 1024, d0, OFF_W2F, d1, d0, 43 * 1024))
            E('s_cmp_ge_u32 s7, 43')
            E('s_cselect_b32 s%d, 0x7f000000, s%d\ns_cselect_b32 s%d, 0x7f000000, s%d' % (d0, d0, d1, d1))
            if rnd < 3:
                pass
        E(lb + ':')
        if rnd:
            E('s_mov_b32 s%d, 0' % nat)
        E('s_mov_b32 s59, 0x20000')
        E('v_mul_lo_u32 v44, v7, s55')
        E('v_lshl_add_u32 v44, v8, 4, v44')
        E('s_add_u32 m0, s%d, %d' % (S_QB, rnd * 2048))
        E('buffer_load_dwordx4 v44, s[56:59], s54 offen lds')
        E('s_lshl_b32 s55, s55, 4\ns_add_u32 s54, s54, s55')
        E('s_add_u32 m0, s%d, %d' % (S_QB, rnd * 2048 + 1024))
        E('buffer_load_dwordx4 v44, s[56:59], s54 offen lds')
    for rnd in range(4):
        tile_params(rnd)
    lw23, lj = lab('W23'), lab('J')
    E('s_cmp_ge_u32 s3, 2')
    E('s_cbranch_scc1 ' + lw23)
    E('v_lshlrev_b32 v48, 8, v12')
    E('v_lshl_add_u32 v48, v11, 4, v48')
    E('v_add_u32 v49, 4096, v48')
    E('s_lshl_b32 s6, s4, 3\ns_lshr_b32 s7, s5, 1\ns_add_u32 s6, s6, s7\ns_lshl_b32 s6, s6, 14')
    E('s_and_b32 s7, s5, 1\ns_lshl_b32 s7, s7, 7\ns_add_u32 s6, s6, s7')
    E('s_lshl_b32 s59, s3, 13\ns_add_u32 s6, s6, s59\ns_add_u32 s60, s6, %d' % OFF_XH)
    E('v_lshlrev_b32 v50, 5, v11')
    E('v_mov_b32 v20, 0\nv_mov_b32 v21, 0\nv_mov_b32 v22, 0x3f803f80\nv_mov_b32 v23, 0\nv_mov_b32 v24, 0')
    for i in range(8):
        E('s_waitcnt vmcnt(%d)' % (23 - i))
        for p in range(4):
            r = 64 + 4 * i + p
            E('v_dot2_f32_bf16 v%d, v%d, v22, v%d' % (20 + 3 * (p & 1), r, 20 + 3 * (p & 1)))
            E('v_dot2_f32_bf16 v%d, v%d, v%d, v%d' % (21 + 3 * (p & 1), r, r, 21 + 3 * (p & 1)))
    E('v_add_f32 v20, v20, v23\nv_add_f32 v21, v21, v24')
    for mod_ in ('quad_perm:[1,0,3,2]', 'quad_perm:[2,3,0,1]', 'row_half_mirror'):
        E('v_add_f32_dpp v20, v20, v20 %s row_mask:0xf bank_mask:0xf' % mod_)
        E('v_add_f32_dpp v21, v21, v21 %s row_mask:0xf bank_mask:0xf' % mod_)
    E('v_mul_f32 v20, %s, v20' % f32(1.0 / 512))
    E('v_mul_f32 v21, %s, v21' % f32(1.0 / 512))
    E('v_fma_f32 v21, -v20, v20, v21')
    E('v_max_f32 v21, 0, v21')
    round_bf16(20, 20)
    round_bf16(21, 21)
    E('v_add_f32 v21, %s, v21' % f32(1e-5))
    round_bf16(21, 21)
    E('v_sqrt_f32 v21, v21')
    round_bf16(21, 21)
    E('v_rcp_f32 v21, v21')
    E('ds_bpermute_b32 v20, v50, v20')
    E('ds_bpermute_b32 v21, v50, v21')
    E('s_waitcnt vmcnt(12) lgkmcnt(0)')
    for i in range(4):
        for p in range(4):
            src = 96 + 4 * i + p
            E('v_lshlrev_b32 v%d, 16, v%d' % (24 + 2 * p, src))
            E('v_and_b32 v%d, 0xffff0000, v%d' % (25 + 2 * p, src))
        for e in range(8):
            E('v_sub_f32 v%d, v%d, v20' % (24 + e, 24 + e))
        for p in range(4):
            E('v_cvt_pk_bf16_f32 v%d, v%d, v%d' % (32 + p, 24 + 2 * p, 25 + 2 * p))
        for p in range(4):
            E('v_lshlrev_b32 v%d, 16, v%d' % (24 + 2 * p, 32 + p))
            E('v_and_b32 v%d, 0xffff0000, v%d' % (25 + 2 * p, 32 + p))
        for e in range(8):
            E('v_mul_f32 v%d, v%d, v21' % (24 + e, 24 + e))
        for p in range(4):
            E('v_cvt_pk_bf16_f32 v%d, v%d, v%d' % (32 + p, 24 + 2 * p, 25 + 2 * p))
        for p in range(4):
            E('v_lshlrev_b32 v%d, 16, v%d' % (24 + 2 * p, 32 + p))
            E('v_and_b32 v%d, 0xffff0000, v%d' % (25 + 2 * p, 32 + p))
        for e in range(8):
            E('v_cvt_f16_f32 v%d, v%d' % (24 + e, 24 + e))
        for p in range(4):
            E('v_pack_b32_f16 v%d, v%d, v%d' % (112 + 4 * i + p, 24 + 2 * p, 25 + 2 * p))
        E('buffer_store_dwordx4 v[%d:%d], v%d, %s, s60 offen offset:%d %s' % (
            112 + 4 * i, 115 + 4 * i, 48 + (i >> 1), srd('WS'), (i & 1) * 2048, os.environ.get('K0ST', '')))
    E('s_waitcnt vmcnt(4)')
    E('s_branch ' + lj)
    E(lw23 + ':')
    E('s_waitcnt vmcnt(16)')
    for n in range(8):
        E('v_lshlrev_b32 v%d, 16, v%d' % (16 + n, 16 + n))
    for n in range(8):
        E('v_mul_f32 v%d, %s, v%d' % (24 + n, f32(-LOG2E), 16 + n))
    for n in range(8):
        E('v_exp_f32 v%d, v%d' % (24 + n, 24 + n))
    for n in range(8):
        E('v_add_f32 v%d, 1.0, v%d' % (24 + n, 24 + n))
    for n in range(8):
        E('v_rcp_f32 v%d, v%d' % (24 + n, 24 + n))
    for n in range(8):
        E('v_mul_f32 v%d, v%d, v%d' % (16 + n, 16 + n, 24 + n))
    for n in range(8):
        E('v_cvt_pk_bf16_f32 v%d, v%d, v%d' % (16 + n, 16 + n, 16 + n))
    for n in range(8):
        E('v_and_b32 v%d, 0xffff, v%d' % (100 + 2 * n, 16 + n))
        E('v_and_b32 v%d, 0xffff0000, v%d' % (101 + 2 * n, 16 + n))
    for e in range(8):
        E('v_mov_b32 v%d, 0' % (50 + e))
    for n in range(8):
        E('s_waitcnt vmcnt(%d)' % (15 - n))
        dot_rows(50, 64 + 4 * n, 100 + 2 * n)
    reduce8(50)
    E('v_lshlrev_b32 v28, 5, v8')
    E('v_lshl_add_u32 v28, v3, 3, v28')
    E('s_mul_i32 s58, s63, 12288\ns_lshl_b32 s59, s53, 7\ns_add_u32 s58, s58, s59\ns_add_u32 s58, s58, %d' % OFF_MODP)
    E('s_cmp_ge_u32 s2, 192')
    E('s_cselect_b32 s58, 0x7f000000, s58')
    E('v_cmp_gt_u32 vcc, 4, v2')
    E('s_mov_b64 exec, vcc')
    E('buffer_store_dwordx2 v[50:51], v28, %s, s58 offen' % srd('WS'))
    E('s_mov_b64 exec, -1')
    E('s_waitcnt vmcnt(1)')
    E(lj + ':')
    E('v_lshrrev_b32 v30, 2, v2')
    E('v_lshl_add_u32 v30, v3, 3, v30')
    E('v_lshlrev_b32 v30, 6, v30')
    E('v_add_u32 v30, s%d, v30' % S_QB)
    E('v_and_b32 v31, 3, v2')
    E('v_lshl_add_u32 v32, v31, 4, v30')
    E('v_lshl_add_u32 v33, v31, 3, v30')
    E('s_cmp_eq_u32 s80, 1')
    E('s_cselect_b32 s6, 32, 8')
    E('s_cselect_b64 vcc, -1, 0')
    E('v_cndmask_b32 v34, v32, v33, vcc')
    E('v_add_u32 v35, s6, v34')
    for rnd in range(4):
        for ct in range(2):
            T = 64 + (rnd * 2 + ct) * 4
            if rnd == 0:
                base, off = 34 + ct, 0
            else:
                base, off = 32, rnd * 2048 + ct * 8
            E('ds_read_b64_tr_b16 v[%d:%d], v%d offset:%d' % (T, T + 1, base, off))
            E('ds_read_b64_tr_b16 v[%d:%d], v%d offset:%d' % (T + 2, T + 3, base, off + 256))
        if rnd == 1:
            E('s_waitcnt lgkmcnt(0)')
    E('s_waitcnt lgkmcnt(0)')
    for rnd in range(4):
        for ct in range(2):
            T = 64 + (rnd * 2 + ct) * 4
            E('buffer_store_dwordx4 v[%d:%d], v4, %s, s%d offen %s' % (T, T + 3, srd('WS'), 72 + 2 * rnd + ct, os.environ.get('K0ST', '')))
    if STAMPS:
        E('s_memrealtime s[96:97]')
        E('s_waitcnt vmcnt(0)')
        E('s_memrealtime s[98:99]')
        E('s_waitcnt lgkmcnt(0)')
        E('s_lshl_b32 s92, s2, 2\ns_add_u32 s92, s92, s3\ns_lshl_b32 s92, s92, 8\ns_add_u32 s92, s92, %d' % (OFF_STAMP + 160))
        E('v_mov_b32 v5, s92\nv_mov_b32 v6, s94\nv_mov_b32 v7, s96\nv_mov_b32 v8, s98')
        E('s_mov_b64 exec, 1')
        E('buffer_store_dword v6, v5, %s, 0 offen' % srd('WS'))
        E('buffer_store_dword v7, v5, %s, 0 offen offset:4' % srd('WS'))
        E('buffer_store_dword v8, v5, %s, 0 offen offset:8' % srd('WS'))
    E('s_endpgm')


L_STG = 6 * ROWB


def tile_dma(m0a, m0b):
    E('s_mov_b32 s59, 0x20000')
    E('v_mul_lo_u32 v44, v7, s55')
    E('v_lshl_add_u32 v44, v8, 4, v44')
    E(m0a)
    E('buffer_load_dwordx4 v44, s[56:59], s54 offen lds')
    E('s_lshl_b32 s55, s55, 4\ns_add_u32 s54, s54, s55')
    E(m0b)
    E('buffer_load_dwordx4 v44, s[56:59], s54 offen lds')


def k1_prologue():
    prologue('k1_kernel', 256, ['X', 'OUT', 'WS'])
    for n, W in enumerate(('WO', 'W1', 'W3', 'W2')):
        E('s_mov_b32 s%d, s%d\ns_and_b32 s%d, s%d, 0xffff' % (94 + 2 * n, PTR[W], 95 + 2 * n, PTR[W] + 1))
    E('s_mul_i32 s%d, s5, 0x5556\ns_lshr_b32 s%d, s%d, 13' % (S_PS, S_PS, S_PS))
    E('s_lshl_b32 s6, s4, 7\ns_lshr_b32 s7, s5, 3\ns_lshl_b32 s7, s7, 6\ns_add_u32 s%d, s6, s7' % S_R0)
    E('s_and_b32 s%d, s5, 7\ns_lshl_b32 s%d, s%d, 6' % (S_J7, S_C0, S_J7))
    E('s_lshl_b32 s%d, s4, 10' % S_CNTG)
    E('s_lshl_b32 s%d, s5, 10' % S_CNTJ)
    E('s_lshl_b32 s6, s4, 3\ns_lshl_b32 s7, s3, 1\ns_add_u32 s%d, s6, s7' % S_ROW)
    E('s_lshl_b32 s%d, s3, 12' % S_QB)
    E('s_lshl_b32 s%d, s3, 10' % S_W1K)
    ROT = os.environ.get('ROT', 'j')
    if ROT == 'jg':
        E('s_lshl_b32 s6, s4, 2\ns_add_u32 s6, s6, s5\ns_and_b32 s%d, s6, 15' % S_RT)
    elif ROT == 'j':
        E('s_mov_b32 s%d, s5' % S_RT)
    elif ROT == 'j2':
        E('s_lshl_b32 s6, s5, 1\ns_and_b32 s%d, s6, 15' % S_RT)
    else:
        E('s_mov_b32 s%d, 0' % S_RT)


def relayout_issue():
    E('s_max_u32 s6, s3, 1\ns_sub_u32 s6, s6, 1\ns_add_u32 s6, s6, s%d\ns_lshl_b32 s6, s6, 16\ns_lshl_b32 s7, s4, 10\ns_add_u32 s6, s6, s7\ns_add_u32 s6, s6, %d' % (S_PS, OFF_WF))
    for blk in range(4):
        E('s_add_u32 s7, s6, %d' % (blk * 16384))
        vm.op('buffer_load_dwordx4 a[%d:%d], v4, %s, s7 offen' % (152 + 4 * blk, 155 + 4 * blk, srd('WS')), ('rd', 0))


def rot_table():
    E('s_lshl_b32 s%d, s5, 10' % S_ROT)
    for i in range(1, 16):
        E('s_add_u32 s%d, s%d, 1024\ns_and_b32 s%d, s%d, 0x3fff' % (S_ROT + i, S_ROT + i - 1, S_ROT + i, S_ROT + i))


def relayout_process():
    E('v_and_b32 v129, 3, v2')
    l0, l1 = lab('RP'), lab('RP')
    E('s_cmp_eq_u32 s3, 0')
    E('s_cbranch_scc1 ' + l0)
    for r in range(16):
        E('v_accvgpr_read_b32 v%d, a%d' % (140 + r, 152 + r))
    for r in range(8):
        E('v_accvgpr_read_b32 v%d, a%d' % (172 + r, 144 + r))
    E('v_add_f32 v172, v172, v173\nv_add_f32 v174, v174, v175\nv_add_f32 v176, v176, v177\nv_add_f32 v178, v178, v179')
    E('v_add_f32 v172, v172, v174\nv_add_f32 v176, v176, v178')
    round_bf16(172, 172)
    round_bf16(176, 176)
    E('v_cmp_lt_u32 vcc, 31, v1')
    E('v_cndmask_b32 v173, 0, 1.0, vcc')
    E('v_add_f32 v172, v172, v173')
    E('s_cmp_eq_u32 s3, 3')
    E('s_cselect_b32 s6, 1.0, 0')
    E('v_add_f32 v176, s6, v176')
    round_bf16(176, 176)
    E('v_cvt_pk_bf16_f32 v172, v172, v172')
    E('s_lshl_b32 s6, s3, 7\ns_add_u32 s6, s6, %d' % L_SCR)
    E('v_lshlrev_b32 v173, 1, v1')
    E('v_add_u32 v173, s6, v173')
    E('ds_write_b16 v173, v172')
    E('s_lshl_b32 s7, s3, 8\ns_add_u32 s7, s7, %d' % (L_GA - 256))
    E('v_lshlrev_b32 v174, 2, v1')
    E('v_add_u32 v174, s7, v174')
    E('ds_write_b32 v174, v176')
    E('v_lshlrev_b32 v173, 4, v3')
    E('v_add_u32 v173, s6, v173')
    E('s_waitcnt lgkmcnt(0)')
    E('ds_read_b128 v[156:159], v173\nds_read_b128 v[160:163], v173 offset:64')
    E('v_lshrrev_b32 v130, 2, v2')
    E('v_lshl_add_u32 v130, v130, 3, v129')
    E('v_lshlrev_b32 v130, 2, v130')
    E('v_lshrrev_b32 v131, 1, v3')
    E('s_movk_i32 s7, 384')
    E('v_mul_lo_u32 v131, v131, s7')
    E('v_add_u32 v130, v130, v131')
    E('s_lshl_b32 s34, s5, 4\ns_add_u32 s34, s34, s4\ns_mul_i32 s34, s34, 1536\ns_lshl_b32 s6, s3, 7\ns_add_u32 s34, s34, s6\ns_add_u32 s34, s34, %d' % (OFF_UT - 128))
    for blk in range(4):
        E('v_mov_b32 v%d, 0\nv_mov_b32 v%d, 0' % (164 + 2 * blk, 165 + 2 * blk))
    E('s_waitcnt lgkmcnt(0)')
    for p in range(4):
        for blk in range(4):
            E('v_dot2_f32_bf16 v%d, v%d, v%d, v%d' % (164 + 2 * blk, 140 + 4 * blk + p, 160 + p, 164 + 2 * blk))
            E('v_dot2_f32_bf16 v%d, v%d, v%d, v%d' % (165 + 2 * blk, 140 + 4 * blk + p, 156 + p, 165 + 2 * blk))
    for blk in range(4):
        E('v_permlane32_swap_b32 v%d, v%d' % (164 + 2 * blk, 165 + 2 * blk))
    for blk in range(4):
        E('v_add_f32 v%d, v%d, v%d' % (164 + 2 * blk, 164 + 2 * blk, 165 + 2 * blk))
    for blk in range(4):
        E('v_mov_b32 v%d, v%d' % (165 + 2 * blk, 164 + 2 * blk))
    for blk in range(4):
        E('v_permlane16_swap_b32 v%d, v%d' % (164 + 2 * blk, 165 + 2 * blk))
    for blk in range(4):
        E('v_add_f32 v%d, v%d, v%d' % (164 + 2 * blk, 164 + 2 * blk, 165 + 2 * blk))
    for blk in range(4):
        m, ct = blk >> 1, blk & 1
        E('buffer_store_dword v%d, v130, %s, s34 offen offset:%d sc1' % (164 + 2 * blk, srd('WS'), m * 768 + ct * 16))
    E('s_branch ' + l1)
    E(l0 + ':')
    E('s_mov_b64 exec, 1')
    for q in range(4):
        E('buffer_load_dword a%d, v4, %s, 0 offen' % (136 + q, srd('WS')))
    E('s_mov_b64 exec, -1')
    E('s_waitcnt lgkmcnt(0)')
    E(l1 + ':')
    vm.seq += [('rl', 0)] * 4


def a1_grp(i):
    return ['buffer_load_dwordx4 v[%d:%d], v%d, %s, s%d offen' % (128 + i * 8 + b * 4, 131 + i * 8 + b * 4, 16 + b, srd('WS'), S_ROT + i) for b in range(2)]


def b1_grp(c, n):
    return ['s_add_u32 m0, s33, %d' % (c * 4 * 6144 + n * 1024),
            'buffer_load_dwordx4 v%d, %s, s%d offen lds' % (20 + n, srd('WS'), 28 + c)]


A1_PRE = int(os.environ.get('A1P', '5'))

KPB, VPB, QPB = 16, 28, 40
def KP(hh, b): return KPB + hh * 6 + (b + 1) * 2
def VP(hh, b): return VPB + hh * 6 + (b + 1) * 2
def QP(hh, b): return QPB + hh * 4 + b * 2


SKT = {2: 36, 4: 52}
BVO = {2: 8, 4: 248}


def splitk_setup(which):
    NKS = 4 if which == 2 else 11
    KT = 16 if which == 2 else 43
    OFFW = OFF_WOF if which == 2 else OFF_W2F
    SB = 44 if which == 2 else 72
    E('s_mul_i32 s%d, s%d, %d\ns_add_u32 s%d, s%d, %d' % (SB, S_J7, 4 * KT * 1024, SB, SB, OFFW))
    if os.environ.get('HACK'):
        E('s_mov_b32 s%d, %d' % (SB, OFFW))
    E('v_add_u32 v%d, s%d, v4' % (8 if which == 2 else 9, SB))
    if which == 2:
        if os.environ.get('ROT', 'j') == '0':
            E('s_mov_b32 s80, 0')
        else:
            E('s_and_b32 s80, s5, 3')
    else:
        if os.environ.get('ROT', 'j') == '0':
            E('s_mov_b32 s80, 0')
        else:
            E('s_mov_b32 s80, s%d' % S_J7)
    E('s_mul_i32 s81, s3, %d' % NKS)
    for pos in range(NKS):
        d = SKT[which] + pos
        if which == 2:
            E('s_add_u32 s%d, s80, %d' % (d, pos))
            E('s_and_b32 s%d, s%d, 3' % (d, d))
            E('s_add_u32 s%d, s%d, s81\ns_lshl_b32 s%d, s%d, 10' % (d, d, d, d))
        elif pos < 4:
            E('s_add_u32 s7, s3, %d\ns_mul_i32 s7, s7, 0x5556\ns_lshr_b32 s7, s7, 13\ns_lshl_b32 s%d, s7, 10' % (4 * pos, d))
        elif pos < 8:
            E('s_add_u32 s%d, s%d, 1024' % (d, d - 4))
        else:
            E('s_add_u32 s7, s3, %d\ns_lshr_b32 s6, s7, 1\ns_lshl_b32 s6, s6, 3\ns_and_b32 s%d, s7, 1\ns_mul_i32 s%d, s%d, 3\ns_add_u32 s6, s6, s%d\ns_add_u32 s6, s6, 4' % (4 * (pos - 8), d, d, d, d))
            E('s_add_u32 s7, s7, 32\ns_cmp_ge_u32 s7, 42\ns_cselect_b32 s6, s7, s6\ns_lshl_b32 s%d, s6, 10' % d)


def breg(which, pos, q):
    if which == 2:
        return 'a', 64 + (pos * 4 + q) * 4
    if pos < 7:
        return 'a', 128 + (pos * 4 + q) * 4
    return 'v', 176 + ((pos - 7) * 4 + q) * 4


def areg(which, pos, d):
    if pos < 8:
        return 'a', (pos * 4 + d) * 4
    return 'v', 128 + ((pos - 8) * 4 + d) * 4


def splitk_b_grps(which, pos):
    KT = 16 if which == 2 else 43
    grps = []
    for q in range(4):
        k, r = breg(which, pos, q)
        g_ = []
        if which == 4 and q == 0:
            g_ += ['s_cmp_ge_u32 s%d, %d' % (SKT[4] + pos, 43 * 1024), 's_cselect_b32 s63, 0x7f000000, s%d' % (SKT[4] + pos)]
        src = 63 if which == 4 else SKT[2] + pos
        if q:
            g_.append('s_add_u32 s79, s%d, %d' % (src, q * KT * 1024))
            src = 79
        g_.append('buffer_load_dwordx4 %s[%d:%d], v%d, %s, s%d offen sc1' % (k, r, r + 3, 8 if which == 2 else 9, srd('WS'), src))
        grps.append(g_)
    return grps


B4L_ROW = [4, 5, 0, 1]


def b4_lds_grps(pos):
    grps = []
    for q in range(4):
        g_ = []
        if q == 0:
            g_ += ['s_cmp_ge_u32 s%d, %d' % (SKT[4] + pos, 43 * 1024), 's_cselect_b32 s63, 0x7f000000, s%d' % (SKT[4] + pos)]
        src = 63
        if q:
            g_.append('s_add_u32 s79, s63, %d' % (q * 43 * 1024))
            src = 79
        g_ += ['s_add_u32 m0, s%d, %d' % (S_QB, B4L_ROW[pos - 7] * ROWB + q * 1024),
               'buffer_load_dwordx4 v9, %s, s%d offen sc1 lds' % (srd('WS'), src)]
        grps.append(g_)
    return grps


def p3_addr(u):
    return P3_ROW[u >> 2] * ROWB + (u & 3) * 4096


def p3_setup():
    E('s_lshl_b32 s6, s%d, 16\ns_lshl_b32 s7, s3, 14\ns_add_u32 s6, s6, s7\ns_add_u32 s6, s6, %d' % (S_PS, OFF_WF))
    if os.environ.get('HACK'):
        E('s_add_u32 s6, s7, %d' % OFF_WF)
    E('v_add_u32 v12, s6, v4')
    E('v_add_u32 v13, 0x10000, v12')
    E('v_add_u32 v14, 0x20000, v12')


def p3_b_grp(u):
    return ['s_add_u32 m0, s%d, %d' % (S_W1K, p3_addr(u)),
            'buffer_load_dwordx4 v%d, %s, s%d offen sc1 lds' % (12 + (u >> 4), srd('WS'), S_ROT + (u & 15))]


def p3_units_w123(units):
    for n, u in enumerate(units):
        for l in p3_b_grp(u):
            E(l)
    E('s_lshl_b32 s6, s3, 14')
    E('v_subrev_u32 v5, s6, v%d' % (12 + (units[0] >> 4)))
    for w in range(1, 4):
        lsk = lab('H')
        E('s_cmp_lg_u32 s3, %d' % w)
        E('s_cbranch_scc1 ' + lsk)
        for u in units[w - 1::3]:
            assert (u >> 4) == (units[0] >> 4)
            E('s_mov_b32 m0, %d' % p3_addr(u))
            E('buffer_load_dwordx4 v5, %s, s%d offen sc1 lds' % (srd('WS'), S_ROT + (u & 15)))
        E(lsk + ':')


def late_setup():
    E('v_mov_b32 v32, %s' % f32(-1e30))
    E('s_or_b32 s6, s4, s3')
    E('s_cmp_eq_u32 s6, 0')
    E('s_cselect_b32 s7, 64, 0')
    for r in range(4):
        E('v_lshl_add_u32 v33, v3, 2, %d' % r)
        E('v_sub_u32 v33, v2, v33')
        E('v_and_b32 v34, 0x80000001, v33')
        E('v_cmp_eq_u32 vcc, 0, v34')
        E('v_cndmask_b32 v35, v32, 0, vcc')
        E('v_accvgpr_write_b32 a%d, v35' % (240 + r))
        E('v_add_u32 v33, 16, v33')
        E('v_and_b32 v34, 1, v33')
        E('v_lshl_add_u32 v34, v34, 6, v33')
        E('v_cmp_gt_u32 vcc, 15, v34')
        E('v_cndmask_b32 v35, v32, 0, vcc')
        E('v_accvgpr_write_b32 a%d, v35' % (244 + r))
        E('v_add_u32 v34, s7, v34')
        E('v_cmp_gt_u32 vcc, 15, v34')
        E('v_cndmask_b32 v35, v32, 0, vcc')
        E('v_accvgpr_write_b32 a%d, v35' % (248 + r))
    splitk_setup(2)
    splitk_setup(4)
    p3_setup()


def phase1():
    vm.reset()
    stamp(0)
    E('v_lshlrev_b32 v28, 3, v0')
    for q in range(4):
        E('s_mov_b32 s6, %d' % (OFF_MODP + q * 12288))
        for h in range(2):
            r = 64 + (q * 2 + h) * 2
            vm.op('buffer_load_dwordx2 v[%d:%d], v28, %s, s6 offen offset:%d' % (r, r + 1, srd('WS'), h * 2048), ('tb', 0))
    E('s_lshl_b32 s%d, s%d, 10' % (S_ROT, S_RT))
    E('s_add_u32 s%d, s%d, 1024\ns_and_b32 s%d, s%d, 0x3fff' % (S_ROT + 1, S_ROT, S_ROT + 1, S_ROT + 1))
    E('s_mul_i32 s6, s5, %d\ns_add_u32 s6, s6, %d' % (6 * 16384, OFF_WQ))
    if os.environ.get('HACK'):
        E('s_mov_b32 s6, %d' % OFF_WQ)
    E('v_add_u32 v20, s6, v4')
    for t in range(1, 6):
        E('v_add_u32 v%d, %d, v20' % (20 + t, t * 16384))
    E('s_add_u32 s28, s%d, s%d\ns_and_b32 s28, s28, 0x3fff' % (S_ROT, S_W1K))
    E('s_mul_i32 s33, s3, 6144')
    for n in range(6):
        vm.grp(b1_grp(0, n), ('b1', 0))
    E('s_lshl_b32 s6, s%d, 14\ns_add_u32 s6, s6, %d' % (S_ROW, OFF_XH))
    E('v_add_u32 v16, s6, v4')
    E('v_add_u32 v17, 0x4000, v16')
    for i in range(2):
        vm.grp(a1_grp(i), ('a', i))
    for i in range(2, 16):
        E('s_add_u32 s%d, s%d, 1024\ns_and_b32 s%d, s%d, 0x3fff' % (S_ROT + i, S_ROT + i - 1, S_ROT + i, S_ROT + i))
    for c in range(1, 4):
        E('s_add_u32 s%d, s%d, 4096\ns_and_b32 s%d, s%d, 0x3fff' % (28 + c, 27 + c, 28 + c, 28 + c))
    for n in range(6):
        vm.grp(b1_grp(1, n), ('b1', 1))
    for i in range(2, A1_PRE):
        vm.grp(a1_grp(i), ('a', i))
    E('s_lshl_b32 s6, s%d, 4' % S_RT)
    E('v_subrev_u32 v29, s6, v0')
    E('v_and_b32 v29, 0xff, v29')
    E('v_lshrrev_b32 v30, 2, v29')
    E('v_lshlrev_b32 v30, 6, v30')
    E('v_and_b32 v29, 3, v29')
    E('v_lshl_add_u32 v30, v29, 3, v30')
    E('v_add_u32 v30, %d, v30' % L_TAB)
    E('v_add_u32 v19, 0x10000, v4')
    E('v_lshlrev_b32 v26, 6, v3')
    E('v_add_u32 v26, %d, v26' % L_TAB)
    E('s_waitcnt vmcnt(%d)' % vm.n_after([('tb', 0)]))
    for r in range(4):
        E('v_add_f32 v%d, v%d, v%d' % (64 + r, 64 + r, 68 + r))
        E('v_add_f32 v%d, v%d, v%d' % (72 + r, 72 + r, 76 + r))
    for r in range(4):
        E('v_add_f32 v%d, v%d, v%d' % (64 + r, 64 + r, 72 + r))
    for r in range(4):
        round_bf16(64 + r, 64 + r)
    for e in range(2):
        E('v_add_f32 v%d, 1.0, v%d' % (66 + e, 66 + e))
        round_bf16(66 + e, 66 + e)
    E('ds_write_b64 v30, v[66:67]\nds_write_b64 v30, v[64:65] offset:32')
    E('v_and_b32 v29, 31, v1')
    E('v_lshrrev_b32 v31, 5, v1')
    E('v_lshlrev_b32 v31, 11, v31')
    E('v_lshl_add_u32 v29, v29, 2, v31')
    E('s_lshl_b32 s35, s4, 7')
    for q in range(4):
        E('s_add_u32 s6, s35, %d' % (OFF_MODP + q * 12288 + 1536 * 4))
        vm.op('buffer_load_dword a%d, v29, %s, s6 offen' % (144 + q, srd('WS')), ('sm', 0))
    E('v_lshlrev_b32 v29, 2, v1')
    E('s_cmp_eq_u32 s3, 2')
    E('s_cselect_b32 s6, 5, 2')
    E('s_cmp_eq_u32 s3, 3')
    E('s_cselect_b32 s6, 4, s6')
    E('s_lshl_b32 s6, s6, 9')
    E('s_add_u32 s6, s6, s%d\ns_lshl_b32 s35, s6, 2' % S_C0)
    for q in range(4):
        E('s_add_u32 s6, s35, %d' % (OFF_MODP + q * 12288))
        vm.op('buffer_load_dword a%d, v29, %s, s6 offen' % (148 + q, srd('WS')), ('sm', 0))
    relayout_issue()
    stamp(1)
    ACC = 64
    TB = (32, 232)

    def bread(pos, buf, ts=range(6), dyn=None):
        out = []
        for t in ts:
            off = pos * 6144 + t * 1024
            d = buf * 24 + t * 4
            if dyn is not None:
                out.append('ds_read_b128 a[%d:%d], v%d offset:%d' % (d, d + 3, dyn, off))
            else:
                out.append('ds_read_b128 a[%d:%d], v%d offset:%d' % (d, d + 3, 4 if off < 65536 else 19, off & 0xffff))
        return out

    def tread(ks, T, base=26):
        return ['ds_read_b128 v[%d:%d], v%d offset:%d' % (T + 4 * q + (2 if q >= 2 else 0), T + 4 * q + 3 + (2 if q >= 2 else 0), base, ks * 256 + q * 16) for q in range(4)]

    TMP = {48: [51 + e for e in range(8)], 56: [59, 60, 61, 62, 63, 40, 41, 50]}
    TMP[56] = [59, 60, 61, 62, 63, 248, 249, 250] if False else [59, 60, 61, 62, 63, 28, 29, 30]

    def modulate(src, T, tmp):
        t = TMP[tmp]
        un, fm, cv = [], [], []
        for e in range(8):
            fm.append('v_fma_mix_f32 v%d, v%d, v%d, v%d op_sel:[%d,0,0] op_sel_hi:[1,0,0]' % (t[e], src + e // 2, T + e, T + 10 + e, e & 1))
        for p in range(4):
            cv.append('v_cvt_pk_bf16_f32 v%d, v%d, v%d' % (src + p, t[2 * p], t[2 * p + 1]))
        return un, fm, cv

    def mm(acc, af, bf, seg, first):
        c = '0' if first else 'v[%d:%d]' % (acc, acc + 3)
        if seg < 2:
            return 'v_mfma_f32_16x16x32_bf16 v[%d:%d], a[%d:%d], v[%d:%d], %s' % (acc, acc + 3, bf, bf + 3, af, af + 3, c)
        return 'v_mfma_f32_16x16x32_bf16 v[%d:%d], v[%d:%d], a[%d:%d], %s' % (acc, acc + 3, af, af + 3, bf, bf + 3, c)

    def mod2(ks):
        u0, f0, c0 = modulate(128 + ks * 8, 32, 48)
        u1, f1, c1 = modulate(132 + ks * 8, 32, 56)
        return u0 + u1, f0 + f1, c0 + c1

    bg = {ks: [] for ks in range(16)}
    for i in range(A1_PRE, 16):
        bg[i - A1_PRE].append((a1_grp(i), ('a', i)))
    for n in range(6):
        bg[n // 2].append((b1_grp(2, n), ('b1', 2)))
        bg[4 + n // 2].append((b1_grp(3, n), ('b1', 3)))
    for q in range(4):
        bg[11 + q // 2].append((['buffer_load_dwordx4 a[%d:%d], v18, %s, s%d offen' % (48 + 4 * q, 51 + 4 * q, srd('WS'), 82 + q)], ('h', 0)))
    k = 0
    for pos in range(4):
        for g_ in splitk_b_grps(2, pos):
            bg[(8, 9, 10, 13, 14, 15)[k // 3]].append((g_, ('b2', pos)))
            k += 1
    global BGS
    BGS = [p3_b_grp(u) for u in range(0, 12)]
    BGS2 = [p3_b_grp(u) for u in range(12, 24)]
    E('s_lshl_b32 s6, s4, 17\ns_add_u32 s6, s6, %d' % (OFF_XH - 16384))
    E('s_cmp_eq_u32 s4, 0')
    E('s_cselect_b32 s6, 0x7f000000, s6')
    E('v_add_u32 v18, s6, v4')
    for q in range(4):
        E('s_lshl_b32 s6, s3, 12\ns_add_u32 s6, s6, s%d\ns_add_u32 s6, s6, %d\ns_and_b32 s%d, s6, 0x3fff' % (S_ROT, q * 1024, 82 + q))
    late_setup()
    E('s_waitcnt vmcnt(%d) lgkmcnt(0)' % vm.n_after([('b1', 0), ('a', 0)]))
    E('s_barrier')
    stamp(3)
    stamp(30, True)
    for o in tread(0, 32) + bread(0, 0):
        E(o)
    E('s_waitcnt lgkmcnt(6)')
    u0_, m0_, c0_ = mod2(0)
    for o in u0_ + m0_ + tread(1, 32) + c0_:
        E(o)
    for ks in range(16):
        buf = ks & 1
        if ks in (3, 7, 11):
            E('s_waitcnt vmcnt(%d)' % vm.n_after([('b1', (ks + 1) // 4)]  + ([('rd', 0), ('sm', 0)] if ks == 7 else [])))
            E('s_barrier')
            if ks == 7:
                relayout_process()
        if ks + 1 < 16:
            E('s_waitcnt lgkmcnt(4)')
            u_, m_, c_ = mod2(ks + 1)
            valu = m_ + c_
            br = bread(ks + 1, buf ^ 1)
            tr = tread(ks + 2, 32) if ks + 2 < 16 else []
        else:
            E('s_waitcnt lgkmcnt(0)')
            valu, br, tr = [], [], []
        mf = [mm(ACC + (b * 6 + t) * 4, 128 + ks * 8 + 4 * b, buf * 24 + t * 4, t // 2, ks == 0) for t in range(6) for b in range(2)]
        grp = list(bg[ks])
        for i, x_ in enumerate(mf):
            E(x_)
            if i < 6 and br:
                E(br.pop(0))
            if i == 2 and valu:
                E('s_waitcnt vmcnt(%d) lgkmcnt(3)' % vm.n_after([('a', ks + 1)]))
            if 2 <= i < 6:
                for o in valu[4 * (i - 2):4 * (i - 2) + 4]:
                    E(o)
            if 6 <= i < 10:
                if tr:
                    E(tr.pop(0))
                for o in valu[16 + 2 * (i - 6):16 + 2 * (i - 6) + 2]:
                    E(o)
            if grp and i % 3 == 1:
                g_, tag = grp.pop(0)
                vm.grp(g_, tag)
        assert not grp
    stamp(19)
    stamp(31, True)
    pace_on(PACE0)
    E('s_mul_i32 s6, s3, %d' % (4 * 6144))
    E('v_add_u32 v27, s6, v4')
    E('s_lshl_b32 s6, s3, 10')
    E('v_add_u32 v31, s6, v26')
    for q in range(4):
        for o in tread(q, 128 + 20 * q, 31):
            E(o)
    for q in range(2):
        for o in bread(q, q, range(2, 6), 27):
            E(o)
    E('s_waitcnt vmcnt(%d)' % vm.n_after([('h', 0)]))
    for r in range(16):
        E('v_accvgpr_read_b32 v%d, a%d' % (208 + r, 48 + r))
    E('s_waitcnt lgkmcnt(8)')
    for q2 in range(2):
        u0, f0, c0 = modulate(208 + 8 * q2, 128 + 40 * q2, 48)
        u1, f1, c1 = modulate(212 + 8 * q2, 148 + 40 * q2, 56)
        for o in u0 + u1 + f0 + f1 + c0 + c1:
            E(o)
    E('s_waitcnt lgkmcnt(0)')
    for q in range(2):
        for t in range(2, 6):
            E(mm(112 + (t - 2) * 4, 208 + 4 * q, q * 24 + t * 4, t // 2, q == 0))
    for q in range(2, 4):
        for o in bread(q, q & 1, range(2, 6), 27):
            E(o)
    for b in range(2):
        for hh in range(2):
            for seg, fn in ((0, QP), (1, KP), (2, VP)):
                a = ACC + (b * 6 + seg * 2 + hh) * 4
                d = fn(hh, b)
                E('v_cvt_pk_bf16_f32 v%d, v%d, v%d' % (d, a, a + 1))
                E('v_cvt_pk_bf16_f32 v%d, v%d, v%d' % (d + 1, a + 2, a + 3))
    E('s_waitcnt lgkmcnt(0)')
    for q in range(2, 4):
        for t in range(2, 6):
            E(mm(112 + (t - 2) * 4, 208 + 4 * q, (q & 1) * 24 + t * 4, t // 2, False))
    E('v_lshlrev_b32 v52, 3, v1')
    E('s_lshl_b32 s6, s3, 11\ns_add_u32 s6, s6, %d' % L_XCH)
    E('v_add_u32 v53, s6, v52')
    E('s_add_u32 s6, s3, 1\ns_and_b32 s6, s6, 3\ns_lshl_b32 s6, s6, 11\ns_add_u32 s6, s6, %d' % L_XCH)
    E('v_add_u32 v55, s6, v52')
    E('ds_write_b64 v55, v[%d:%d]' % (KP(0, 1), KP(0, 1) + 1))
    E('ds_write_b64 v55, v[%d:%d] offset:512' % (KP(1, 1), KP(1, 1) + 1))
    E('ds_write_b64 v55, v[%d:%d] offset:1024' % (VP(0, 1), VP(0, 1) + 1))
    E('ds_write_b64 v55, v[%d:%d] offset:1536' % (VP(1, 1), VP(1, 1) + 1))
    for r in range(12):
        E('v_accvgpr_read_b32 v%d, a%d' % (64 + r, 240 + r))
    E('v_add_u32 v54, s%d, v4' % S_QB)
    E('s_barrier')
    stamp(4)
    arrive_u(CW, barrier=False, soff=S_CNTJ)
    pace_on(PACE0)
    for t in range(4):
        E('ds_write_b128 v54, v[%d:%d] offset:%d' % (112 + 4 * t, 115 + 4 * t, L_HP + 1024 * t))
    BGS += BGS2
    E('s_mov_b32 s6, %s' % f32(0.25 * LOG2E))
    E('v_and_b32 v77, 1, v3')
    E('v_lshlrev_b32 v77, 9, v77')
    E('v_lshrrev_b32 v78, 1, v3')
    E('v_lshl_add_u32 v77, v78, 8, v77')
    E('v_lshl_add_u32 v77, v2, 4, v77')
    E('s_lshl_b32 s34, s%d, 14\ns_lshl_b32 s35, s5, 10\ns_add_u32 s34, s34, s35\ns_add_u32 s34, s34, %d' % (S_ROW, OFF_O))
    E('s_add_u32 s35, s34, 16384')
    E('s_waitcnt lgkmcnt(0)')
    E('s_barrier')
    pace_off()
    lw0, ljn = lab('A0'), lab('AJ')
    E('s_cmp_eq_u32 s3, 0')
    E('s_cbranch_scc1 ' + lw0)
    E('ds_read_b64 v[%d:%d], v53' % (KP(0, -1), KP(0, -1) + 1))
    E('ds_read_b64 v[%d:%d], v53 offset:512' % (KP(1, -1), KP(1, -1) + 1))
    E('ds_read_b64 v[%d:%d], v53 offset:1024' % (VP(0, -1), VP(0, -1) + 1))
    E('ds_read_b64 v[%d:%d], v53 offset:1536' % (VP(1, -1), VP(1, -1) + 1))
    E('s_waitcnt lgkmcnt(0)')
    E('s_branch ' + ljn)
    E(lw0 + ':')
    for w in range(1, 4):
        for t in range(4):
            E('ds_read_b128 v[%d:%d], v54 offset:%d' % (128 + 16 * w + 4 * t, 131 + 16 * w + 4 * t, L_HP + w * 4096 + t * 1024))
    E('s_waitcnt lgkmcnt(0)')
    for r in range(16):
        E('v_add_f32 v%d, v%d, v%d' % (112 + r, 112 + r, 144 + r))
        E('v_add_f32 v%d, v%d, v%d' % (160 + r, 160 + r, 176 + r))
    for r in range(16):
        E('v_add_f32 v%d, v%d, v%d' % (112 + r, 112 + r, 160 + r))
    for t, d in enumerate((KP(0, -1), KP(1, -1), VP(0, -1), VP(1, -1))):
        E('v_cvt_pk_bf16_f32 v%d, v%d, v%d' % (d, 112 + 4 * t, 113 + 4 * t))
        E('v_cvt_pk_bf16_f32 v%d, v%d, v%d' % (d + 1, 114 + 4 * t, 115 + 4 * t))
    E(ljn + ':')
    pace_on(PACE1)
    combos = [(b, hh) for b in (1, 0) for hh in range(2)]
    for c, (b, hh) in enumerate(combos):
        S = 128 + c * 8
        E('v_mfma_f32_16x16x16_bf16 v[%d:%d], v[%d:%d], v[%d:%d], 0' % (S, S + 3, KP(hh, b - 1), KP(hh, b - 1) + 1, QP(hh, b), QP(hh, b) + 1))
        E('v_mfma_f32_16x16x16_bf16 v[%d:%d], v[%d:%d], v[%d:%d], 0' % (S + 4, S + 7, KP(hh, b), KP(hh, b) + 1, QP(hh, b), QP(hh, b) + 1))

    def each(fn):
        for c, (b, hh) in enumerate(combos):
            fn(c, b, hh, 128 + c * 8, 160 + c * 2, 168 + c * 4)
    each(lambda c, b, hh, S, M, PB: [E('v_fma_f32 v%d, v%d, s6, v%d' % (S + r, S + r, ((72 + r if b == 0 else 68 + r) if r < 4 else 64 + r - 4))) for r in range(8)])
    each(lambda c, b, hh, S, M, PB: (E('v_max3_f32 v%d, v%d, v%d, v%d' % (M, S, S + 1, S + 2)), E('v_max3_f32 v%d, v%d, v%d, v%d' % (M + 1, S + 3, S + 4, S + 5))))
    each(lambda c, b, hh, S, M, PB: (E('v_max3_f32 v%d, v%d, v%d, v%d' % (M, M, S + 6, S + 7)), E('v_max_f32 v%d, v%d, v%d' % (M, M, M + 1))))
    for sw in ('v_permlane32_swap_b32', 'v_permlane16_swap_b32'):
        each(lambda c, b, hh, S, M, PB: E('v_mov_b32 v%d, v%d' % (M + 1, M)))
        each(lambda c, b, hh, S, M, PB: E('%s v%d, v%d' % (sw, M, M + 1)))
        each(lambda c, b, hh, S, M, PB: E('v_max_f32 v%d, v%d, v%d' % (M, M, M + 1)))
    each(lambda c, b, hh, S, M, PB: [E('v_sub_f32 v%d, v%d, v%d' % (S + r, S + r, M)) for r in range(8)])
    each(lambda c, b, hh, S, M, PB: [E('v_exp_f32 v%d, v%d' % (S + r, S + r)) for r in range(8)])
    each(lambda c, b, hh, S, M, PB: (E('v_add_f32 v%d, v%d, v%d' % (M, S, S + 1)), E('v_add_f32 v%d, v%d, v%d' % (M + 1, S + 2, S + 3)),
                                     E('v_add_f32 v%d, v%d, v%d' % (PB, S + 4, S + 5)), E('v_add_f32 v%d, v%d, v%d' % (PB + 1, S + 6, S + 7))))
    each(lambda c, b, hh, S, M, PB: (E('v_add_f32 v%d, v%d, v%d' % (M, M, M + 1)), E('v_add_f32 v%d, v%d, v%d' % (PB, PB, PB + 1))))
    each(lambda c, b, hh, S, M, PB: E('v_add_f32 v%d, v%d, v%d' % (M, M, PB)))
    for sw in ('v_permlane32_swap_b32', 'v_permlane16_swap_b32'):
        each(lambda c, b, hh, S, M, PB: E('v_mov_b32 v%d, v%d' % (M + 1, M)))
        each(lambda c, b, hh, S, M, PB: E('%s v%d, v%d' % (sw, M, M + 1)))
        each(lambda c, b, hh, S, M, PB: E('v_add_f32 v%d, v%d, v%d' % (M, M, M + 1)))
    each(lambda c, b, hh, S, M, PB: E('v_rcp_f32 v%d, v%d' % (M, M)))
    each(lambda c, b, hh, S, M, PB: [E('v_mul_f32 v%d, v%d, v%d' % (S + r, S + r, M)) for r in range(8)])
    each(lambda c, b, hh, S, M, PB: [E('v_cvt_pk_bf16_f32 v%d, v%d, v%d' % (PB + p, S + 2 * p, S + 2 * p + 1)) for p in range(4)])
    each(lambda c, b, hh, S, M, PB: E('v_mfma_f32_16x16x32_bf16 v[%d:%d], v[%d:%d], v[%d:%d], 0' % (184 + c * 4, 187 + c * 4, VP(hh, b - 1), VP(hh, b - 1) + 3, PB, PB + 3)))
    pace_off()
    for i, b in enumerate((1, 0)):
        O = 184 + i * 8
        D = 200 + i * 4
        for q in range(4):
            E('v_cvt_pk_bf16_f32 v%d, v%d, v%d' % (D + q, O + 2 * q, O + 2 * q + 1))
    for i, b in enumerate((1, 0)):
        D = 200 + i * 4
        E('v_permlane16_swap_b32 v%d, v%d' % (D, D + 2))
        E('v_permlane16_swap_b32 v%d, v%d' % (D + 1, D + 3))
        E('buffer_store_dwordx4 v[%d:%d], v77, %s, s%d offen sc1' % (D, D + 3, srd('WS'), 34 + b))
    stamp(5)


def ut_loads():
    E('s_sub_u32 s63, s3, 1')
    E('v_lshlrev_b32 v28, 5, v3')
    E('s_lshl_b32 s35, s4, 7')
    for q in range(4):
        E('s_add_u32 s6, s35, %d' % (OFF_MODP + q * 12288 + 1536 * 4))
        for h in range(4):
            r = 192 + (q * 4 + h) * 4
            E('buffer_load_dwordx4 v[%d:%d], v28, %s, s6 offen offset:%d' % (r, r + 3, srd('WS'), (h >> 1) * 2048 + (h & 1) * 16))
    E('v_lshlrev_b32 v29, 4, v2')
    E('s_cmp_eq_u32 s3, 2')
    E('s_cselect_b32 s6, 5, 2')
    E('s_cmp_eq_u32 s3, 3')
    E('s_cselect_b32 s6, 4, s6')
    E('s_lshl_b32 s6, s6, 9')
    E('s_add_u32 s6, s6, s%d\ns_lshl_b32 s35, s6, 2' % S_C0)
    for q in range(4):
        E('s_add_u32 s6, s35, %d' % (OFF_MODP + q * 12288))
        E('buffer_load_dwordx4 v[%d:%d], v29, %s, s6 offen' % (64 + 4 * q, 67 + 4 * q, srd('WS')))


def ut_compute():
    for r in range(16):
        E('v_add_f32 v%d, v%d, v%d' % (192 + r, 192 + r, 208 + r))
        E('v_add_f32 v%d, v%d, v%d' % (224 + r, 224 + r, 240 + r))
    for r in range(16):
        E('v_add_f32 v%d, v%d, v%d' % (192 + r, 192 + r, 224 + r))
    for e in range(8):
        round_bf16(200 + e, 200 + e)
        E('v_add_f32 v%d, 1.0, v%d' % (200 + e, 200 + e))
    for p in range(4):
        E('v_cvt_pk_bf16_f32 v%d, v%d, v%d' % (208 + p, 192 + 2 * p, 193 + 2 * p))
        E('v_cvt_pk_bf16_f32 v%d, v%d, v%d' % (212 + p, 200 + 2 * p, 201 + 2 * p))
    for r in range(8):
        E('v_accvgpr_write_b32 a%d, v%d' % (128 + r, 208 + r))
    E('s_cmp_eq_u32 s3, 3')
    E('s_cselect_b32 s6, 1.0, 0')
    for r in range(4):
        E('v_add_f32 v%d, v%d, v%d' % (64 + r, 64 + r, 68 + r))
        E('v_add_f32 v%d, v%d, v%d' % (72 + r, 72 + r, 76 + r))
        E('v_add_f32 v%d, v%d, v%d' % (64 + r, 64 + r, 72 + r))
        round_bf16(64 + r, 64 + r)
        E('v_add_f32 v%d, s6, v%d' % (64 + r, 64 + r))
        round_bf16(64 + r, 64 + r)
    E('s_lshl_b32 s6, s63, 8\ns_add_u32 s6, s6, %d' % L_GA)
    E('v_add_u32 v5, s6, v29')
    E('ds_write_b128 v5, v[64:67]')


def gather_ut(half):
    E('s_mul_i32 s34, s5, %d\ns_add_u32 s34, s34, %d' % (16 * 1536, OFF_UT + half * 1024))
    if half:
        E('s_mov_b32 exec_lo, -1\ns_mov_b32 exec_hi, 0')
    for kg in range(16):
        E('s_add_u32 s35, s34, %d' % (kg * 1536))
        E('buffer_load_dwordx4 v[%d:%d], v4, %s, s35 offen sc1' % (128 + 4 * kg, 131 + 4 * kg, srd('WS')))
    E('s_waitcnt vmcnt(0)')
    for step in (8, 4, 2, 1):
        for kg in range(step):
            for r in range(4):
                E('v_add_f32 v%d, v%d, v%d' % (128 + 4 * kg + r, 128 + 4 * kg + r, 128 + 4 * (kg + step) + r))
    E('v_add_u32 v5, %d, v4' % (L_UT + half * 1024))
    E('ds_write_b128 v5, v[128:131]')
    E('s_mov_b64 exec, -1')
    E('s_waitcnt lgkmcnt(0)')


def sync_window(cnt, common, jobs):
    E('s_waitcnt vmcnt(0)')
    E('s_barrier')
    lo, le = lab('SO'), lab('SE')
    E('s_cmp_lg_u32 s3, 0')
    E('s_cbranch_scc1 ' + lo)
    arrive(S_CNTG, cnt)
    poll_ge(S_CNTG, cnt, 16)
    E('s_branch ' + le)
    E(lo + ':')
    if common:
        common()
    for w in jobs:
        lsk = lab('SJ')
        E('s_cmp_lg_u32 s3, %d' % w)
        E('s_cbranch_scc1 ' + lsk)
        jobs[w]()
        E(lsk + ':')
    E(le + ':')
    E('s_barrier')


def splitk_phase(which, nb_pre, bg_loop=(), bg_red=()):
    NKS = 4 if which == 2 else 11
    KTOT = 16 if which == 2 else 43
    AOFF = OFF_O if which == 2 else OFF_HH
    APRE = int(os.environ.get('APRE', '4'))
    st0 = 6 if which == 2 else 11
    stamp(st0)
    if which == 2:
        vm.reset()
    E('s_lshr_b32 s6, s%d, 4' % S_R0)
    for d in range(4):
        E('s_add_u32 s7, s3, %d\ns_and_b32 s7, s7, 3\ns_add_u32 s7, s7, s6\ns_mul_i32 s7, s7, %d\ns_add_u32 s7, s7, %d' % (d, KTOT * 1024, AOFF))
        E('v_add_u32 v%d, s7, v4' % (20 + d))

    def a_grps(pos):
        grps = []
        for d in range(4):
            g_ = []
            so = SKT[which] + pos
            if which == 4:
                if d == 0:
                    g_.append('s_min_u32 s35, s%d, %d' % (so, 42 * 1024))
                so = 35
            k, r = areg(which, pos, d)
            g_.append('buffer_load_dwordx4 %s[%d:%d], v%d, %s, s%d offen sc1' % (k, r, r + 3, 20 + d, srd('WS'), so))
            grps.append(g_)
        return grps
    TA = 'a' if which == 2 else 'a4'
    if which == 4:
        E('s_waitcnt vmcnt(%d)' % vm.n_after([('cka', 0)]))
        check_or_poll(7, CHA)
    for pos in range(min(APRE, NKS)):
        for g_ in a_grps(pos):
            vm.grp(g_, (TA, pos))
    if which == 4:
        E('v_mov_b32 v6, %d' % CHB)
        vm.op('buffer_load_dword v7, v6, %s, s%d offen sc1' % (srd('WS'), S_CNTG), ('ckb', 0))
        E('s_waitcnt vmcnt(%d)' % vm.n_after([('hs2', 0)]))
        arrive_u(CH)
    E('s_lshl_b32 s34, s3, 4\ns_add_u32 s34, s34, s%d' % S_R0)
    E('v_add_u32 v24, s34, v2')
    E('v_lshlrev_b32 v25, 10, v24')
    E('v_lshl_add_u32 v25, v3, 4, v25')
    E('v_add_u32 v16, s%d, v4' % S_QB)
    ACC = 64
    if which == 2:
        vm.grp(['s_lshl_b32 s35, s%d, 1' % S_C0, 'buffer_load_dwordx4 v[160:163], v25, %s, s35 offen' % srd('X'),
                'buffer_load_dwordx4 v[164:167], v25, %s, s35 offen offset:64' % srd('X')], ('x', 0))
    bgq = list(bg_loop)
    nb = nb_pre
    for pos in range(NKS):
        if which == 4 and pos == 0:
            E('s_waitcnt vmcnt(%d)' % vm.n_after([('ckb', 0)]))
            check_or_poll(7, CHB)
        if which == 4 and pos == 3:
            E('v_mov_b32 v6, %d' % CH)
            vm.op('buffer_load_dword v7, v6, %s, s%d offen sc1' % (srd('WS'), S_CNTG), ('ckc', 0))
        if which == 4 and pos == 4:
            E('s_waitcnt vmcnt(%d)' % vm.n_after([('ckc', 0)]))
            check_or_poll(7, CH)
        E('s_waitcnt vmcnt(%d)' % vm.n_after([(TA, pos), ('b', pos)]))
        if which == 4 and pos == 1:
            E('v_add_u32 v17, 0x10000, v16')
            for pp in range(7, 11):
                for q in range(4):
                    k_, r_ = breg(4, pp, q)
                    off = B4L_ROW[pp - 7] * ROWB + q * 1024
                    E('ds_read_b128 v[%d:%d], v%d offset:%d' % (r_, r_ + 3, 16 + (off >> 16), off & 0xffff))
        if which == 4 and pos == 7:
            E('s_waitcnt lgkmcnt(0)')
        grp = []
        if pos + APRE < NKS:
            grp += [(g_, (TA, pos + APRE)) for g_ in a_grps(pos + APRE)]
        if nb < NKS:
            grp += [(g_, ('b', nb)) for g_ in splitk_b_grps(which, nb)]
            nb += 1
        while bgq and len(grp) < 8 and pos + APRE >= NKS:
            grp.append((bgq.pop(0), ('bg', 0)))
        i = 0
        for d in range(4):
            for ct in range(4):
                acc = ACC + (d * 4 + ct) * 4
                bk, bf = breg(which, pos, ct)
                ak, af = areg(which, pos, d)
                c = '0' if pos == 0 else 'v[%d:%d]' % (acc, acc + 3)
                E('v_mfma_f32_16x16x32_bf16 v[%d:%d], %s[%d:%d], %s[%d:%d], %s' % (acc, acc + 3, bk, bf, bf + 3, ak, af, af + 3, c))
                if grp and i % 2 == 1:
                    g_, tag = grp.pop(0)
                    vm.grp(g_, tag)
                i += 1
        assert not grp
    assert not bgq
    stamp(st0 + 1)
    for d in range(1, 4):
        E('s_add_u32 s7, s3, %d\ns_and_b32 s7, s7, 3\ns_lshl_b32 s7, s7, 12\ns_add_u32 s7, s7, %d' % (d, (RED_ROW + d - 1) * ROWB))
        E('v_add_u32 v%d, s7, v4' % (26 + d))
    E('v_lshlrev_b32 v22, 5, v3')
    E('v_add_u32 v22, %d, v22' % L_GA)
    go = 0 if which == 2 else 256
    for c in range(2):
        for hlf in range(2):
            E('ds_read_b128 v[%d:%d], v22 offset:%d' % (168 + c * 8 + hlf * 4, 171 + c * 8 + hlf * 4, go + c * 128 + hlf * 16))
    if which == 2:
        for c in range(2):
            for hlf in range(2):
                E('ds_read_b128 v[%d:%d], v22 offset:%d' % (208 + c * 8 + hlf * 4, 211 + c * 8 + hlf * 4, 512 + c * 128 + hlf * 16))
    if which == 4:
        E('s_barrier')
    for d in range(1, 4):
        for ct in range(4):
            acc = ACC + (d * 4 + ct) * 4
            E('ds_write_b128 v%d, v[%d:%d] offset:%d' % (26 + d, acc, acc + 3, ct * 1024))
    for g_ in bg_red:
        vm.grp(g_, ('bg', 0))
    if which == 4:
        for r in range(8):
            E('v_accvgpr_read_b32 v%d, a%d' % (160 + r, 240 + r))
    else:
        E('s_waitcnt vmcnt(%d)' % vm.n_after([('x', 0)]))
    for i in range(16):
        src = 160 + i // 2
        if i % 2 == 0:
            E('v_lshlrev_b32 v%d, 16, v%d' % (192 + i, src))
        else:
            E('v_and_b32 v%d, 0xffff0000, v%d' % (192 + i, src))
    E('v_add_u32 v26, %d, v16' % (RED_ROW * ROWB))
    E('s_waitcnt lgkmcnt(0)')
    E('s_barrier')
    for d in range(1, 4):
        for ct in range(4):
            acc = ACC + (d * 4 + ct) * 4
            E('ds_read_b128 v[%d:%d], v26 offset:%d' % (acc, acc + 3, (d - 1) * ROWB + ct * 1024))
    E('s_waitcnt lgkmcnt(8)')
    for r in range(16):
        E('v_add_f32 v%d, v%d, v%d' % (ACC + r, ACC + r, ACC + 16 + r))
    E('s_waitcnt lgkmcnt(0)')
    for r in range(16):
        E('v_add_f32 v%d, v%d, v%d' % (ACC + 32 + r, ACC + 32 + r, ACC + 48 + r))
    for r in range(16):
        E('v_add_f32 v%d, v%d, v%d' % (ACC + r, ACC + r, ACC + 32 + r))
    for i in range(16):
        E('v_fma_f32 v%d, v%d, v%d, v%d' % (ACC + i, ACC + i, 168 + i, 192 + i))
    for p in range(8):
        E('v_cvt_pk_bf16_f32 v%d, v%d, v%d' % (184 + p, ACC + 2 * p, ACC + 2 * p + 1))
    if which == 2:
        for p in range(8):
            E('v_lshlrev_b32 v%d, 16, v%d' % (ACC + 2 * p, 184 + p))
            E('v_and_b32 v%d, 0xffff0000, v%d' % (ACC + 2 * p + 1, 184 + p))
        for i in range(16):
            E('v_mul_f32 v%d, v%d, v%d' % (208 + i, ACC + i, 208 + i))
        for p in range(8):
            E('v_cvt_pk_bf16_f32 v%d, v%d, v%d' % (224 + p, 208 + 2 * p, 209 + 2 * p))
        E('s_lshr_b32 s34, s%d, 4\ns_add_u32 s34, s34, s3\ns_lshl_b32 s34, s34, 14' % S_R0)
        E('s_lshl_b32 s35, s%d, 5\ns_add_u32 s34, s34, s35\ns_add_u32 s34, s34, %d' % (S_C0, OFF_X1))
        E('buffer_store_dwordx4 v[224:227], v4, %s, s34 offen sc1' % srd('WS'))
        E('buffer_store_dwordx4 v[228:231], v4, %s, s34 offen offset:1024 sc1' % srd('WS'))
        for step in (8, 4, 2, 1):
            for i in range(step):
                E('v_add_f32 v%d, v%d, v%d' % (96 + i, (ACC if step == 8 else 96) + i, (ACC if step == 8 else 96) + i + step))
        allreduce_lg('v_add_f32', 96, 28)
        E('v_mul_f32 v26, %s, v96' % f32(1.0 / 64))
        for i in range(16):
            E('v_sub_f32 v%d, v%d, v26' % (ACC + i, ACC + i))
        for i in range(4):
            E('v_mul_f32 v%d, v%d, v%d' % (96 + i, ACC + i, ACC + i))
        for i in range(4, 16):
            E('v_fmac_f32 v%d, v%d, v%d' % (96 + (i & 3), ACC + i, ACC + i))
        E('v_add_f32 v96, v96, v97\nv_add_f32 v98, v98, v99\nv_add_f32 v27, v96, v98')
        allreduce_lg('v_add_f32', 27, 28)
        E('v_lshlrev_b32 v28, 3, v24')
        E('s_lshl_b32 s35, s%d, 14\ns_add_u32 s35, s35, %d' % (S_J7, OFF_ST))
        E('s_mov_b64 exec, 0xffff')
        E('buffer_store_dwordx2 v[26:27], v28, %s, s35 offen sc1' % srd('WS'))
        E('s_mov_b64 exec, -1')
        for r in range(8):
            E('v_accvgpr_write_b32 a%d, v%d' % (240 + r, 184 + r))
    else:
        E('s_lshl_b32 s35, s%d, 1' % S_C0)
        E('buffer_store_dwordx4 v[184:187], v25, %s, s35 offen' % srd('OUT'))
        E('buffer_store_dwordx4 v[188:191], v25, %s, s35 offen offset:64' % srd('OUT'))
    stamp(st0 + 2)


A3_PRE = int(os.environ.get('A3P', '6'))
NB4_EARLY = int(os.environ.get('NB4E', '2'))


def arrive_u(cnt, barrier=True, soff=None, n=1):
    if barrier:
        E('s_barrier')
    E('s_cmp_eq_u32 s3, 0')
    E('s_cselect_b32 s6, s%d, 0x7f000000' % (soff if soff is not None else S_CNTG))
    E('s_mov_b64 exec, 1')
    E('v_mov_b32 v5, 1')
    E('v_mov_b32 v6, %d' % cnt)
    vm.op('buffer_atomic_add v5, v6, %s, s6 offen' % srd('WS'), ('arr', 0))
    E('s_mov_b64 exec, -1')


def check_or_poll(reg, cnt):
    lok = lab('CK')
    E('v_cmp_gt_u32 vcc, 16, v%d' % reg)
    E('s_cbranch_vccz ' + lok)
    poll_ge(S_CNTG, cnt, 16)
    E(lok + ':')


def phase3():
    stamp(9)
    vm.reset()
    E('s_lshl_b32 s6, s%d, 14\ns_add_u32 s6, s6, %d' % (S_ROW, OFF_X1))
    E('v_add_u32 v20, s6, v4')
    E('v_add_u32 v21, 0x4000, v20')
    E('s_lshl_b32 s7, s%d, 7\ns_add_u32 s7, s7, %d' % (S_ROW, OFF_ST))
    E('v_lshlrev_b32 v22, 3, v2')
    E('v_add_u32 v22, s7, v22')

    def a_grp(i):
        return ['buffer_load_dwordx4 a[%d:%d], v%d, %s, s%d offen sc1' % (i * 8 + b * 4, i * 8 + b * 4 + 3, 20 + b, srd('WS'), S_ROT + i) for b in range(2)]
    for i in range(A3_PRE):
        vm.grp(a_grp(i), ('a', i))
    stg = []
    for t in range(8):
        stg.append((['s_mov_b32 s35, %d' % (t * 16384)] + ['buffer_load_dwordx2 v[%d:%d], v22, %s, s35 offen offset:%d sc1' % (192 + b * 16 + 2 * t, 193 + b * 16 + 2 * t, srd('WS'), b * 128) for b in range(2)], ('st', 0)))
    E('v_add_u32 v16, 0x10000, v4')
    E('v_add_u32 v17, 0x20000, v4')
    E('v_lshlrev_b32 v18, 5, v3')
    E('v_add_u32 v18, %d, v18' % L_UT)
    E('s_mul_i32 s6, s%d, %d\ns_lshl_b32 s7, s%d, 10\ns_add_u32 s6, s6, s7\ns_add_u32 s6, s6, %d' % (S_ROW, 43 * 1024, S_PS, OFF_HH))
    E('v_add_u32 v23, s6, v4')
    E('v_add_u32 v24, %d, v23' % (43 * 1024))
    E('s_add_u32 s6, s5, 1\ns_mul_i32 s6, s6, 0x5556\ns_lshr_b32 s6, s6, 13\ns_sub_u32 s6, s6, s%d' % S_PS)
    E('s_cmp_eq_u32 s5, 15')
    E('s_cselect_b32 s6, 3, s6')
    E('s_cmp_eq_u32 s6, 2')
    E('s_cselect_b32 s32, 0x7f000000, 0')
    E('s_mov_b32 s34, %s' % f32(-LOG2E))
    E('s_waitcnt vmcnt(%d)' % vm.n_after([('a', 0)]))
    E('s_barrier')

    def stats_ops():
        ops = []
        for b in range(2):
            B = 192 + b * 16
            mean, rs, t1, t2 = 26 + 2 * b, 27 + 2 * b, 30 + 2 * b, 31 + 2 * b
            ops.append('v_add_f32 v%d, v%d, v%d' % (mean, B, B + 2))
            ops.append('v_add_f32 v%d, v%d, v%d' % (rs, B + 1, B + 3))
            for t in range(2, 8):
                ops.append('v_add_f32 v%d, v%d, v%d' % (mean, mean, B + 2 * t))
                ops.append('v_add_f32 v%d, v%d, v%d' % (rs, rs, B + 2 * t + 1))
            ops.append('v_mul_f32 v%d, %s, v%d' % (mean, f32(0.125), mean))
            ops.append('v_mov_b32 v%d, 0' % t2)
            for t in range(8):
                ops.append('v_sub_f32 v%d, v%d, v%d' % (t1, B + 2 * t, mean))
                ops.append('v_fmac_f32 v%d, v%d, v%d' % (t2, t1, t1))
            ops.append('v_mov_b32 v%d, %s' % (t1, f32(64.0)))
            ops.append('v_fmac_f32 v%d, v%d, v%d' % (rs, t2, t1))
            ops.append('v_mul_f32 v%d, %s, v%d' % (rs, f32(1.0 / 512), rs))

            def rnd(x):
                ops.append('v_cvt_pk_bf16_f32 v%d, v%d, v%d' % (x, x, x))
                ops.append('v_and_b32 v%d, 0xffff0000, v%d' % (x, x))
            rnd(mean); rnd(rs)
            ops.append('v_add_f32 v%d, %s, v%d' % (rs, f32(1e-5), rs))
            rnd(rs)
            ops.append('v_sqrt_f32 v%d, v%d' % (rs, rs))
            rnd(rs)
            ops.append('v_rcp_f32 v%d, v%d' % (rs, rs))
        return ops

    def bread(u):
        out = []
        for q in range(4):
            d = 128 + (u % 3) * 16 + q * 4
            off = p3_addr(u) + q * 1024
            out.append('ds_read_b128 v[%d:%d], v%d offset:%d' % (d, d + 3, (4, 16, 17)[off >> 16], off & 0xffff))
        return out

    def utread(p):
        ops = []
        for m in range(2):
            for ut in range(2):
                d = 176 + (m * 2 + ut) * 8
                off = (m * 2 + ut) * 384 + p * 128
                ops.append('ds_read_b128 v[%d:%d], v18 offset:%d' % (d, d + 3, off))
                ops.append('ds_read_b128 v[%d:%d], v18 offset:%d' % (d + 4, d + 7, off + 16))
        return ops

    def epilogue(p):
        ops = []
        A0 = 64 + (p & 1) * 32
        for b in range(2):
            mean, rs = 26 + 2 * b, 27 + 2 * b
            T = 208 + b * 8
            regs = []
            for e in range(8):
                ct, r = e >> 2, e & 3
                regs.append((A0 + (b * 4 + 0 + ct) * 4 + r, A0 + (b * 4 + 2 + ct) * 4 + r))
            for e, (ga, ua) in enumerate(regs):
                ops.append('v_fma_f32 v%d, -v%d, v%d, v%d' % (ga, mean, 176 + e, ga))
                ops.append('v_fma_f32 v%d, -v%d, v%d, v%d' % (ua, mean, 192 + e, ua))
            for e, (ga, ua) in enumerate(regs):
                ops.append('v_fma_f32 v%d, v%d, v%d, v%d' % (ga, ga, rs, 184 + e))
                ops.append('v_fma_f32 v%d, v%d, v%d, v%d' % (ua, ua, rs, 200 + e))
            for e, (ga, ua) in enumerate(regs):
                ops.append('v_mul_f32 v%d, s34, v%d' % (T + e, ga))
            for e, (ga, ua) in enumerate(regs):
                ops.append('v_exp_f32 v%d, v%d' % (T + e, T + e))
                ops.append('v_mul_f32 v%d, v%d, v%d' % (ga, ga, ua))
            for e, (ga, ua) in enumerate(regs):
                ops.append('v_add_f32 v%d, 1.0, v%d' % (T + e, T + e))
            for e, (ga, ua) in enumerate(regs):
                ops.append('v_rcp_f32 v%d, v%d' % (T + e, T + e))
            for e, (ga, ua) in enumerate(regs):
                ops.append('v_mul_f32 v%d, v%d, v%d' % (T + e, T + e, ga))
            D = 224 + b * 4
            for q in range(4):
                ops.append('v_cvt_pk_bf16_f32 v%d, v%d, v%d' % (D + q, T + 2 * q, T + 2 * q + 1))
            ops.append('buffer_store_dwordx4 v[%d:%d], v%d, %s, %s offen offset:%d sc1' % (D, D + 3, 23 + b, srd('WS'), 's32' if p == 2 else '0', p * 1024))
        return ops

    for o in bread(0) + bread(1):
        E(o)
    pend = []
    bgq = [(p3_b_grp(uu), ('b3a', 0)) for uu in range(24, 36)]
    for p in range(3):
        A0 = 64 + (p & 1) * 32
        for ks in range(16):
            u = p * 16 + ks
            if ks == 0 and p >= 1:
                for o in utread(p - 1):
                    E(o)
                E('s_waitcnt lgkmcnt(0)')
                if p == 2:
                    E('s_waitcnt vmcnt(%d)' % vm.n_after([('b3', 0), ('hs', 0)]))
                E('s_barrier')
                stamp(20 + p)
                if p == 2:
                    arrive_u(CHA, barrier=False)
                if p == 1:
                    bgq = [(p3_b_grp(uu), ('b3', 0)) for uu in range(36, 48)] + [(g_, ('b4', 0)) for pos in range(0, 3) for g_ in splitk_b_grps(4, pos)]
                else:
                    bgq = [(g_, ('b4', 0)) for pos in range(3, 7) for g_ in splitk_b_grps(4, pos)] + [(g_, ('b4l', 0)) for pos in range(7, 11) for g_ in b4_lds_grps(pos)]
                pend = epilogue(p - 1)
            if p == 1 and ks == 4:
                E('s_waitcnt vmcnt(%d)' % vm.n_after([('b3a', 0)]))
                E('s_barrier')
            if p == 0 and ks == 11:
                E('s_waitcnt vmcnt(%d)' % vm.n_after([('st', 0)]))
                pend = stats_ops()
            lds = bread(u + 2) if u + 2 < 48 else []
            nl = 4 if u + 1 < 48 else 0
            if p == 0:
                E('s_waitcnt vmcnt(%d) lgkmcnt(%d)' % (vm.n_after([('a', ks)]), nl))
            else:
                E('s_waitcnt lgkmcnt(%d)' % nl)
            grp = []
            if p == 0 and ks + A3_PRE < 16:
                grp.append((a_grp(ks + A3_PRE), ('a', ks + A3_PRE)))
                if stg:
                    grp.append(stg.pop(0))
            else:
                for _ in range(2):
                    if bgq:
                        grp.append(bgq.pop(0))
            i = 0
            for q in range(4):
                for b in range(2):
                    acc = A0 + (b * 4 + q) * 4
                    bf = 128 + (u % 3) * 16 + q * 4
                    af = ks * 8 + b * 4
                    c = '0' if ks == 0 else 'v[%d:%d]' % (acc, acc + 3)
                    E('v_mfma_f32_16x16x32_bf16 v[%d:%d], v[%d:%d], a[%d:%d], %s' % (acc, acc + 3, bf, bf + 3, af, af + 3, c))
                    n = 3
                    if i < len(lds):
                        E(lds[i]); n = 2
                    if i in (4, 6) and grp:
                        g_, tag = grp.pop(0)
                        vm.grp(g_, tag)
                        n = 0
                    i += 1
                    for _ in range(n):
                        if pend:
                            o = pend.pop(0)
                            if o.startswith('buffer_'):
                                vm.op(o, ('hs', 0))
                            else:
                                E(o)
        for o in pend:
            if o.startswith('buffer_'):
                vm.op(o, ('hs', 0))
            else:
                E(o)
        pend = []
        assert not bgq
    stamp(23)
    for o in utread(2):
        E(o)
    E('s_waitcnt vmcnt(%d) lgkmcnt(0)' % vm.n_after([('hs', 0)]))
    arrive_u(CHB)
    E('v_mov_b32 v6, %d' % CHA)
    vm.op('buffer_load_dword v7, v6, %s, s%d offen sc1' % (srd('WS'), S_CNTG), ('cka', 0))
    for o in epilogue(2):
        if o.startswith('buffer_'):
            vm.op(o, ('hs2', 0))
        else:
            E(o)
    stamp(10)


def stop_here(n):
    if STOP == n:
        E('s_waitcnt vmcnt(0)')
        finish()
        return True
    return False


def main():
    kernel0()
    k1_prologue()
    phase1()
    if stop_here(1):
        return
    left = list(BGS)
    del BGS[:]
    sys.stderr.write('bg left after P1: %d\n' % len(left))
    sync_window(CO, None, {})
    allbg = left
    splitk_phase(2, 4, bg_loop=allbg[:32], bg_red=allbg[32:])
    if stop_here(2):
        return
    sync_window(C1, None, {1: lambda: (poll_ge(S_CNTJ, CW, 16), gather_ut(0)), 2: lambda: (poll_ge(S_CNTJ, CW, 16), gather_ut(1))})
    phase3()
    if stop_here(3):
        return
    splitk_phase(4, 11)
    E('s_waitcnt vmcnt(0)')
    finish()


main()
hdr = ['; @launch kernel=k0_kernel grid=(256,1,1) block=(256,1,1) lds=32768',
       '; @launch kernel=k1_kernel grid=(256,1,1) block=(256,1,1) lds=%d' % LDS_TOTAL,
       '.amdgcn_target "amdgcn-amd-amdhsa--gfx950"', '.text']
tail = ''
for name, nv, ao in (('k0_kernel', 128, 128), ('k1_kernel', 512, 256)):
    tail += """.section .rodata,"a"
.p2align 6
.amdhsa_kernel %s
  .amdhsa_next_free_vgpr %d
  .amdhsa_next_free_sgpr 102
  .amdhsa_accum_offset %d
  .amdhsa_group_segment_fixed_size 0
  .amdhsa_kernarg_size 96
  .amdhsa_user_sgpr_count 2
  .amdhsa_user_sgpr_kernarg_segment_ptr 1
  .amdhsa_system_sgpr_workgroup_id_x 1
.end_amdhsa_kernel
""" % (name, nv, ao)
print('\n'.join(hdr) + '\n' + E.text() + tail)
sys.stderr.write('instructions: %d\n' % E.nins)
```

```python
import sys, os, struct
from emit import Emitter

STOP = int(os.environ.get('STOP', '99'))
STAMPS = int(os.environ.get('STAMPS', '0'))

OFF_CNT = 0x0000000
OFF_MODP = 0x0010000
OFF_XH = 0x0100000
OFF_O = 0x0400000
OFF_X1 = 0x0700000
OFF_ST = 0x0A00000
OFF_HH = 0x0B00000
OFF_WF = 0x1100000
OFF_UT = 0x1400000
OFF_WQ = 0x1500000
OFF_WOF = 0x1700000
OFF_W2F = 0x1800000
OFF_STAMP = 0x8000000
CO, C1, CH, CW, CV, CHA, CHB = 128, 256, 384, 512, 640, 768, 896

SRD = dict(X=8, WQKV=12, WO=16, W1=20, W3=24, W2=28, C=32, WMOD=36, OUT=40, WS=48)
PTR = dict(X=64, WQKV=66, WO=68, W1=72, W3=74, W2=76, C=78, WMOD=80, OUT=82, WS=86)
SIZE = dict(X=2048 * 512 * 2, WQKV=512 * 1536 * 2, WO=512 * 512 * 2, W1=512 * 1376 * 2, W3=512 * 1376 * 2,
            W2=1376 * 512 * 2, C=1024, WMOD=512 * 3072 * 2, OUT=2048 * 512 * 2, WS=0x10000000)
LOG2E = 1.4426950408889634
SPIN_MAX = 400000

ROWB = 16384
L_MISC = 147456
L_TAB = L_MISC
L_XCH = L_MISC + 4096
L_UT = L_MISC + 12544
L_GA = L_MISC + 14080
LDS_TOTAL = 163840
P3_ROW = [6, 7, 8, 3, 4, 5, 0, 1, 2, 6, 7, 8]
RED_ROW = 0
L_STAMP = L_MISC + 14848
L_SCR = L_MISC + 15872
L_HP = 2 * ROWB

S_PS = 65
S_R0 = 66
S_C0 = 67
S_CNTG = 68
S_ROW = 69
S_QB = 70
S_J7 = 71
S_CNTJ = 64
S_W1K = 76
S_RT = 77
S_ROT = 12


def srd(n):
    return 's[%d:%d]' % (SRD[n], SRD[n] + 3)


def f32(x):
    return '0x%08x' % struct.unpack('<I', struct.pack('<f', x))[0]


E = Emitter()
_lab = [0]


def lab(p='L'):
    _lab[0] += 1
    return '%s_%d' % (p, _lab[0])


def stamp(slot, cyc=False):
    if not STAMPS:
        return
    E('s_memtime s[92:93]' if cyc else 's_memrealtime s[92:93]')
    E('s_lshl_b32 s91, s3, 8')
    E('s_add_u32 s91, s91, %d' % (L_STAMP + 4 * slot))
    E('s_waitcnt lgkmcnt(0)')
    E('v_mov_b32 v5, s92')
    E('v_mov_b32 v6, s91')
    E('ds_write_b32 v6, v5')
    E('s_waitcnt lgkmcnt(0)')


def finish():
    if STAMPS:
        E('s_lshl_b32 s92, s2, 2\ns_add_u32 s92, s92, s3\ns_lshl_b32 s92, s92, 8\ns_add_u32 s92, s92, %d' % OFF_STAMP)
        E('s_lshl_b32 s94, s3, 8\ns_add_u32 s94, s94, %d' % L_STAMP)
        E('v_lshlrev_b32 v6, 2, v1')
        E('v_add_u32 v7, s94, v6')
        E('s_mov_b32 exec_lo, -1\ns_mov_b32 exec_hi, 0xff')
        E('ds_read_b32 v5, v7')
        E('s_waitcnt lgkmcnt(0)')
        E('buffer_store_dword v5, v6, %s, s92 offen' % srd('WS'))
        E('s_waitcnt vmcnt(0)')
    E('s_endpgm')


class VM:
    def __init__(self):
        self.seq = []

    def reset(self):
        self.seq = []

    def op(self, text, tag=None):
        E(text)
        self.seq.append(tag)

    def grp(self, lines, tag=None):
        for l in lines:
            if l.startswith('buffer_'):
                self.op(l, tag)
            else:
                E(l)

    def n_after(self, tags):
        idx = max([i for i, t in enumerate(self.seq) if t in tags] + [-1])
        return min(63, len(self.seq) - 1 - idx)


vm = VM()


BGS = []
PACE0 = int(os.environ.get('PACE0', '6'))
PACE1 = int(os.environ.get('PACE1', '24'))
_E0 = E
_pace = {'n': 0, 'cnt': 0}


class PacedE:
    def __getattr__(self, k):
        return getattr(_E0, k)

    def __setattr__(self, k, v):
        setattr(_E0, k, v)

    def __call__(self, text):
        _E0(text)
        if _pace['n'] and BGS and not text.startswith(('s_cmp', 's_cselect', 's_add_u32 m0', 'v_cmp', 's_mov_b64 exec')):
            _pace['cnt'] += text.count('\n') + 1
            if _pace['cnt'] >= _pace['n']:
                _pace['cnt'] = 0
                g_ = BGS.pop(0)
                n = _pace['n']
                _pace['n'] = 0
                vm.grp(g_, ('bg', 0))
                _pace['n'] = n


E = PacedE()


def pace_on(n):
    _pace['n'] = n
    _pace['cnt'] = 0


def pace_off():
    _pace['n'] = 0


def allreduce_lg(op, v, tmp):
    E('v_mov_b32 v%d, v%d' % (tmp, v))
    E('v_permlane32_swap_b32 v%d, v%d' % (v, tmp))
    E('%s v%d, v%d, v%d' % (op, v, v, tmp))
    E('v_mov_b32 v%d, v%d' % (tmp, v))
    E('v_permlane16_swap_b32 v%d, v%d' % (v, tmp))
    E('%s v%d, v%d, v%d' % (op, v, v, tmp))


def round_bf16(dst, src):
    E('v_cvt_pk_bf16_f32 v%d, v%d, v%d' % (dst, src, src))
    E('v_and_b32 v%d, 0xffff0000, v%d' % (dst, dst))


def arrive(soff_reg, extra):
    E('s_mov_b64 exec, 1')
    E('v_mov_b32 v5, 1')
    E('v_mov_b32 v6, %d' % extra)
    E('buffer_atomic_add v5, v6, %s, s%d offen' % (srd('WS'), soff_reg))
    E('s_mov_b64 exec, -1')


def poll_ge(soff_reg, extra, target):
    l0, l1 = lab('P'), lab('P')
    E('s_mov_b64 exec, 1')
    E('v_mov_b32 v6, %d' % extra)
    E('s_mov_b32 s90, 0')
    E(l0 + ':')
    E('buffer_load_dword v5, v6, %s, s%d offen sc1' % (srd('WS'), soff_reg))
    E('s_add_u32 s90, s90, 1')
    E('s_cmp_gt_u32 s90, %d' % SPIN_MAX)
    E('s_cbranch_scc1 ' + l1)
    E('s_waitcnt vmcnt(0)')
    E('v_cmp_gt_u32 vcc, %d, v5' % target)
    E('s_cbranch_vccnz ' + l0)
    E(l1 + ':')
    E('s_mov_b64 exec, -1')


def reduce8(A):
    for sh in (4, 8):
        for e in range(8):
            E('v_add_f32_dpp v%d, v%d, v%d row_ror:%d row_mask:0xf bank_mask:0xf' % (A + e, A + e, A + e, sh))
    for e in range(4):
        E('v_permlane32_swap_b32 v%d, v%d' % (A + e, A + 4 + e))
    for e in range(4):
        E('v_add_f32 v%d, v%d, v%d' % (A + e, A + e, A + 4 + e))
    for e in range(2):
        E('v_permlane16_swap_b32 v%d, v%d' % (A + e, A + 2 + e))
    for e in range(2):
        E('v_add_f32 v%d, v%d, v%d' % (A + e, A + e, A + 2 + e))


def dot_rows(A, W, SC):
    for p in range(4):
        E('v_dot2_f32_bf16 v%d, v%d, v%d, v%d' % (A + 2 * p, W + p, SC, A + 2 * p))
        E('v_dot2_f32_bf16 v%d, v%d, v%d, v%d' % (A + 2 * p + 1, W + p, SC + 1, A + 2 * p + 1))


def prologue(name, nwg, bufs):
    E.raw('.globl %s\n.p2align 8\n.type %s,@function\n%s:' % (name, name, name))
    E.hist = []
    E('s_cmp_lt_u32 s2, %d' % nwg)
    E('s_cbranch_scc1 L_go_%s' % name)
    E('s_endpgm')
    E('L_go_%s:' % name)
    E('s_load_dwordx16 s[64:79], s[0:1], 0')
    E('s_load_dwordx8 s[80:87], s[0:1], 64')
    E('v_and_b32 v1, 63, v0')
    E('v_and_b32 v2, 15, v0')
    E('v_bfe_u32 v3, v0, 4, 2')
    E('v_lshrrev_b32 v4, 6, v0')
    E('v_readfirstlane_b32 s3, v4')
    E('v_lshlrev_b32 v4, 4, v1')
    MAP = os.environ.get('MAP', '42')
    if MAP == '81':
        E('s_and_b32 s4, s2, 7\ns_lshl_b32 s4, s4, 1\ns_bfe_u32 s5, s2, 0x10003\ns_or_b32 s4, s4, s5\ns_lshr_b32 s5, s2, 4')
    elif MAP == '42':
        E('s_bfe_u32 s4, s2, 0x20001\ns_lshl_b32 s4, s4, 2\ns_lshr_b32 s5, s2, 6\ns_or_b32 s4, s4, s5')
        E('s_and_b32 s5, s2, 1\ns_lshl_b32 s5, s5, 3\ns_bfe_u32 s6, s2, 0x30003\ns_or_b32 s5, s5, s6')
    else:
        E('s_bfe_u32 s4, s2, 0x10002\ns_lshl_b32 s4, s4, 3\ns_lshr_b32 s5, s2, 5\ns_or_b32 s4, s4, s5')
        E('s_and_b32 s5, s2, 3\ns_lshl_b32 s5, s5, 2\ns_bfe_u32 s6, s2, 0x20003\ns_or_b32 s5, s5, s6')
    E('s_waitcnt lgkmcnt(0)')
    for b in bufs:
        r = SRD[b]
        E('s_mov_b32 s%d, s%d\ns_and_b32 s%d, s%d, 0xffff\ns_mov_b32 s%d, 0x%x\ns_mov_b32 s%d, 0x20000' % (
            r, PTR[b], r + 1, PTR[b] + 1, r + 2, SIZE[b], r + 3))


def kernel0():
    prologue('k0_kernel', 256, list(SRD))
    if STAMPS:
        E('s_memrealtime s[94:95]')
    E('v_lshrrev_b32 v7, 2, v1')
    E('v_and_b32 v8, 3, v1')
    E('s_lshl_b32 s%d, s4, 10' % S_CNTG)
    lw23, lj = lab('W23'), lab('J')
    E('s_cmp_ge_u32 s3, 2')
    E('s_cbranch_scc1 ' + lw23)
    E('v_and_b32 v11, 7, v1')
    E('v_lshrrev_b32 v12, 3, v1')
    E('v_lshlrev_b32 v13, 10, v12')
    E('v_lshl_add_u32 v13, v11, 4, v13')
    E('v_lshlrev_b32 v14, 10, v11')
    E('v_lshl_add_u32 v14, v12, 4, v14')
    E('s_lshl_b32 s6, s4, 7\ns_lshl_b32 s7, s5, 3\ns_add_u32 s6, s6, s7\ns_lshl_b32 s54, s6, 10')
    E('s_lshl_b32 s7, s3, 9\ns_add_u32 s55, s54, s7')
    for i in range(8):
        E('buffer_load_dwordx4 v[%d:%d], v13, %s, s54 offen offset:%d' % (64 + 4 * i, 67 + 4 * i, srd('X'), i * 128))
    for i in range(4):
        E('buffer_load_dwordx4 v[%d:%d], v14, %s, s55 offen offset:%d' % (96 + 4 * i, 99 + 4 * i, srd('X'), i * 128))
    E('v_lshlrev_b32 v16, 7, v1')
    E('v_mov_b32 v19, 0')
    E('s_lshl_b32 s6, s3, 4\ns_or_b32 s6, s6, s5')
    E('s_cmp_eq_u32 s6, 0')
    E('s_cselect_b32 s58, s%d, 0x7f000000' % S_CNTG)
    E('s_mov_b64 exec, 0xff')
    E('buffer_store_dword v19, v16, %s, s58 offen' % srd('WS'))
    E('s_mov_b64 exec, 1')
    for q in range(3):
        E('buffer_load_dword v%d, v4, %s, 0 offen' % (60 + q, srd('C')))
    E('s_mov_b64 exec, -1')
    E('s_branch ' + lj)
    E(lw23 + ':')
    E('s_movk_i32 s6, 6144')
    E('v_mul_lo_u32 v9, v7, s6')
    E('v_lshl_add_u32 v9, v8, 4, v9')
    E('s_and_b32 s63, s2, 3')
    E('s_lshr_b32 s53, s2, 2\ns_lshl_b32 s53, s53, 1\ns_and_b32 s7, s3, 1\ns_add_u32 s53, s53, s7')
    E('v_lshlrev_b32 v10, 1, v7')
    E('s_lshl_b32 s6, s63, 8')
    for n in range(8):
        E('buffer_load_ushort v%d, v10, %s, s6 offen offset:%d' % (16 + n, srd('C'), n * 32))
    E('s_mul_i32 s58, s63, %d\ns_lshl_b32 s59, s53, 6\ns_add_u32 s58, s58, s59' % (128 * 6144))
    E('s_cmp_ge_u32 s2, 192')
    E('s_cselect_b32 s58, 0x7f000000, s58')
    for n in range(8):
        E('s_add_u32 s59, s58, %d' % (n * 16 * 6144))
        E('buffer_load_dwordx4 v[%d:%d], v9, %s, s59 offen' % (64 + 4 * n, 67 + 4 * n, srd('WMOD')))
    E(lj + ':')
    E('s_lshl_b32 s52, s2, 2\ns_add_u32 s52, s52, s3')
    E('s_lshl_b32 s%d, s3, 13' % S_QB)

    def tile_params(rnd):
        d0, d1, nat = 72 + 2 * rnd, 73 + 2 * rnd, 80 + rnd
        la, lb = lab('TA'), lab('TB')
        if rnd == 0:
            E('s_cmp_ge_u32 s52, 768')
            E('s_cbranch_scc1 ' + la)
            E('s_mov_b64 s[56:57], s[%d:%d]\ns_mov_b32 s58, 0x%x' % (SRD['WQKV'], SRD['WQKV'] + 1, SIZE['WQKV']))
            E('s_mul_i32 s6, s52, 1366\ns_lshr_b32 s6, s6, 16\ns_mul_i32 s7, s6, 48\ns_sub_u32 s7, s52, s7')
            E('s_mul_i32 s54, s6, %d\ns_lshl_b32 s60, s7, 6\ns_add_u32 s54, s54, s60\ns_movk_i32 s55, 3072' % (32 * 3072))
            E('s_and_b32 s60, s7, 15\ns_mul_i32 s60, s60, %d\ns_lshr_b32 s61, s7, 4\ns_lshl_b32 s61, s61, 15\ns_add_u32 s60, s60, s61' % (6 * 16384))
            E('s_lshl_b32 s6, s6, 10\ns_add_u32 s60, s60, s6\ns_add_u32 s%d, s60, %d\ns_add_u32 s%d, s%d, 16384' % (d0, OFF_WQ, d1, d0))
            E('s_mov_b32 s%d, 1' % nat)
            E('s_branch ' + lb)
            E(la + ':')
            E('s_mov_b64 s[56:57], s[%d:%d]\ns_mov_b32 s58, 0x%x' % (SRD['WO'], SRD['WO'] + 1, SIZE['WO']))
            E('s_sub_u32 s7, s52, 768\ns_lshr_b32 s6, s7, 4\ns_and_b32 s7, s7, 15')
            E('s_lshl_b32 s54, s6, 15\ns_lshl_b32 s60, s7, 6\ns_add_u32 s54, s54, s60\ns_movk_i32 s55, 1024')
            E('s_lshl_b32 s60, s7, 15\ns_lshl_b32 s6, s6, 10\ns_add_u32 s60, s60, s6\ns_add_u32 s%d, s60, %d\ns_add_u32 s%d, s%d, 16384' % (d0, OFF_WOF, d1, d0))
            E('s_mov_b32 s%d, 0' % nat)
        else:
            if rnd < 3:
                E('s_cmp_ge_u32 s52, 688')
                E('s_cbranch_scc1 ' + la)
                W = 'W1' if rnd == 1 else 'W3'
                E('s_mov_b64 s[56:57], s[%d:%d]\ns_mov_b32 s58, 0x%x' % (SRD[W], SRD[W] + 1, SIZE[W]))
                E('s_mul_i32 s6, s52, 1525\ns_lshr_b32 s6, s6, 16\ns_mul_i32 s7, s6, 43\ns_sub_u32 s7, s52, s7')
                E('s_mul_i32 s54, s6, %d\ns_lshl_b32 s60, s7, 6\ns_add_u32 s54, s54, s60\ns_movk_i32 s55, 2752' % (32 * 2752))
                E('s_lshl_b32 s60, s7, 16\ns_lshl_b32 s6, s6, 10\ns_add_u32 s60, s60, s6\ns_add_u32 s%d, s60, %d\ns_add_u32 s%d, s%d, 16384' % (
                    d0, OFF_WF + (rnd - 1) * 32768, d1, d0))
                E('s_branch ' + lb)
                E(la + ':')
                E('s_add_u32 s7, s52, %d' % ((rnd - 1) * 336 - 688))
            else:
                E('s_add_u32 s7, s52, 672')
            E('s_mov_b64 s[56:57], s[%d:%d]\ns_mov_b32 s58, 0x%x' % (SRD['W2'], SRD['W2'] + 1, SIZE['W2']))
            E('s_and_b32 s6, s7, 15\ns_lshr_b32 s7, s7, 4')
            E('s_lshl_b32 s54, s7, 15\ns_lshl_b32 s60, s6, 6\ns_add_u32 s54, s54, s60\ns_movk_i32 s55, 1024')
            E('s_mul_i32 s60, s6, %d\ns_lshl_b32 s61, s7, 10\ns_add_u32 s60, s60, s61\ns_add_u32 s%d, s60, %d\ns_add_u32 s%d, s%d, %d' % (
                2 * 43 * 1024, d0, OFF_W2F, d1, d0, 43 * 1024))
            E('s_cmp_ge_u32 s7, 43')
            E('s_cselect_b32 s%d, 0x7f000000, s%d\ns_cselect_b32 s%d, 0x7f000000, s%d' % (d0, d0, d1, d1))
            if rnd < 3:
                pass
        E(lb + ':')
        if rnd:
            E('s_mov_b32 s%d, 0' % nat)
        E('s_mov_b32 s59, 0x20000')
        E('v_mul_lo_u32 v44, v7, s55')
        E('v_lshl_add_u32 v44, v8, 4, v44')
        E('s_add_u32 m0, s%d, %d' % (S_QB, rnd * 2048))
        E('buffer_load_dwordx4 v44, s[56:59], s54 offen lds')
        E('s_lshl_b32 s55, s55, 4\ns_add_u32 s54, s54, s55')
        E('s_add_u32 m0, s%d, %d' % (S_QB, rnd * 2048 + 1024))
        E('buffer_load_dwordx4 v44, s[56:59], s54 offen lds')
    for rnd in range(4):
        tile_params(rnd)
    lw23, lj = lab('W23'), lab('J')
    E('s_cmp_ge_u32 s3, 2')
    E('s_cbranch_scc1 ' + lw23)
    E('v_lshlrev_b32 v48, 8, v12')
    E('v_lshl_add_u32 v48, v11, 4, v48')
    E('v_add_u32 v49, 4096, v48')
    E('s_lshl_b32 s6, s4, 3\ns_lshr_b32 s7, s5, 1\ns_add_u32 s6, s6, s7\ns_lshl_b32 s6, s6, 14')
    E('s_and_b32 s7, s5, 1\ns_lshl_b32 s7, s7, 7\ns_add_u32 s6, s6, s7')
    E('s_lshl_b32 s59, s3, 13\ns_add_u32 s6, s6, s59\ns_add_u32 s60, s6, %d' % OFF_XH)
    E('v_lshlrev_b32 v50, 5, v11')
    E('v_mov_b32 v20, 0\nv_mov_b32 v21, 0\nv_mov_b32 v22, 0x3f803f80\nv_mov_b32 v23, 0\nv_mov_b32 v24, 0')
    for i in range(8):
        E('s_waitcnt vmcnt(%d)' % (23 - i))
        for p in range(4):
            r = 64 + 4 * i + p
            E('v_dot2_f32_bf16 v%d, v%d, v22, v%d' % (20 + 3 * (p & 1), r, 20 + 3 * (p & 1)))
            E('v_dot2_f32_bf16 v%d, v%d, v%d, v%d' % (21 + 3 * (p & 1), r, r, 21 + 3 * (p & 1)))
    E('v_add_f32 v20, v20, v23\nv_add_f32 v21, v21, v24')
    for mod_ in ('quad_perm:[1,0,3,2]', 'quad_perm:[2,3,0,1]', 'row_half_mirror'):
        E('v_add_f32_dpp v20, v20, v20 %s row_mask:0xf bank_mask:0xf' % mod_)
        E('v_add_f32_dpp v21, v21, v21 %s row_mask:0xf bank_mask:0xf' % mod_)
    E('v_mul_f32 v20, %s, v20' % f32(1.0 / 512))
    E('v_mul_f32 v21, %s, v21' % f32(1.0 / 512))
    E('v_fma_f32 v21, -v20, v20, v21')
    E('v_max_f32 v21, 0, v21')
    round_bf16(20, 20)
    round_bf16(21, 21)
    E('v_add_f32 v21, %s, v21' % f32(1e-5))
    round_bf16(21, 21)
    E('v_sqrt_f32 v21, v21')
    round_bf16(21, 21)
    E('v_rcp_f32 v21, v21')
    E('ds_bpermute_b32 v20, v50, v20')
    E('ds_bpermute_b32 v21, v50, v21')
    E('s_waitcnt vmcnt(12) lgkmcnt(0)')
    for i in range(4):
        for p in range(4):
            src = 96 + 4 * i + p
            E('v_lshlrev_b32 v%d, 16, v%d' % (24 + 2 * p, src))
            E('v_and_b32 v%d, 0xffff0000, v%d' % (25 + 2 * p, src))
        for e in range(8):
            E('v_sub_f32 v%d, v%d, v20' % (24 + e, 24 + e))
        for p in range(4):
            E('v_cvt_pk_bf16_f32 v%d, v%d, v%d' % (32 + p, 24 + 2 * p, 25 + 2 * p))
        for p in range(4):
            E('v_lshlrev_b32 v%d, 16, v%d' % (24 + 2 * p, 32 + p))
            E('v_and_b32 v%d, 0xffff0000, v%d' % (25 + 2 * p, 32 + p))
        for e in range(8):
            E('v_mul_f32 v%d, v%d, v21' % (24 + e, 24 + e))
        for p in range(4):
            E('v_cvt_pk_bf16_f32 v%d, v%d, v%d' % (32 + p, 24 + 2 * p, 25 + 2 * p))
        for p in range(4):
            E('v_lshlrev_b32 v%d, 16, v%d' % (24 + 2 * p, 32 + p))
            E('v_and_b32 v%d, 0xffff0000, v%d' % (25 + 2 * p, 32 + p))
        for e in range(8):
            E('v_cvt_f16_f32 v%d, v%d' % (24 + e, 24 + e))
        for p in range(4):
            E('v_pack_b32_f16 v%d, v%d, v%d' % (112 + 4 * i + p, 24 + 2 * p, 25 + 2 * p))
        E('buffer_store_dwordx4 v[%d:%d], v%d, %s, s60 offen offset:%d %s' % (
            112 + 4 * i, 115 + 4 * i, 48 + (i >> 1), srd('WS'), (i & 1) * 2048, os.environ.get('K0ST', '')))
    E('s_waitcnt vmcnt(4)')
    E('s_branch ' + lj)
    E(lw23 + ':')
    E('s_waitcnt vmcnt(16)')
    for n in range(8):
        E('v_lshlrev_b32 v%d, 16, v%d' % (16 + n, 16 + n))
    for n in range(8):
        E('v_mul_f32 v%d, %s, v%d' % (24 + n, f32(-LOG2E), 16 + n))
    for n in range(8):
        E('v_exp_f32 v%d, v%d' % (24 + n, 24 + n))
    for n in range(8):
        E('v_add_f32 v%d, 1.0, v%d' % (24 + n, 24 + n))
    for n in range(8):
        E('v_rcp_f32 v%d, v%d' % (24 + n, 24 + n))
    for n in range(8):
        E('v_mul_f32 v%d, v%d, v%d' % (16 + n, 16 + n, 24 + n))
    for n in range(8):
        E('v_cvt_pk_bf16_f32 v%d, v%d, v%d' % (16 + n, 16 + n, 16 + n))
    for n in range(8):
        E('v_and_b32 v%d, 0xffff, v%d' % (100 + 2 * n, 16 + n))
        E('v_and_b32 v%d, 0xffff0000, v%d' % (101 + 2 * n, 16 + n))
    for e in range(8):
        E('v_mov_b32 v%d, 0' % (50 + e))
    for n in range(8):
        E('s_waitcnt vmcnt(%d)' % (15 - n))
        dot_rows(50, 64 + 4 * n, 100 + 2 * n)
    reduce8(50)
    E('v_lshlrev_b32 v28, 5, v8')
    E('v_lshl_add_u32 v28, v3, 3, v28')
    E('s_mul_i32 s58, s63, 12288\ns_lshl_b32 s59, s53, 7\ns_add_u32 s58, s58, s59\ns_add_u32 s58, s58, %d' % OFF_MODP)
    E('s_cmp_ge_u32 s2, 192')
    E('s_cselect_b32 s58, 0x7f000000, s58')
    E('v_cmp_gt_u32 vcc, 4, v2')
    E('s_mov_b64 exec, vcc')
    E('buffer_store_dwordx2 v[50:51], v28, %s, s58 offen' % srd('WS'))
    E('s_mov_b64 exec, -1')
    E('s_waitcnt vmcnt(1)')
    E(lj + ':')
    E('v_lshrrev_b32 v30, 2, v2')
    E('v_lshl_add_u32 v30, v3, 3, v30')
    E('v_lshlrev_b32 v30, 6, v30')
    E('v_add_u32 v30, s%d, v30' % S_QB)
    E('v_and_b32 v31, 3, v2')
    E('v_lshl_add_u32 v32, v31, 4, v30')
    E('v_lshl_add_u32 v33, v31, 3, v30')
    E('s_cmp_eq_u32 s80, 1')
    E('s_cselect_b32 s6, 32, 8')
    E('s_cselect_b64 vcc, -1, 0')
    E('v_cndmask_b32 v34, v32, v33, vcc')
    E('v_add_u32 v35, s6, v34')
    for rnd in range(4):
        for ct in range(2):
            T = 64 + (rnd * 2 + ct) * 4
            if rnd == 0:
                base, off = 34 + ct, 0
            else:
                base, off = 32, rnd * 2048 + ct * 8
            E('ds_read_b64_tr_b16 v[%d:%d], v%d offset:%d' % (T, T + 1, base, off))
            E('ds_read_b64_tr_b16 v[%d:%d], v%d offset:%d' % (T + 2, T + 3, base, off + 256))
        if rnd == 1:
            E('s_waitcnt lgkmcnt(0)')
    E('s_waitcnt lgkmcnt(0)')
    for rnd in range(4):
        for ct in range(2):
            T = 64 + (rnd * 2 + ct) * 4
            E('buffer_store_dwordx4 v[%d:%d], v4, %s, s%d offen %s' % (T, T + 3, srd('WS'), 72 + 2 * rnd + ct, os.environ.get('K0ST', '')))
    if STAMPS:
        E('s_memrealtime s[96:97]')
        E('s_waitcnt vmcnt(0)')
        E('s_memrealtime s[98:99]')
        E('s_waitcnt lgkmcnt(0)')
        E('s_lshl_b32 s92, s2, 2\ns_add_u32 s92, s92, s3\ns_lshl_b32 s92, s92, 8\ns_add_u32 s92, s92, %d' % (OFF_STAMP + 160))
        E('v_mov_b32 v5, s92\nv_mov_b32 v6, s94\nv_mov_b32 v7, s96\nv_mov_b32 v8, s98')
        E('s_mov_b64 exec, 1')
        E('buffer_store_dword v6, v5, %s, 0 offen' % srd('WS'))
        E('buffer_store_dword v7, v5, %s, 0 offen offset:4' % srd('WS'))
        E('buffer_store_dword v8, v5, %s, 0 offen offset:8' % srd('WS'))
    E('s_endpgm')


L_STG = 6 * ROWB


def tile_dma(m0a, m0b):
    E('s_mov_b32 s59, 0x20000')
    E('v_mul_lo_u32 v44, v7, s55')
    E('v_lshl_add_u32 v44, v8, 4, v44')
    E(m0a)
    E('buffer_load_dwordx4 v44, s[56:59], s54 offen lds')
    E('s_lshl_b32 s55, s55, 4\ns_add_u32 s54, s54, s55')
    E(m0b)
    E('buffer_load_dwordx4 v44, s[56:59], s54 offen lds')


def k1_prologue():
    prologue('k1_kernel', 256, ['X', 'OUT', 'WS'])
    for n, W in enumerate(('WO', 'W1', 'W3', 'W2')):
        E('s_mov_b32 s%d, s%d\ns_and_b32 s%d, s%d, 0xffff' % (94 + 2 * n, PTR[W], 95 + 2 * n, PTR[W] + 1))
    E('s_mul_i32 s%d, s5, 0x5556\ns_lshr_b32 s%d, s%d, 13' % (S_PS, S_PS, S_PS))
    E('s_lshl_b32 s6, s4, 7\ns_lshr_b32 s7, s5, 3\ns_lshl_b32 s7, s7, 6\ns_add_u32 s%d, s6, s7' % S_R0)
    E('s_and_b32 s%d, s5, 7\ns_lshl_b32 s%d, s%d, 6' % (S_J7, S_C0, S_J7))
    E('s_lshl_b32 s%d, s4, 10' % S_CNTG)
    E('s_lshl_b32 s%d, s5, 10' % S_CNTJ)
    E('s_lshl_b32 s6, s4, 3\ns_lshl_b32 s7, s3, 1\ns_add_u32 s%d, s6, s7' % S_ROW)
    E('s_lshl_b32 s%d, s3, 12' % S_QB)
    E('s_lshl_b32 s%d, s3, 10' % S_W1K)
    ROT = os.environ.get('ROT', 'j')
    if ROT == 'jg':
        E('s_lshl_b32 s6, s4, 2\ns_add_u32 s6, s6, s5\ns_and_b32 s%d, s6, 15' % S_RT)
    elif ROT == 'j':
        E('s_mov_b32 s%d, s5' % S_RT)
    elif ROT == 'j2':
        E('s_lshl_b32 s6, s5, 1\ns_and_b32 s%d, s6, 15' % S_RT)
    else:
        E('s_mov_b32 s%d, 0' % S_RT)


def relayout_issue():
    E('s_max_u32 s6, s3, 1\ns_sub_u32 s6, s6, 1\ns_add_u32 s6, s6, s%d\ns_lshl_b32 s6, s6, 16\ns_lshl_b32 s7, s4, 10\ns_add_u32 s6, s6, s7\ns_add_u32 s6, s6, %d' % (S_PS, OFF_WF))
    for blk in range(4):
        E('s_add_u32 s7, s6, %d' % (blk * 16384))
        vm.op('buffer_load_dwordx4 a[%d:%d], v4, %s, s7 offen' % (152 + 4 * blk, 155 + 4 * blk, srd('WS')), ('rd', 0))


def rot_table():
    E('s_lshl_b32 s%d, s5, 10' % S_ROT)
    for i in range(1, 16):
        E('s_add_u32 s%d, s%d, 1024\ns_and_b32 s%d, s%d, 0x3fff' % (S_ROT + i, S_ROT + i - 1, S_ROT + i, S_ROT + i))


def relayout_process():
    E('v_and_b32 v129, 3, v2')
    l0, l1 = lab('RP'), lab('RP')
    E('s_cmp_eq_u32 s3, 0')
    E('s_cbranch_scc1 ' + l0)
    for r in range(16):
        E('v_accvgpr_read_b32 v%d, a%d' % (140 + r, 152 + r))
    for r in range(8):
        E('v_accvgpr_read_b32 v%d, a%d' % (172 + r, 144 + r))
    E('v_add_f32 v172, v172, v173\nv_add_f32 v174, v174, v175\nv_add_f32 v176, v176, v177\nv_add_f32 v178, v178, v179')
    E('v_add_f32 v172, v172, v174\nv_add_f32 v176, v176, v178')
    round_bf16(172, 172)
    round_bf16(176, 176)
    E('v_cmp_lt_u32 vcc, 31, v1')
    E('v_cndmask_b32 v173, 0, 1.0, vcc')
    E('v_add_f32 v172, v172, v173')
    E('s_cmp_eq_u32 s3, 3')
    E('s_cselect_b32 s6, 1.0, 0')
    E('v_add_f32 v176, s6, v176')
    round_bf16(176, 176)
    E('v_cvt_pk_bf16_f32 v172, v172, v172')
    E('s_lshl_b32 s6, s3, 7\ns_add_u32 s6, s6, %d' % L_SCR)
    E('v_lshlrev_b32 v173, 1, v1')
    E('v_add_u32 v173, s6, v173')
    E('ds_write_b16 v173, v172')
    E('s_lshl_b32 s7, s3, 8\ns_add_u32 s7, s7, %d' % (L_GA - 256))
    E('v_lshlrev_b32 v174, 2, v1')
    E('v_add_u32 v174, s7, v174')
    E('ds_write_b32 v174, v176')
    E('v_lshlrev_b32 v173, 4, v3')
    E('v_add_u32 v173, s6, v173')
    E('s_waitcnt lgkmcnt(0)')
    E('ds_read_b128 v[156:159], v173\nds_read_b128 v[160:163], v173 offset:64')
    E('v_lshrrev_b32 v130, 2, v2')
    E('v_lshl_add_u32 v130, v130, 3, v129')
    E('v_lshlrev_b32 v130, 2, v130')
    E('v_lshrrev_b32 v131, 1, v3')
    E('s_movk_i32 s7, 384')
    E('v_mul_lo_u32 v131, v131, s7')
    E('v_add_u32 v130, v130, v131')
    E('s_lshl_b32 s34, s5, 4\ns_add_u32 s34, s34, s4\ns_mul_i32 s34, s34, 1536\ns_lshl_b32 s6, s3, 7\ns_add_u32 s34, s34, s6\ns_add_u32 s34, s34, %d' % (OFF_UT - 128))
    for blk in range(4):
        E('v_mov_b32 v%d, 0\nv_mov_b32 v%d, 0' % (164 + 2 * blk, 165 + 2 * blk))
    E('s_waitcnt lgkmcnt(0)')
    for p in range(4):
        for blk in range(4):
            E('v_dot2_f32_bf16 v%d, v%d, v%d, v%d' % (164 + 2 * blk, 140 + 4 * blk + p, 160 + p, 164 + 2 * blk))
            E('v_dot2_f32_bf16 v%d, v%d, v%d, v%d' % (165 + 2 * blk, 140 + 4 * blk + p, 156 + p, 165 + 2 * blk))
    for blk in range(4):
        E('v_permlane32_swap_b32 v%d, v%d' % (164 + 2 * blk, 165 + 2 * blk))
    for blk in range(4):
        E('v_add_f32 v%d, v%d, v%d' % (164 + 2 * blk, 164 + 2 * blk, 165 + 2 * blk))
    for blk in range(4):
        E('v_mov_b32 v%d, v%d' % (165 + 2 * blk, 164 + 2 * blk))
    for blk in range(4):
        E('v_permlane16_swap_b32 v%d, v%d' % (164 + 2 * blk, 165 + 2 * blk))
    for blk in range(4):
        E('v_add_f32 v%d, v%d, v%d' % (164 + 2 * blk, 164 + 2 * blk, 165 + 2 * blk))
    for blk in range(4):
        m, ct = blk >> 1, blk & 1
        E('buffer_store_dword v%d, v130, %s, s34 offen offset:%d sc1' % (164 + 2 * blk, srd('WS'), m * 768 + ct * 16))
    E('s_branch ' + l1)
    E(l0 + ':')
    E('s_mov_b64 exec, 1')
    for q in range(4):
        E('buffer_load_dword a%d, v4, %s, 0 offen' % (136 + q, srd('WS')))
    E('s_mov_b64 exec, -1')
    E('s_waitcnt lgkmcnt(0)')
    E(l1 + ':')
    vm.seq += [('rl', 0)] * 4


def a1_grp(i):
    return ['buffer_load_dwordx4 v[%d:%d], v%d, %s, s%d offen' % (128 + i * 8 + b * 4, 131 + i * 8 + b * 4, 16 + b, srd('WS'), S_ROT + i) for b in range(2)]


def b1_grp(c, n):
    return ['s_add_u32 m0, s33, %d' % (c * 4 * 6144 + n * 1024),
            'buffer_load_dwordx4 v%d, %s, s%d offen lds' % (20 + n, srd('WS'), 28 + c)]


A1_PRE = int(os.environ.get('A1P', '5'))

KPB, VPB, QPB = 16, 28, 40
def KP(hh, b): return KPB + hh * 6 + (b + 1) * 2
def VP(hh, b): return VPB + hh * 6 + (b + 1) * 2
def QP(hh, b): return QPB + hh * 4 + b * 2


SKT = {2: 36, 4: 52}
BVO = {2: 8, 4: 248}


def splitk_setup(which):
    NKS = 4 if which == 2 else 11
    KT = 16 if which == 2 else 43
    OFFW = OFF_WOF if which == 2 else OFF_W2F
    SB = 44 if which == 2 else 72
    E('s_mul_i32 s%d, s%d, %d\ns_add_u32 s%d, s%d, %d' % (SB, S_J7, 4 * KT * 1024, SB, SB, OFFW))
    if os.environ.get('HACK'):
        E('s_mov_b32 s%d, %d' % (SB, OFFW))
    E('v_add_u32 v%d, s%d, v4' % (8 if which == 2 else 9, SB))
    if which == 2:
        if os.environ.get('ROT', 'j') == '0':
            E('s_mov_b32 s80, 0')
        else:
            E('s_and_b32 s80, s5, 3')
    else:
        if os.environ.get('ROT', 'j') == '0':
            E('s_mov_b32 s80, 0')
        else:
            E('s_mov_b32 s80, s%d' % S_J7)
    E('s_mul_i32 s81, s3, %d' % NKS)
    for pos in range(NKS):
        d = SKT[which] + pos
        if which == 2:
            E('s_add_u32 s%d, s80, %d' % (d, pos))
            E('s_and_b32 s%d, s%d, 3' % (d, d))
            E('s_add_u32 s%d, s%d, s81\ns_lshl_b32 s%d, s%d, 10' % (d, d, d, d))
        elif pos < 4:
            E('s_add_u32 s7, s3, %d\ns_mul_i32 s7, s7, 0x5556\ns_lshr_b32 s7, s7, 13\ns_lshl_b32 s%d, s7, 10' % (4 * pos, d))
        elif pos < 8:
            E('s_add_u32 s%d, s%d, 1024' % (d, d - 4))
        else:
            E('s_add_u32 s7, s3, %d\ns_lshr_b32 s6, s7, 1\ns_lshl_b32 s6, s6, 3\ns_and_b32 s%d, s7, 1\ns_mul_i32 s%d, s%d, 3\ns_add_u32 s6, s6, s%d\ns_add_u32 s6, s6, 4' % (4 * (pos - 8), d, d, d, d))
            E('s_add_u32 s7, s7, 32\ns_cmp_ge_u32 s7, 42\ns_cselect_b32 s6, s7, s6\ns_lshl_b32 s%d, s6, 10' % d)


def breg(which, pos, q):
    if which == 2:
        return 'a', 64 + (pos * 4 + q) * 4
    if pos < 7:
        return 'a', 128 + (pos * 4 + q) * 4
    return 'v', 176 + ((pos - 7) * 4 + q) * 4


def areg(which, pos, d):
    if pos < 8:
        return 'a', (pos * 4 + d) * 4
    return 'v', 128 + ((pos - 8) * 4 + d) * 4


def splitk_b_grps(which, pos):
    KT = 16 if which == 2 else 43
    grps = []
    for q in range(4):
        k, r = breg(which, pos, q)
        g_ = []
        if which == 4 and q == 0:
            g_ += ['s_cmp_ge_u32 s%d, %d' % (SKT[4] + pos, 43 * 1024), 's_cselect_b32 s63, 0x7f000000, s%d' % (SKT[4] + pos)]
        src = 63 if which == 4 else SKT[2] + pos
        if q:
            g_.append('s_add_u32 s79, s%d, %d' % (src, q * KT * 1024))
            src = 79
        g_.append('buffer_load_dwordx4 %s[%d:%d], v%d, %s, s%d offen sc1' % (k, r, r + 3, 8 if which == 2 else 9, srd('WS'), src))
        grps.append(g_)
    return grps


B4L_ROW = [4, 5, 0, 1]


def b4_lds_grps(pos):
    grps = []
    for q in range(4):
        g_ = []
        if q == 0:
            g_ += ['s_cmp_ge_u32 s%d, %d' % (SKT[4] + pos, 43 * 1024), 's_cselect_b32 s63, 0x7f000000, s%d' % (SKT[4] + pos)]
        src = 63
        if q:
            g_.append('s_add_u32 s79, s63, %d' % (q * 43 * 1024))
            src = 79
        g_ += ['s_add_u32 m0, s%d, %d' % (S_QB, B4L_ROW[pos - 7] * ROWB + q * 1024),
               'buffer_load_dwordx4 v9, %s, s%d offen sc1 lds' % (srd('WS'), src)]
        grps.append(g_)
    return grps


def p3_addr(u):
    return P3_ROW[u >> 2] * ROWB + (u & 3) * 4096


def p3_setup():
    E('s_lshl_b32 s6, s%d, 16\ns_lshl_b32 s7, s3, 14\ns_add_u32 s6, s6, s7\ns_add_u32 s6, s6, %d' % (S_PS, OFF_WF))
    if os.environ.get('HACK'):
        E('s_add_u32 s6, s7, %d' % OFF_WF)
    E('v_add_u32 v12, s6, v4')
    E('v_add_u32 v13, 0x10000, v12')
    E('v_add_u32 v14, 0x20000, v12')


def p3_b_grp(u):
    return ['s_add_u32 m0, s%d, %d' % (S_W1K, p3_addr(u)),
            'buffer_load_dwordx4 v%d, %s, s%d offen sc1 lds' % (12 + (u >> 4), srd('WS'), S_ROT + (u & 15))]


def p3_units_w123(units):
    for n, u in enumerate(units):
        for l in p3_b_grp(u):
            E(l)
    E('s_lshl_b32 s6, s3, 14')
    E('v_subrev_u32 v5, s6, v%d' % (12 + (units[0] >> 4)))
    for w in range(1, 4):
        lsk = lab('H')
        E('s_cmp_lg_u32 s3, %d' % w)
        E('s_cbranch_scc1 ' + lsk)
        for u in units[w - 1::3]:
            assert (u >> 4) == (units[0] >> 4)
            E('s_mov_b32 m0, %d' % p3_addr(u))
            E('buffer_load_dwordx4 v5, %s, s%d offen sc1 lds' % (srd('WS'), S_ROT + (u & 15)))
        E(lsk + ':')


def late_setup():
    E('v_mov_b32 v32, %s' % f32(-1e30))
    E('s_or_b32 s6, s4, s3')
    E('s_cmp_eq_u32 s6, 0')
    E('s_cselect_b32 s7, 64, 0')
    for r in range(4):
        E('v_lshl_add_u32 v33, v3, 2, %d' % r)
        E('v_sub_u32 v33, v2, v33')
        E('v_and_b32 v34, 0x80000001, v33')
        E('v_cmp_eq_u32 vcc, 0, v34')
        E('v_cndmask_b32 v35, v32, 0, vcc')
        E('v_accvgpr_write_b32 a%d, v35' % (240 + r))
        E('v_add_u32 v33, 16, v33')
        E('v_and_b32 v34, 1, v33')
        E('v_lshl_add_u32 v34, v34, 6, v33')
        E('v_cmp_gt_u32 vcc, 15, v34')
        E('v_cndmask_b32 v35, v32, 0, vcc')
        E('v_accvgpr_write_b32 a%d, v35' % (244 + r))
        E('v_add_u32 v34, s7, v34')
        E('v_cmp_gt_u32 vcc, 15, v34')
        E('v_cndmask_b32 v35, v32, 0, vcc')
        E('v_accvgpr_write_b32 a%d, v35' % (248 + r))
    splitk_setup(2)
    splitk_setup(4)
    p3_setup()


def phase1():
    vm.reset()
    stamp(0)
    E('v_lshlrev_b32 v28, 3, v0')
    for q in range(4):
        E('s_mov_b32 s6, %d' % (OFF_MODP + q * 12288))
        for h in range(2):
            r = 64 + (q * 2 + h) * 2
            vm.op('buffer_load_dwordx2 v[%d:%d], v28, %s, s6 offen offset:%d' % (r, r + 1, srd('WS'), h * 2048), ('tb', 0))
    E('s_lshl_b32 s%d, s%d, 10' % (S_ROT, S_RT))
    E('s_add_u32 s%d, s%d, 1024\ns_and_b32 s%d, s%d, 0x3fff' % (S_ROT + 1, S_ROT, S_ROT + 1, S_ROT + 1))
    E('s_mul_i32 s6, s5, %d\ns_add_u32 s6, s6, %d' % (6 * 16384, OFF_WQ))
    if os.environ.get('HACK'):
        E('s_mov_b32 s6, %d' % OFF_WQ)
    E('v_add_u32 v20, s6, v4')
    for t in range(1, 6):
        E('v_add_u32 v%d, %d, v20' % (20 + t, t * 16384))
    E('s_add_u32 s28, s%d, s%d\ns_and_b32 s28, s28, 0x3fff' % (S_ROT, S_W1K))
    E('s_mul_i32 s33, s3, 6144')
    for n in range(6):
        vm.grp(b1_grp(0, n), ('b1', 0))
    E('s_lshl_b32 s6, s%d, 14\ns_add_u32 s6, s6, %d' % (S_ROW, OFF_XH))
    E('v_add_u32 v16, s6, v4')
    E('v_add_u32 v17, 0x4000, v16')
    for i in range(2):
        vm.grp(a1_grp(i), ('a', i))
    for i in range(2, 16):
        E('s_add_u32 s%d, s%d, 1024\ns_and_b32 s%d, s%d, 0x3fff' % (S_ROT + i, S_ROT + i - 1, S_ROT + i, S_ROT + i))
    for c in range(1, 4):
        E('s_add_u32 s%d, s%d, 4096\ns_and_b32 s%d, s%d, 0x3fff' % (28 + c, 27 + c, 28 + c, 28 + c))
    for n in range(6):
        vm.grp(b1_grp(1, n), ('b1', 1))
    for i in range(2, A1_PRE):
        vm.grp(a1_grp(i), ('a', i))
    E('s_lshl_b32 s6, s%d, 4' % S_RT)
    E('v_subrev_u32 v29, s6, v0')
    E('v_and_b32 v29, 0xff, v29')
    E('v_lshrrev_b32 v30, 2, v29')
    E('v_lshlrev_b32 v30, 6, v30')
    E('v_and_b32 v29, 3, v29')
    E('v_lshl_add_u32 v30, v29, 3, v30')
    E('v_add_u32 v30, %d, v30' % L_TAB)
    E('v_add_u32 v19, 0x10000, v4')
    E('v_lshlrev_b32 v26, 6, v3')
    E('v_add_u32 v26, %d, v26' % L_TAB)
    E('s_waitcnt vmcnt(%d)' % vm.n_after([('tb', 0)]))
    for r in range(4):
        E('v_add_f32 v%d, v%d, v%d' % (64 + r, 64 + r, 68 + r))
        E('v_add_f32 v%d, v%d, v%d' % (72 + r, 72 + r, 76 + r))
    for r in range(4):
        E('v_add_f32 v%d, v%d, v%d' % (64 + r, 64 + r, 72 + r))
    for r in range(4):
        round_bf16(64 + r, 64 + r)
    for e in range(2):
        E('v_add_f32 v%d, 1.0, v%d' % (66 + e, 66 + e))
        round_bf16(66 + e, 66 + e)
    E('ds_write_b64 v30, v[66:67]\nds_write_b64 v30, v[64:65] offset:32')
    E('v_and_b32 v29, 31, v1')
    E('v_lshrrev_b32 v31, 5, v1')
    E('v_lshlrev_b32 v31, 11, v31')
    E('v_lshl_add_u32 v29, v29, 2, v31')
    E('s_lshl_b32 s35, s4, 7')
    for q in range(4):
        E('s_add_u32 s6, s35, %d' % (OFF_MODP + q * 12288 + 1536 * 4))
        vm.op('buffer_load_dword a%d, v29, %s, s6 offen' % (144 + q, srd('WS')), ('sm', 0))
    E('v_lshlrev_b32 v29, 2, v1')
    E('s_cmp_eq_u32 s3, 2')
    E('s_cselect_b32 s6, 5, 2')
    E('s_cmp_eq_u32 s3, 3')
    E('s_cselect_b32 s6, 4, s6')
    E('s_lshl_b32 s6, s6, 9')
    E('s_add_u32 s6, s6, s%d\ns_lshl_b32 s35, s6, 2' % S_C0)
    for q in range(4):
        E('s_add_u32 s6, s35, %d' % (OFF_MODP + q * 12288))
        vm.op('buffer_load_dword a%d, v29, %s, s6 offen' % (148 + q, srd('WS')), ('sm', 0))
    relayout_issue()
    stamp(1)
    ACC = 64
    TB = (32, 232)

    def bread(pos, buf, ts=range(6), dyn=None):
        out = []
        for t in ts:
            off = pos * 6144 + t * 1024
            d = buf * 24 + t * 4
            if dyn is not None:
                out.append('ds_read_b128 a[%d:%d], v%d offset:%d' % (d, d + 3, dyn, off))
            else:
                out.append('ds_read_b128 a[%d:%d], v%d offset:%d' % (d, d + 3, 4 if off < 65536 else 19, off & 0xffff))
        return out

    def tread(ks, T, base=26):
        return ['ds_read_b128 v[%d:%d], v%d offset:%d' % (T + 4 * q + (2 if q >= 2 else 0), T + 4 * q + 3 + (2 if q >= 2 else 0), base, ks * 256 + q * 16) for q in range(4)]

    TMP = {48: [51 + e for e in range(8)], 56: [59, 60, 61, 62, 63, 40, 41, 50]}
    TMP[56] = [59, 60, 61, 62, 63, 248, 249, 250] if False else [59, 60, 61, 62, 63, 28, 29, 30]

    def modulate(src, T, tmp):
        t = TMP[tmp]
        un, fm, cv = [], [], []
        for e in range(8):
            fm.append('v_fma_mix_f32 v%d, v%d, v%d, v%d op_sel:[%d,0,0] op_sel_hi:[1,0,0]' % (t[e], src + e // 2, T + e, T + 10 + e, e & 1))
        for p in range(4):
            cv.append('v_cvt_pk_bf16_f32 v%d, v%d, v%d' % (src + p, t[2 * p], t[2 * p + 1]))
        return un, fm, cv

    def mm(acc, af, bf, seg, first):
        c = '0' if first else 'v[%d:%d]' % (acc, acc + 3)
        if seg < 2:
            return 'v_mfma_f32_16x16x32_bf16 v[%d:%d], a[%d:%d], v[%d:%d], %s' % (acc, acc + 3, bf, bf + 3, af, af + 3, c)
        return 'v_mfma_f32_16x16x32_bf16 v[%d:%d], v[%d:%d], a[%d:%d], %s' % (acc, acc + 3, af, af + 3, bf, bf + 3, c)

    def mod2(ks):
        u0, f0, c0 = modulate(128 + ks * 8, 32, 48)
        u1, f1, c1 = modulate(132 + ks * 8, 32, 56)
        return u0 + u1, f0 + f1, c0 + c1

    bg = {ks: [] for ks in range(16)}
    for i in range(A1_PRE, 16):
        bg[i - A1_PRE].append((a1_grp(i), ('a', i)))
    for n in range(6):
        bg[n // 2].append((b1_grp(2, n), ('b1', 2)))
        bg[4 + n // 2].append((b1_grp(3, n), ('b1', 3)))
    for q in range(4):
        bg[11 + q // 2].append((['buffer_load_dwordx4 a[%d:%d], v18, %s, s%d offen' % (48 + 4 * q, 51 + 4 * q, srd('WS'), 82 + q)], ('h', 0)))
    k = 0
    for pos in range(4):
        for g_ in splitk_b_grps(2, pos):
            bg[(8, 9, 10, 13, 14, 15)[k // 3]].append((g_, ('b2', pos)))
            k += 1
    global BGS
    BGS = [p3_b_grp(u) for u in range(0, 12)]
    BGS2 = [p3_b_grp(u) for u in range(12, 24)]
    E('s_lshl_b32 s6, s4, 17\ns_add_u32 s6, s6, %d' % (OFF_XH - 16384))
    E('s_cmp_eq_u32 s4, 0')
    E('s_cselect_b32 s6, 0x7f000000, s6')
    E('v_add_u32 v18, s6, v4')
    for q in range(4):
        E('s_lshl_b32 s6, s3, 12\ns_add_u32 s6, s6, s%d\ns_add_u32 s6, s6, %d\ns_and_b32 s%d, s6, 0x3fff' % (S_ROT, q * 1024, 82 + q))
    late_setup()
    E('s_waitcnt vmcnt(%d) lgkmcnt(0)' % vm.n_after([('b1', 0), ('a', 0)]))
    E('s_barrier')
    stamp(3)
    stamp(30, True)
    for o in tread(0, 32) + bread(0, 0):
        E(o)
    E('s_waitcnt lgkmcnt(6)')
    u0_, m0_, c0_ = mod2(0)
    for o in u0_ + m0_ + tread(1, 32) + c0_:
        E(o)
    for ks in range(16):
        buf = ks & 1
        if ks in (3, 7, 11):
            E('s_waitcnt vmcnt(%d)' % vm.n_after([('b1', (ks + 1) // 4)]  + ([('rd', 0), ('sm', 0)] if ks == 7 else [])))
            E('s_barrier')
            if ks == 7:
                relayout_process()
        if ks + 1 < 16:
            E('s_waitcnt lgkmcnt(4)')
            u_, m_, c_ = mod2(ks + 1)
            valu = m_ + c_
            br = bread(ks + 1, buf ^ 1)
            tr = tread(ks + 2, 32) if ks + 2 < 16 else []
        else:
            E('s_waitcnt lgkmcnt(0)')
            valu, br, tr = [], [], []
        mf = [mm(ACC + (b * 6 + t) * 4, 128 + ks * 8 + 4 * b, buf * 24 + t * 4, t // 2, ks == 0) for t in range(6) for b in range(2)]
        grp = list(bg[ks])
        for i, x_ in enumerate(mf):
            E(x_)
            if i < 6 and br:
                E(br.pop(0))
            if i == 2 and valu:
                E('s_waitcnt vmcnt(%d) lgkmcnt(3)' % vm.n_after([('a', ks + 1)]))
            if 2 <= i < 6:
                for o in valu[4 * (i - 2):4 * (i - 2) + 4]:
                    E(o)
            if 6 <= i < 10:
                if tr:
                    E(tr.pop(0))
                for o in valu[16 + 2 * (i - 6):16 + 2 * (i - 6) + 2]:
                    E(o)
            if grp and i % 3 == 1:
                g_, tag = grp.pop(0)
                vm.grp(g_, tag)
        assert not grp
    stamp(19)
    stamp(31, True)
    pace_on(PACE0)
    E('s_mul_i32 s6, s3, %d' % (4 * 6144))
    E('v_add_u32 v27, s6, v4')
    E('s_lshl_b32 s6, s3, 10')
    E('v_add_u32 v31, s6, v26')
    for q in range(4):
        for o in tread(q, 128 + 20 * q, 31):
            E(o)
    for q in range(2):
        for o in bread(q, q, range(2, 6), 27):
            E(o)
    E('s_waitcnt vmcnt(%d)' % vm.n_after([('h', 0)]))
    for r in range(16):
        E('v_accvgpr_read_b32 v%d, a%d' % (208 + r, 48 + r))
    E('s_waitcnt lgkmcnt(8)')
    for q2 in range(2):
        u0, f0, c0 = modulate(208 + 8 * q2, 128 + 40 * q2, 48)
        u1, f1, c1 = modulate(212 + 8 * q2, 148 + 40 * q2, 56)
        for o in u0 + u1 + f0 + f1 + c0 + c1:
            E(o)
    E('s_waitcnt lgkmcnt(0)')
    for q in range(2):
        for t in range(2, 6):
            E(mm(112 + (t - 2) * 4, 208 + 4 * q, q * 24 + t * 4, t // 2, q == 0))
    for q in range(2, 4):
        for o in bread(q, q & 1, range(2, 6), 27):
            E(o)
    for b in range(2):
        for hh in range(2):
            for seg, fn in ((0, QP), (1, KP), (2, VP)):
                a = ACC + (b * 6 + seg * 2 + hh) * 4
                d = fn(hh, b)
                E('v_cvt_pk_bf16_f32 v%d, v%d, v%d' % (d, a, a + 1))
                E('v_cvt_pk_bf16_f32 v%d, v%d, v%d' % (d + 1, a + 2, a + 3))
    E('s_waitcnt lgkmcnt(0)')
    for q in range(2, 4):
        for t in range(2, 6):
            E(mm(112 + (t - 2) * 4, 208 + 4 * q, (q & 1) * 24 + t * 4, t // 2, False))
    E('v_lshlrev_b32 v52, 3, v1')
    E('s_lshl_b32 s6, s3, 11\ns_add_u32 s6, s6, %d' % L_XCH)
    E('v_add_u32 v53, s6, v52')
    E('s_add_u32 s6, s3, 1\ns_and_b32 s6, s6, 3\ns_lshl_b32 s6, s6, 11\ns_add_u32 s6, s6, %d' % L_XCH)
    E('v_add_u32 v55, s6, v52')
    E('ds_write_b64 v55, v[%d:%d]' % (KP(0, 1), KP(0, 1) + 1))
    E('ds_write_b64 v55, v[%d:%d] offset:512' % (KP(1, 1), KP(1, 1) + 1))
    E('ds_write_b64 v55, v[%d:%d] offset:1024' % (VP(0, 1), VP(0, 1) + 1))
    E('ds_write_b64 v55, v[%d:%d] offset:1536' % (VP(1, 1), VP(1, 1) + 1))
    for r in range(12):
        E('v_accvgpr_read_b32 v%d, a%d' % (64 + r, 240 + r))
    E('v_add_u32 v54, s%d, v4' % S_QB)
    E('s_barrier')
    stamp(4)
    arrive_u(CW, barrier=False, soff=S_CNTJ)
    pace_on(PACE0)
    for t in range(4):
        E('ds_write_b128 v54, v[%d:%d] offset:%d' % (112 + 4 * t, 115 + 4 * t, L_HP + 1024 * t))
    BGS += BGS2
    E('s_mov_b32 s6, %s' % f32(0.25 * LOG2E))
    E('v_and_b32 v77, 1, v3')
    E('v_lshlrev_b32 v77, 9, v77')
    E('v_lshrrev_b32 v78, 1, v3')
    E('v_lshl_add_u32 v77, v78, 8, v77')
    E('v_lshl_add_u32 v77, v2, 4, v77')
    E('s_lshl_b32 s34, s%d, 14\ns_lshl_b32 s35, s5, 10\ns_add_u32 s34, s34, s35\ns_add_u32 s34, s34, %d' % (S_ROW, OFF_O))
    E('s_add_u32 s35, s34, 16384')
    E('s_waitcnt lgkmcnt(0)')
    E('s_barrier')
    pace_off()
    lw0, ljn = lab('A0'), lab('AJ')
    E('s_cmp_eq_u32 s3, 0')
    E('s_cbranch_scc1 ' + lw0)
    E('ds_read_b64 v[%d:%d], v53' % (KP(0, -1), KP(0, -1) + 1))
    E('ds_read_b64 v[%d:%d], v53 offset:512' % (KP(1, -1), KP(1, -1) + 1))
    E('ds_read_b64 v[%d:%d], v53 offset:1024' % (VP(0, -1), VP(0, -1) + 1))
    E('ds_read_b64 v[%d:%d], v53 offset:1536' % (VP(1, -1), VP(1, -1) + 1))
    E('s_waitcnt lgkmcnt(0)')
    E('s_branch ' + ljn)
    E(lw0 + ':')
    for w in range(1, 4):
        for t in range(4):
            E('ds_read_b128 v[%d:%d], v54 offset:%d' % (128 + 16 * w + 4 * t, 131 + 16 * w + 4 * t, L_HP + w * 4096 + t * 1024))
    E('s_waitcnt lgkmcnt(0)')
    for r in range(16):
        E('v_add_f32 v%d, v%d, v%d' % (112 + r, 112 + r, 144 + r))
        E('v_add_f32 v%d, v%d, v%d' % (160 + r, 160 + r, 176 + r))
    for r in range(16):
        E('v_add_f32 v%d, v%d, v%d' % (112 + r, 112 + r, 160 + r))
    for t, d in enumerate((KP(0, -1), KP(1, -1), VP(0, -1), VP(1, -1))):
        E('v_cvt_pk_bf16_f32 v%d, v%d, v%d' % (d, 112 + 4 * t, 113 + 4 * t))
        E('v_cvt_pk_bf16_f32 v%d, v%d, v%d' % (d + 1, 114 + 4 * t, 115 + 4 * t))
    E(ljn + ':')
    pace_on(PACE1)
    combos = [(b, hh) for b in (1, 0) for hh in range(2)]
    for c, (b, hh) in enumerate(combos):
        S = 128 + c * 8
        E('v_mfma_f32_16x16x16_bf16 v[%d:%d], v[%d:%d], v[%d:%d], 0' % (S, S + 3, KP(hh, b - 1), KP(hh, b - 1) + 1, QP(hh, b), QP(hh, b) + 1))
        E('v_mfma_f32_16x16x16_bf16 v[%d:%d], v[%d:%d], v[%d:%d], 0' % (S + 4, S + 7, KP(hh, b), KP(hh, b) + 1, QP(hh, b), QP(hh, b) + 1))

    def each(fn):
        for c, (b, hh) in enumerate(combos):
            fn(c, b, hh, 128 + c * 8, 160 + c * 2, 168 + c * 4)
    each(lambda c, b, hh, S, M, PB: [E('v_fma_f32 v%d, v%d, s6, v%d' % (S + r, S + r, ((72 + r if b == 0 else 68 + r) if r < 4 else 64 + r - 4))) for r in range(8)])
    each(lambda c, b, hh, S, M, PB: (E('v_max3_f32 v%d, v%d, v%d, v%d' % (M, S, S + 1, S + 2)), E('v_max3_f32 v%d, v%d, v%d, v%d' % (M + 1, S + 3, S + 4, S + 5))))
    each(lambda c, b, hh, S, M, PB: (E('v_max3_f32 v%d, v%d, v%d, v%d' % (M, M, S + 6, S + 7)), E('v_max_f32 v%d, v%d, v%d' % (M, M, M + 1))))
    for sw in ('v_permlane32_swap_b32', 'v_permlane16_swap_b32'):
        each(lambda c, b, hh, S, M, PB: E('v_mov_b32 v%d, v%d' % (M + 1, M)))
        each(lambda c, b, hh, S, M, PB: E('%s v%d, v%d' % (sw, M, M + 1)))
        each(lambda c, b, hh, S, M, PB: E('v_max_f32 v%d, v%d, v%d' % (M, M, M + 1)))
    each(lambda c, b, hh, S, M, PB: [E('v_sub_f32 v%d, v%d, v%d' % (S + r, S + r, M)) for r in range(8)])
    each(lambda c, b, hh, S, M, PB: [E('v_exp_f32 v%d, v%d' % (S + r, S + r)) for r in range(8)])
    each(lambda c, b, hh, S, M, PB: (E('v_add_f32 v%d, v%d, v%d' % (M, S, S + 1)), E('v_add_f32 v%d, v%d, v%d' % (M + 1, S + 2, S + 3)),
                                     E('v_add_f32 v%d, v%d, v%d' % (PB, S + 4, S + 5)), E('v_add_f32 v%d, v%d, v%d' % (PB + 1, S + 6, S + 7))))
    each(lambda c, b, hh, S, M, PB: (E('v_add_f32 v%d, v%d, v%d' % (M, M, M + 1)), E('v_add_f32 v%d, v%d, v%d' % (PB, PB, PB + 1))))
    each(lambda c, b, hh, S, M, PB: E('v_add_f32 v%d, v%d, v%d' % (M, M, PB)))
    each(lambda c, b, hh, S, M, PB: [E('v_cvt_pk_bf16_f32 v%d, v%d, v%d' % (PB + p, S + 2 * p, S + 2 * p + 1)) for p in range(4)])
    each(lambda c, b, hh, S, M, PB: E('v_mfma_f32_16x16x32_bf16 v[%d:%d], v[%d:%d], v[%d:%d], 0' % (184 + c * 4, 187 + c * 4, VP(hh, b - 1), VP(hh, b - 1) + 3, PB, PB + 3)))
    for sw in ('v_permlane32_swap_b32', 'v_permlane16_swap_b32'):
        each(lambda c, b, hh, S, M, PB: E('v_mov_b32 v%d, v%d' % (M + 1, M)))
        each(lambda c, b, hh, S, M, PB: E('%s v%d, v%d' % (sw, M, M + 1)))
        each(lambda c, b, hh, S, M, PB: E('v_add_f32 v%d, v%d, v%d' % (M, M, M + 1)))
    each(lambda c, b, hh, S, M, PB: E('v_rcp_f32 v%d, v%d' % (M, M)))
    each(lambda c, b, hh, S, M, PB: [E('v_mul_f32 v%d, v%d, v%d' % (184 + c * 4 + r, 184 + c * 4 + r, M)) for r in range(4)])
    pace_off()
    for i, b in enumerate((1, 0)):
        O = 184 + i * 8
        D = 200 + i * 4
        for q in range(4):
            E('v_cvt_pk_bf16_f32 v%d, v%d, v%d' % (D + q, O + 2 * q, O + 2 * q + 1))
    for i, b in enumerate((1, 0)):
        D = 200 + i * 4
        E('v_permlane16_swap_b32 v%d, v%d' % (D, D + 2))
        E('v_permlane16_swap_b32 v%d, v%d' % (D + 1, D + 3))
        E('buffer_store_dwordx4 v[%d:%d], v77, %s, s%d offen sc1' % (D, D + 3, srd('WS'), 34 + b))
    stamp(5)


def ut_loads():
    E('s_sub_u32 s63, s3, 1')
    E('v_lshlrev_b32 v28, 5, v3')
    E('s_lshl_b32 s35, s4, 7')
    for q in range(4):
        E('s_add_u32 s6, s35, %d' % (OFF_MODP + q * 12288 + 1536 * 4))
        for h in range(4):
            r = 192 + (q * 4 + h) * 4
            E('buffer_load_dwordx4 v[%d:%d], v28, %s, s6 offen offset:%d' % (r, r + 3, srd('WS'), (h >> 1) * 2048 + (h & 1) * 16))
    E('v_lshlrev_b32 v29, 4, v2')
    E('s_cmp_eq_u32 s3, 2')
    E('s_cselect_b32 s6, 5, 2')
    E('s_cmp_eq_u32 s3, 3')
    E('s_cselect_b32 s6, 4, s6')
    E('s_lshl_b32 s6, s6, 9')
    E('s_add_u32 s6, s6, s%d\ns_lshl_b32 s35, s6, 2' % S_C0)
    for q in range(4):
        E('s_add_u32 s6, s35, %d' % (OFF_MODP + q * 12288))
        E('buffer_load_dwordx4 v[%d:%d], v29, %s, s6 offen' % (64 + 4 * q, 67 + 4 * q, srd('WS')))


def ut_compute():
    for r in range(16):
        E('v_add_f32 v%d, v%d, v%d' % (192 + r, 192 + r, 208 + r))
        E('v_add_f32 v%d, v%d, v%d' % (224 + r, 224 + r, 240 + r))
    for r in range(16):
        E('v_add_f32 v%d, v%d, v%d' % (192 + r, 192 + r, 224 + r))
    for e in range(8):
        round_bf16(200 + e, 200 + e)
        E('v_add_f32 v%d, 1.0, v%d' % (200 + e, 200 + e))
    for p in range(4):
        E('v_cvt_pk_bf16_f32 v%d, v%d, v%d' % (208 + p, 192 + 2 * p, 193 + 2 * p))
        E('v_cvt_pk_bf16_f32 v%d, v%d, v%d' % (212 + p, 200 + 2 * p, 201 + 2 * p))
    for r in range(8):
        E('v_accvgpr_write_b32 a%d, v%d' % (128 + r, 208 + r))
    E('s_cmp_eq_u32 s3, 3')
    E('s_cselect_b32 s6, 1.0, 0')
    for r in range(4):
        E('v_add_f32 v%d, v%d, v%d' % (64 + r, 64 + r, 68 + r))
        E('v_add_f32 v%d, v%d, v%d' % (72 + r, 72 + r, 76 + r))
        E('v_add_f32 v%d, v%d, v%d' % (64 + r, 64 + r, 72 + r))
        round_bf16(64 + r, 64 + r)
        E('v_add_f32 v%d, s6, v%d' % (64 + r, 64 + r))
        round_bf16(64 + r, 64 + r)
    E('s_lshl_b32 s6, s63, 8\ns_add_u32 s6, s6, %d' % L_GA)
    E('v_add_u32 v5, s6, v29')
    E('ds_write_b128 v5, v[64:67]')


def gather_ut(half):
    E('s_mul_i32 s34, s5, %d\ns_add_u32 s34, s34, %d' % (16 * 1536, OFF_UT + half * 1024))
    if half:
        E('s_mov_b32 exec_lo, -1\ns_mov_b32 exec_hi, 0')
    for kg in range(16):
        E('s_add_u32 s35, s34, %d' % (kg * 1536))
        E('buffer_load_dwordx4 v[%d:%d], v4, %s, s35 offen sc1' % (128 + 4 * kg, 131 + 4 * kg, srd('WS')))
    E('s_waitcnt vmcnt(0)')
    for step in (8, 4, 2, 1):
        for kg in range(step):
            for r in range(4):
                E('v_add_f32 v%d, v%d, v%d' % (128 + 4 * kg + r, 128 + 4 * kg + r, 128 + 4 * (kg + step) + r))
    E('v_add_u32 v5, %d, v1' % (64 * half))
    E('v_mov_b32 v6, 1.0')
    E('v_mov_b32 v132, %s' % f32(-LOG2E))
    E('v_mov_b32 v133, %s' % f32(-1.0 / LOG2E))
    E('v_subrev_u32 v134, 24, v5')
    E('v_cmp_gt_u32 vcc, 24, v134')
    E('v_cndmask_b32 v6, v6, v132, vcc')
    E('v_cmp_lt_u32 vcc, 71, v5')
    E('v_cndmask_b32 v6, v6, v133, vcc')
    for r in range(4):
        E('v_mul_f32 v%d, v%d, v6' % (128 + r, 128 + r))
    E('v_add_u32 v5, %d, v4' % (L_UT + half * 1024))
    E('ds_write_b128 v5, v[128:131]')
    E('s_mov_b64 exec, -1')
    E('s_waitcnt lgkmcnt(0)')


def sync_window(cnt, common, jobs):
    E('s_waitcnt vmcnt(0)')
    E('s_barrier')
    lo, le = lab('SO'), lab('SE')
    E('s_cmp_lg_u32 s3, 0')
    E('s_cbranch_scc1 ' + lo)
    arrive(S_CNTG, cnt)
    poll_ge(S_CNTG, cnt, 16)
    E('s_branch ' + le)
    E(lo + ':')
    if common:
        common()
    for w in jobs:
        lsk = lab('SJ')
        E('s_cmp_lg_u32 s3, %d' % w)
        E('s_cbranch_scc1 ' + lsk)
        jobs[w]()
        E(lsk + ':')
    E(le + ':')
    E('s_barrier')


def splitk_phase(which, nb_pre, bg_loop=(), bg_red=()):
    NKS = 4 if which == 2 else 11
    KTOT = 16 if which == 2 else 43
    AOFF = OFF_O if which == 2 else OFF_HH
    APRE = int(os.environ.get('APRE', '4'))
    st0 = 6 if which == 2 else 11
    stamp(st0)
    if which == 2:
        vm.reset()
    E('s_lshr_b32 s6, s%d, 4' % S_R0)
    for d in range(4):
        E('s_add_u32 s7, s3, %d\ns_and_b32 s7, s7, 3\ns_add_u32 s7, s7, s6\ns_mul_i32 s7, s7, %d\ns_add_u32 s7, s7, %d' % (d, KTOT * 1024, AOFF))
        E('v_add_u32 v%d, s7, v4' % (20 + d))

    def a_grps(pos):
        grps = []
        for d in range(4):
            g_ = []
            so = SKT[which] + pos
            if which == 4:
                if d == 0:
                    g_.append('s_min_u32 s35, s%d, %d' % (so, 42 * 1024))
                so = 35
            k, r = areg(which, pos, d)
            g_.append('buffer_load_dwordx4 %s[%d:%d], v%d, %s, s%d offen sc1' % (k, r, r + 3, 20 + d, srd('WS'), so))
            grps.append(g_)
        return grps
    TA = 'a' if which == 2 else 'a4'
    if which == 4:
        E('s_waitcnt vmcnt(%d)' % vm.n_after([('cka', 0)]))
        check_or_poll(7, CHA)
    for pos in range(min(APRE, NKS)):
        for g_ in a_grps(pos):
            vm.grp(g_, (TA, pos))
    if which == 4:
        E('v_mov_b32 v6, %d' % CHB)
        vm.op('buffer_load_dword v7, v6, %s, s%d offen sc1' % (srd('WS'), S_CNTG), ('ckb', 0))
        E('s_waitcnt vmcnt(%d)' % vm.n_after([('hs2', 0)]))
        arrive_u(CH)
    E('s_lshl_b32 s34, s3, 4\ns_add_u32 s34, s34, s%d' % S_R0)
    E('v_add_u32 v24, s34, v2')
    E('v_lshlrev_b32 v25, 10, v24')
    E('v_lshl_add_u32 v25, v3, 4, v25')
    E('v_add_u32 v16, s%d, v4' % S_QB)
    ACC = 64
    if which == 2:
        vm.grp(['s_lshl_b32 s35, s%d, 1' % S_C0, 'buffer_load_dwordx4 v[160:163], v25, %s, s35 offen' % srd('X'),
                'buffer_load_dwordx4 v[164:167], v25, %s, s35 offen offset:64' % srd('X')], ('x', 0))
    bgq = list(bg_loop)
    nb = nb_pre
    for pos in range(NKS):
        if which == 4 and pos == 0:
            E('s_waitcnt vmcnt(%d)' % vm.n_after([('ckb', 0)]))
            check_or_poll(7, CHB)
        if which == 4 and pos == 3:
            E('v_mov_b32 v6, %d' % CH)
            vm.op('buffer_load_dword v7, v6, %s, s%d offen sc1' % (srd('WS'), S_CNTG), ('ckc', 0))
        if which == 4 and pos == 4:
            E('s_waitcnt vmcnt(%d)' % vm.n_after([('ckc', 0)]))
            check_or_poll(7, CH)
        E('s_waitcnt vmcnt(%d)' % vm.n_after([(TA, pos), ('b', pos)]))
        if which == 4 and pos == 1:
            E('v_add_u32 v17, 0x10000, v16')
            for pp in range(7, 11):
                for q in range(4):
                    k_, r_ = breg(4, pp, q)
                    off = B4L_ROW[pp - 7] * ROWB + q * 1024
                    E('ds_read_b128 v[%d:%d], v%d offset:%d' % (r_, r_ + 3, 16 + (off >> 16), off & 0xffff))
        if which == 4 and pos == 7:
            E('s_waitcnt lgkmcnt(0)')
        grp = []
        if pos + APRE < NKS:
            grp += [(g_, (TA, pos + APRE)) for g_ in a_grps(pos + APRE)]
        if nb < NKS:
            grp += [(g_, ('b', nb)) for g_ in splitk_b_grps(which, nb)]
            nb += 1
        while bgq and len(grp) < 8 and pos + APRE >= NKS:
            grp.append((bgq.pop(0), ('bg', 0)))
        i = 0
        for d in range(4):
            for ct in range(4):
                acc = ACC + (d * 4 + ct) * 4
                bk, bf = breg(which, pos, ct)
                ak, af = areg(which, pos, d)
                c = '0' if pos == 0 else 'v[%d:%d]' % (acc, acc + 3)
                E('v_mfma_f32_16x16x32_bf16 v[%d:%d], %s[%d:%d], %s[%d:%d], %s' % (acc, acc + 3, bk, bf, bf + 3, ak, af, af + 3, c))
                if grp and i % 2 == 1:
                    g_, tag = grp.pop(0)
                    vm.grp(g_, tag)
                i += 1
        assert not grp
    assert not bgq
    stamp(st0 + 1)
    for d in range(1, 4):
        E('s_add_u32 s7, s3, %d\ns_and_b32 s7, s7, 3\ns_lshl_b32 s7, s7, 12\ns_add_u32 s7, s7, %d' % (d, (RED_ROW + d - 1) * ROWB))
        E('v_add_u32 v%d, s7, v4' % (26 + d))
    E('v_lshlrev_b32 v22, 5, v3')
    E('v_add_u32 v22, %d, v22' % L_GA)
    go = 0 if which == 2 else 256
    for c in range(2):
        for hlf in range(2):
            E('ds_read_b128 v[%d:%d], v22 offset:%d' % (168 + c * 8 + hlf * 4, 171 + c * 8 + hlf * 4, go + c * 128 + hlf * 16))
    if which == 2:
        for c in range(2):
            for hlf in range(2):
                E('ds_read_b128 v[%d:%d], v22 offset:%d' % (208 + c * 8 + hlf * 4, 211 + c * 8 + hlf * 4, 512 + c * 128 + hlf * 16))
    if which == 4:
        E('s_barrier')
    for d in range(1, 4):
        for ct in range(4):
            acc = ACC + (d * 4 + ct) * 4
            E('ds_write_b128 v%d, v[%d:%d] offset:%d' % (26 + d, acc, acc + 3, ct * 1024))
    for g_ in bg_red:
        vm.grp(g_, ('bg', 0))
    if which == 4:
        for r in range(8):
            E('v_accvgpr_read_b32 v%d, a%d' % (160 + r, 240 + r))
    else:
        E('s_waitcnt vmcnt(%d)' % vm.n_after([('x', 0)]))
    for i in range(16):
        src = 160 + i // 2
        if i % 2 == 0:
            E('v_lshlrev_b32 v%d, 16, v%d' % (192 + i, src))
        else:
            E('v_and_b32 v%d, 0xffff0000, v%d' % (192 + i, src))
    E('v_add_u32 v26, %d, v16' % (RED_ROW * ROWB))
    E('s_waitcnt lgkmcnt(0)')
    E('s_barrier')
    for d in range(1, 4):
        for ct in range(4):
            acc = ACC + (d * 4 + ct) * 4
            E('ds_read_b128 v[%d:%d], v26 offset:%d' % (acc, acc + 3, (d - 1) * ROWB + ct * 1024))
    E('s_waitcnt lgkmcnt(8)')
    for r in range(16):
        E('v_add_f32 v%d, v%d, v%d' % (ACC + r, ACC + r, ACC + 16 + r))
    E('s_waitcnt lgkmcnt(0)')
    for r in range(16):
        E('v_add_f32 v%d, v%d, v%d' % (ACC + 32 + r, ACC + 32 + r, ACC + 48 + r))
    for r in range(16):
        E('v_add_f32 v%d, v%d, v%d' % (ACC + r, ACC + r, ACC + 32 + r))
    for i in range(16):
        E('v_fma_f32 v%d, v%d, v%d, v%d' % (ACC + i, ACC + i, 168 + i, 192 + i))
    for p in range(8):
        E('v_cvt_pk_bf16_f32 v%d, v%d, v%d' % (184 + p, ACC + 2 * p, ACC + 2 * p + 1))
    if which == 2:
        for p in range(8):
            E('v_lshlrev_b32 v%d, 16, v%d' % (ACC + 2 * p, 184 + p))
            E('v_and_b32 v%d, 0xffff0000, v%d' % (ACC + 2 * p + 1, 184 + p))
        for i in range(16):
            E('v_mul_f32 v%d, v%d, v%d' % (208 + i, ACC + i, 208 + i))
        for p in range(8):
            E('v_cvt_pk_bf16_f32 v%d, v%d, v%d' % (224 + p, 208 + 2 * p, 209 + 2 * p))
        E('s_lshr_b32 s34, s%d, 4\ns_add_u32 s34, s34, s3\ns_lshl_b32 s34, s34, 14' % S_R0)
        E('s_lshl_b32 s35, s%d, 5\ns_add_u32 s34, s34, s35\ns_add_u32 s34, s34, %d' % (S_C0, OFF_X1))
        E('buffer_store_dwordx4 v[224:227], v4, %s, s34 offen sc1' % srd('WS'))
        E('buffer_store_dwordx4 v[228:231], v4, %s, s34 offen offset:1024 sc1' % srd('WS'))
        for step in (8, 4, 2, 1):
            for i in range(step):
                E('v_add_f32 v%d, v%d, v%d' % (96 + i, (ACC if step == 8 else 96) + i, (ACC if step == 8 else 96) + i + step))
        allreduce_lg('v_add_f32', 96, 28)
        E('v_mul_f32 v26, %s, v96' % f32(1.0 / 64))
        for i in range(16):
            E('v_sub_f32 v%d, v%d, v26' % (ACC + i, ACC + i))
        for i in range(4):
            E('v_mul_f32 v%d, v%d, v%d' % (96 + i, ACC + i, ACC + i))
        for i in range(4, 16):
            E('v_fmac_f32 v%d, v%d, v%d' % (96 + (i & 3), ACC + i, ACC + i))
        E('v_add_f32 v96, v96, v97\nv_add_f32 v98, v98, v99\nv_add_f32 v27, v96, v98')
        allreduce_lg('v_add_f32', 27, 28)
        E('v_lshlrev_b32 v28, 3, v24')
        E('s_lshl_b32 s35, s%d, 14\ns_add_u32 s35, s35, %d' % (S_J7, OFF_ST))
        E('s_mov_b64 exec, 0xffff')
        E('buffer_store_dwordx2 v[26:27], v28, %s, s35 offen sc1' % srd('WS'))
        E('s_mov_b64 exec, -1')
        for r in range(8):
            E('v_accvgpr_write_b32 a%d, v%d' % (240 + r, 184 + r))
    else:
        E('s_lshl_b32 s35, s%d, 1' % S_C0)
        E('buffer_store_dwordx4 v[184:187], v25, %s, s35 offen' % srd('OUT'))
        E('buffer_store_dwordx4 v[188:191], v25, %s, s35 offen offset:64' % srd('OUT'))
    stamp(st0 + 2)


A3_PRE = int(os.environ.get('A3P', '6'))
NB4_EARLY = int(os.environ.get('NB4E', '2'))


def arrive_u(cnt, barrier=True, soff=None, n=1):
    if barrier:
        E('s_barrier')
    E('s_cmp_eq_u32 s3, 0')
    E('s_cselect_b32 s6, s%d, 0x7f000000' % (soff if soff is not None else S_CNTG))
    E('s_mov_b64 exec, 1')
    E('v_mov_b32 v5, 1')
    E('v_mov_b32 v6, %d' % cnt)
    vm.op('buffer_atomic_add v5, v6, %s, s6 offen' % srd('WS'), ('arr', 0))
    E('s_mov_b64 exec, -1')


def check_or_poll(reg, cnt):
    lok = lab('CK')
    E('v_cmp_gt_u32 vcc, 16, v%d' % reg)
    E('s_cbranch_vccz ' + lok)
    poll_ge(S_CNTG, cnt, 16)
    E(lok + ':')


def phase3():
    stamp(9)
    vm.reset()
    E('s_lshl_b32 s6, s%d, 14\ns_add_u32 s6, s6, %d' % (S_ROW, OFF_X1))
    E('v_add_u32 v20, s6, v4')
    E('v_add_u32 v21, 0x4000, v20')
    E('s_lshl_b32 s7, s%d, 7\ns_add_u32 s7, s7, %d' % (S_ROW, OFF_ST))
    E('v_lshlrev_b32 v22, 3, v2')
    E('v_add_u32 v22, s7, v22')

    def a_grp(i):
        return ['buffer_load_dwordx4 a[%d:%d], v%d, %s, s%d offen sc1' % (i * 8 + b * 4, i * 8 + b * 4 + 3, 20 + b, srd('WS'), S_ROT + i) for b in range(2)]
    for i in range(A3_PRE):
        vm.grp(a_grp(i), ('a', i))
    stg = []
    for t in range(8):
        stg.append((['s_mov_b32 s35, %d' % (t * 16384)] + ['buffer_load_dwordx2 v[%d:%d], v22, %s, s35 offen offset:%d sc1' % (192 + b * 16 + 2 * t, 193 + b * 16 + 2 * t, srd('WS'), b * 128) for b in range(2)], ('st', 0)))
    E('v_add_u32 v16, 0x10000, v4')
    E('v_add_u32 v17, 0x20000, v4')
    E('v_lshlrev_b32 v18, 5, v3')
    E('v_add_u32 v18, %d, v18' % L_UT)
    E('s_mul_i32 s6, s%d, %d\ns_lshl_b32 s7, s%d, 10\ns_add_u32 s6, s6, s7\ns_add_u32 s6, s6, %d' % (S_ROW, 43 * 1024, S_PS, OFF_HH))
    E('v_add_u32 v23, s6, v4')
    E('v_add_u32 v24, %d, v23' % (43 * 1024))
    E('s_add_u32 s6, s5, 1\ns_mul_i32 s6, s6, 0x5556\ns_lshr_b32 s6, s6, 13\ns_sub_u32 s6, s6, s%d' % S_PS)
    E('s_cmp_eq_u32 s5, 15')
    E('s_cselect_b32 s6, 3, s6')
    E('s_cmp_eq_u32 s6, 2')
    E('s_cselect_b32 s32, 0x7f000000, 0')
    E('s_mov_b32 s34, %s' % f32(-LOG2E))
    E('s_waitcnt vmcnt(%d)' % vm.n_after([('a', 0)]))
    E('s_barrier')

    def stats_ops():
        ops = []
        for b in range(2):
            B = 192 + b * 16
            mean, rs, t1, t2 = 26 + 2 * b, 27 + 2 * b, 30 + 2 * b, 31 + 2 * b
            ops.append('v_add_f32 v%d, v%d, v%d' % (mean, B, B + 2))
            ops.append('v_add_f32 v%d, v%d, v%d' % (rs, B + 1, B + 3))
            for t in range(2, 8):
                ops.append('v_add_f32 v%d, v%d, v%d' % (mean, mean, B + 2 * t))
                ops.append('v_add_f32 v%d, v%d, v%d' % (rs, rs, B + 2 * t + 1))
            ops.append('v_mul_f32 v%d, %s, v%d' % (mean, f32(0.125), mean))
            ops.append('v_mov_b32 v%d, 0' % t2)
            for t in range(8):
                ops.append('v_sub_f32 v%d, v%d, v%d' % (t1, B + 2 * t, mean))
                ops.append('v_fmac_f32 v%d, v%d, v%d' % (t2, t1, t1))
            ops.append('v_mov_b32 v%d, %s' % (t1, f32(64.0)))
            ops.append('v_fmac_f32 v%d, v%d, v%d' % (rs, t2, t1))
            ops.append('v_mul_f32 v%d, %s, v%d' % (rs, f32(1.0 / 512), rs))

            def rnd(x):
                ops.append('v_cvt_pk_bf16_f32 v%d, v%d, v%d' % (x, x, x))
                ops.append('v_and_b32 v%d, 0xffff0000, v%d' % (x, x))
            rnd(mean); rnd(rs)
            ops.append('v_add_f32 v%d, %s, v%d' % (rs, f32(1e-5), rs))
            rnd(rs)
            ops.append('v_sqrt_f32 v%d, v%d' % (rs, rs))
            rnd(rs)
            ops.append('v_rcp_f32 v%d, v%d' % (rs, rs))
            ops.append('v_mul_f32 v%d, %s, v%d' % (t1, f32(-1.0 / LOG2E), rs))
            ops.append('v_mul_f32 v%d, %s, v%d' % (rs, f32(-LOG2E), rs))
        return ops

    def bread(u):
        out = []
        for q in range(4):
            d = 128 + (u % 3) * 16 + q * 4
            off = p3_addr(u) + q * 1024
            out.append('ds_read_b128 v[%d:%d], v%d offset:%d' % (d, d + 3, (4, 16, 17)[off >> 16], off & 0xffff))
        return out

    def utread(p):
        ops = []
        for m in range(2):
            for ut in range(2):
                d = 176 + (m * 2 + ut) * 8
                off = (m * 2 + ut) * 384 + p * 128
                ops.append('ds_read_b128 v[%d:%d], v18 offset:%d' % (d, d + 3, off))
                ops.append('ds_read_b128 v[%d:%d], v18 offset:%d' % (d + 4, d + 7, off + 16))
        return ops

    def epilogue(p):
        ops = []
        A0 = 64 + (p & 1) * 32
        for b in range(2):
            mean, rs = 26 + 2 * b, 27 + 2 * b
            T = 208 + b * 8
            regs = []
            for e in range(8):
                ct, r = e >> 2, e & 3
                regs.append((A0 + (b * 4 + 0 + ct) * 4 + r, A0 + (b * 4 + 2 + ct) * 4 + r))
            for e, (ga, ua) in enumerate(regs):
                ops.append('v_fma_f32 v%d, -v%d, v%d, v%d' % (ga, mean, 176 + e, ga))
                ops.append('v_fma_f32 v%d, -v%d, v%d, v%d' % (ua, mean, 192 + e, ua))
            for e, (ga, ua) in enumerate(regs):
                ops.append('v_fma_f32 v%d, v%d, v%d, v%d' % (ga, ga, rs, 184 + e))
                ops.append('v_fma_f32 v%d, v%d, v%d, v%d' % (ua, ua, 30 + 2 * b, 200 + e))
            for e, (ga, ua) in enumerate(regs):
                ops.append('v_exp_f32 v%d, v%d' % (T + e, ga))
                ops.append('v_mul_f32 v%d, v%d, v%d' % (ga, ga, ua))
            for e, (ga, ua) in enumerate(regs):
                ops.append('v_add_f32 v%d, 1.0, v%d' % (T + e, T + e))
            for e, (ga, ua) in enumerate(regs):
                ops.append('v_rcp_f32 v%d, v%d' % (T + e, T + e))
            for e, (ga, ua) in enumerate(regs):
                ops.append('v_mul_f32 v%d, v%d, v%d' % (T + e, T + e, ga))
            D = 224 + b * 4
            for q in range(4):
                ops.append('v_cvt_pk_bf16_f32 v%d, v%d, v%d' % (D + q, T + 2 * q, T + 2 * q + 1))
            ops.append('buffer_store_dwordx4 v[%d:%d], v%d, %s, %s offen offset:%d sc1' % (D, D + 3, 23 + b, srd('WS'), 's32' if p == 2 else '0', p * 1024))
        return ops

    for o in bread(0) + bread(1):
        E(o)
    pend = []
    bgq = [(p3_b_grp(uu), ('b3a', 0)) for uu in range(24, 36)]
    for p in range(3):
        A0 = 64 + (p & 1) * 32
        for ks in range(16):
            u = p * 16 + ks
            if ks == 0 and p >= 1:
                for o in utread(p - 1):
                    E(o)
                E('s_waitcnt lgkmcnt(0)')
                if p == 2:
                    E('s_waitcnt vmcnt(%d)' % vm.n_after([('b3', 0), ('hs', 0)]))
                E('s_barrier')
                stamp(20 + p)
                if p == 2:
                    arrive_u(CHA, barrier=False)
                if p == 1:
                    bgq = [(p3_b_grp(uu), ('b3', 0)) for uu in range(36, 48)] + [(g_, ('b4', 0)) for pos in range(0, 3) for g_ in splitk_b_grps(4, pos)]
                else:
                    bgq = [(g_, ('b4', 0)) for pos in range(3, 7) for g_ in splitk_b_grps(4, pos)] + [(g_, ('b4l', 0)) for pos in range(7, 11) for g_ in b4_lds_grps(pos)]
                pend = epilogue(p - 1)
            if p == 1 and ks == 4:
                E('s_waitcnt vmcnt(%d)' % vm.n_after([('b3a', 0)]))
                E('s_barrier')
            if p == 0 and ks == 11:
                E('s_waitcnt vmcnt(%d)' % vm.n_after([('st', 0)]))
                pend = stats_ops()
            lds = bread(u + 2) if u + 2 < 48 else []
            nl = 4 if u + 1 < 48 else 0
            if p == 0:
                E('s_waitcnt vmcnt(%d) lgkmcnt(%d)' % (vm.n_after([('a', ks)]), nl))
            else:
                E('s_waitcnt lgkmcnt(%d)' % nl)
            grp = []
            if p == 0 and ks + A3_PRE < 16:
                grp.append((a_grp(ks + A3_PRE), ('a', ks + A3_PRE)))
                if stg:
                    grp.append(stg.pop(0))
            else:
                for _ in range(2):
                    if bgq:
                        grp.append(bgq.pop(0))
            i = 0
            for q in range(4):
                for b in range(2):
                    acc = A0 + (b * 4 + q) * 4
                    bf = 128 + (u % 3) * 16 + q * 4
                    af = ks * 8 + b * 4
                    c = '0' if ks == 0 else 'v[%d:%d]' % (acc, acc + 3)
                    E('v_mfma_f32_16x16x32_bf16 v[%d:%d], v[%d:%d], a[%d:%d], %s' % (acc, acc + 3, bf, bf + 3, af, af + 3, c))
                    n = 3
                    if i < len(lds):
                        E(lds[i]); n = 2
                    if i in (4, 6) and grp:
                        g_, tag = grp.pop(0)
                        vm.grp(g_, tag)
                        n = 0
                    i += 1
                    for _ in range(n):
                        if pend:
                            o = pend.pop(0)
                            if o.startswith('buffer_'):
                                vm.op(o, ('hs', 0))
                            else:
                                E(o)
        for o in pend:
            if o.startswith('buffer_'):
                vm.op(o, ('hs', 0))
            else:
                E(o)
        pend = []
        assert not bgq
    stamp(23)
    for o in utread(2):
        E(o)
    E('s_waitcnt vmcnt(%d) lgkmcnt(0)' % vm.n_after([('hs', 0)]))
    arrive_u(CHB)
    E('v_mov_b32 v6, %d' % CHA)
    vm.op('buffer_load_dword v7, v6, %s, s%d offen sc1' % (srd('WS'), S_CNTG), ('cka', 0))
    for o in epilogue(2):
        if o.startswith('buffer_'):
            vm.op(o, ('hs2', 0))
        else:
            E(o)
    stamp(10)


def stop_here(n):
    if STOP == n:
        E('s_waitcnt vmcnt(0)')
        finish()
        return True
    return False


def main():
    kernel0()
    k1_prologue()
    phase1()
    if stop_here(1):
        return
    left = list(BGS)
    del BGS[:]
    sys.stderr.write('bg left after P1: %d\n' % len(left))
    sync_window(CO, None, {})
    allbg = left
    splitk_phase(2, 4, bg_loop=allbg[:32], bg_red=allbg[32:])
    if stop_here(2):
        return
    sync_window(C1, None, {1: lambda: (poll_ge(S_CNTJ, CW, 16), gather_ut(0)), 2: lambda: (poll_ge(S_CNTJ, CW, 16), gather_ut(1))})
    phase3()
    if stop_here(3):
        return
    splitk_phase(4, 11)
    E('s_waitcnt vmcnt(0)')
    finish()


main()
hdr = ['; @launch kernel=k0_kernel grid=(256,1,1) block=(256,1,1) lds=32768',
       '; @launch kernel=k1_kernel grid=(256,1,1) block=(256,1,1) lds=%d' % LDS_TOTAL,
       '.amdgcn_target "amdgcn-amd-amdhsa--gfx950"', '.text']
tail = ''
for name, nv, ao in (('k0_kernel', 128, 128), ('k1_kernel', 512, 256)):
    tail += """.section .rodata,"a"
.p2align 6
.amdhsa_kernel %s
  .amdhsa_next_free_vgpr %d
  .amdhsa_next_free_sgpr 102
  .amdhsa_accum_offset %d
  .amdhsa_group_segment_fixed_size 0
  .amdhsa_kernarg_size 96
  .amdhsa_user_sgpr_count 2
  .amdhsa_user_sgpr_kernarg_segment_ptr 1
  .amdhsa_system_sgpr_workgroup_id_x 1
.end_amdhsa_kernel
""" % (name, nv, ao)
print('\n'.join(hdr) + '\n' + E.text() + tail)
sys.stderr.write('instructions: %d\n' % E.nins)
```

```python
import sys, os, struct
from emit import Emitter

STOP = int(os.environ.get('STOP', '99'))
STAMPS = int(os.environ.get('STAMPS', '0'))

OFF_CNT = 0x0000000
OFF_MODP = 0x0010000
OFF_XH = 0x0100000
OFF_O = 0x0400000
OFF_X1 = 0x0700000
OFF_ST = 0x0A00000
OFF_HH = 0x0B00000
OFF_WF = 0x1100000
OFF_UT = 0x1400000
OFF_WQ = 0x1500000
OFF_WOF = 0x1700000
OFF_W2F = 0x1800000
OFF_STAMP = 0x8000000
CO, C1, CH, CW, CV, CHA, CHB = 128, 256, 384, 512, 640, 768, 896

SRD = dict(X=8, WQKV=12, WO=16, W1=20, W3=24, W2=28, C=32, WMOD=36, OUT=40, WS=48)
PTR = dict(X=64, WQKV=66, WO=68, W1=72, W3=74, W2=76, C=78, WMOD=80, OUT=82, WS=86)
SIZE = dict(X=2048 * 512 * 2, WQKV=512 * 1536 * 2, WO=512 * 512 * 2, W1=512 * 1376 * 2, W3=512 * 1376 * 2,
            W2=1376 * 512 * 2, C=1024, WMOD=512 * 3072 * 2, OUT=2048 * 512 * 2, WS=0x10000000)
LOG2E = 1.4426950408889634
SPIN_MAX = 400000

ROWB = 16384
L_MISC = 147456
L_TAB = L_MISC
L_XCH = L_MISC + 4096
L_UT = L_MISC + 12544
L_GA = L_MISC + 14080
LDS_TOTAL = 163840
P3_ROW = [6, 7, 8, 3, 4, 5, 0, 1, 2, 6, 7, 8]
RED_ROW = 0
L_STAMP = L_MISC + 14848
L_SCR = L_MISC + 15872
L_HP = 2 * ROWB

S_PS = 65
S_R0 = 66
S_C0 = 67
S_CNTG = 68
S_ROW = 69
S_QB = 70
S_J7 = 71
S_CNTJ = 64
S_W1K = 76
S_RT = 77
S_ROT = 12


def srd(n):
    return 's[%d:%d]' % (SRD[n], SRD[n] + 3)


def f32(x):
    return '0x%08x' % struct.unpack('<I', struct.pack('<f', x))[0]


E = Emitter()
_lab = [0]


def lab(p='L'):
    _lab[0] += 1
    return '%s_%d' % (p, _lab[0])


def stamp(slot, cyc=False):
    if not STAMPS:
        return
    E('s_memtime s[92:93]' if cyc else 's_memrealtime s[92:93]')
    E('s_lshl_b32 s91, s3, 8')
    E('s_add_u32 s91, s91, %d' % (L_STAMP + 4 * slot))
    E('s_waitcnt lgkmcnt(0)')
    E('v_mov_b32 v5, s92')
    E('v_mov_b32 v6, s91')
    E('ds_write_b32 v6, v5')
    E('s_waitcnt lgkmcnt(0)')


def finish():
    if STAMPS:
        E('s_lshl_b32 s92, s2, 2\ns_add_u32 s92, s92, s3\ns_lshl_b32 s92, s92, 8\ns_add_u32 s92, s92, %d' % OFF_STAMP)
        E('s_lshl_b32 s94, s3, 8\ns_add_u32 s94, s94, %d' % L_STAMP)
        E('v_lshlrev_b32 v6, 2, v1')
        E('v_add_u32 v7, s94, v6')
        E('s_mov_b32 exec_lo, -1\ns_mov_b32 exec_hi, 0xff')
        E('ds_read_b32 v5, v7')
        E('s_waitcnt lgkmcnt(0)')
        E('buffer_store_dword v5, v6, %s, s92 offen' % srd('WS'))
        E('s_waitcnt vmcnt(0)')
    E('s_endpgm')


class VM:
    def __init__(self):
        self.seq = []

    def reset(self):
        self.seq = []

    def op(self, text, tag=None):
        E(text)
        self.seq.append(tag)

    def grp(self, lines, tag=None):
        for l in lines:
            if l.startswith('buffer_'):
                self.op(l, tag)
            else:
                E(l)

    def n_after(self, tags):
        idx = max([i for i, t in enumerate(self.seq) if t in tags] + [-1])
        return min(63, len(self.seq) - 1 - idx)


vm = VM()


BGS = []
PACE0 = int(os.environ.get('PACE0', '6'))
PACE1 = int(os.environ.get('PACE1', '24'))
_E0 = E
_pace = {'n': 0, 'cnt': 0}


class PacedE:
    def __getattr__(self, k):
        return getattr(_E0, k)

    def __setattr__(self, k, v):
        setattr(_E0, k, v)

    def __call__(self, text):
        _E0(text)
        if _pace['n'] and BGS and not text.startswith(('s_cmp', 's_cselect', 's_add_u32 m0', 'v_cmp', 's_mov_b64 exec')):
            _pace['cnt'] += text.count('\n') + 1
            if _pace['cnt'] >= _pace['n']:
                _pace['cnt'] = 0
                g_ = BGS.pop(0)
                n = _pace['n']
                _pace['n'] = 0
                vm.grp(g_, ('bg', 0))
                _pace['n'] = n


E = PacedE()


def pace_on(n):
    _pace['n'] = n
    _pace['cnt'] = 0


def pace_off():
    _pace['n'] = 0


def allreduce_lg(op, v, tmp):
    E('v_mov_b32 v%d, v%d' % (tmp, v))
    E('v_permlane32_swap_b32 v%d, v%d' % (v, tmp))
    E('%s v%d, v%d, v%d' % (op, v, v, tmp))
    E('v_mov_b32 v%d, v%d' % (tmp, v))
    E('v_permlane16_swap_b32 v%d, v%d' % (v, tmp))
    E('%s v%d, v%d, v%d' % (op, v, v, tmp))


def round_bf16(dst, src):
    E('v_cvt_pk_bf16_f32 v%d, v%d, v%d' % (dst, src, src))
    E('v_and_b32 v%d, 0xffff0000, v%d' % (dst, dst))


def arrive(soff_reg, extra):
    E('s_mov_b64 exec, 1')
    E('v_mov_b32 v5, 1')
    E('v_mov_b32 v6, %d' % extra)
    E('buffer_atomic_add v5, v6, %s, s%d offen' % (srd('WS'), soff_reg))
    E('s_mov_b64 exec, -1')


def poll_ge(soff_reg, extra, target):
    l0, l1 = lab('P'), lab('P')
    E('s_mov_b64 exec, 1')
    E('v_mov_b32 v6, %d' % extra)
    E('s_mov_b32 s90, 0')
    E(l0 + ':')
    E('buffer_load_dword v5, v6, %s, s%d offen sc1' % (srd('WS'), soff_reg))
    E('s_add_u32 s90, s90, 1')
    E('s_cmp_gt_u32 s90, %d' % SPIN_MAX)
    E('s_cbranch_scc1 ' + l1)
    E('s_waitcnt vmcnt(0)')
    E('v_cmp_gt_u32 vcc, %d, v5' % target)
    E('s_cbranch_vccnz ' + l0)
    E(l1 + ':')
    E('s_mov_b64 exec, -1')


def reduce8(A):
    for sh in (4, 8):
        for e in range(8):
            E('v_add_f32_dpp v%d, v%d, v%d row_ror:%d row_mask:0xf bank_mask:0xf' % (A + e, A + e, A + e, sh))
    for e in range(4):
        E('v_permlane32_swap_b32 v%d, v%d' % (A + e, A + 4 + e))
    for e in range(4):
        E('v_add_f32 v%d, v%d, v%d' % (A + e, A + e, A + 4 + e))
    for e in range(2):
        E('v_permlane16_swap_b32 v%d, v%d' % (A + e, A + 2 + e))
    for e in range(2):
        E('v_add_f32 v%d, v%d, v%d' % (A + e, A + e, A + 2 + e))


def dot_rows(A, W, SC):
    for p in range(4):
        E('v_dot2_f32_bf16 v%d, v%d, v%d, v%d' % (A + 2 * p, W + p, SC, A + 2 * p))
        E('v_dot2_f32_bf16 v%d, v%d, v%d, v%d' % (A + 2 * p + 1, W + p, SC + 1, A + 2 * p + 1))


def prologue(name, nwg, bufs):
    E.raw('.globl %s\n.p2align 8\n.type %s,@function\n%s:' % (name, name, name))
    E.hist = []
    E('s_cmp_lt_u32 s2, %d' % nwg)
    E('s_cbranch_scc1 L_go_%s' % name)
    E('s_endpgm')
    E('L_go_%s:' % name)
    E('s_load_dwordx16 s[64:79], s[0:1], 0')
    E('s_load_dwordx8 s[80:87], s[0:1], 64')
    E('v_and_b32 v1, 63, v0')
    E('v_and_b32 v2, 15, v0')
    E('v_bfe_u32 v3, v0, 4, 2')
    E('v_lshrrev_b32 v4, 6, v0')
    E('v_readfirstlane_b32 s3, v4')
    E('v_lshlrev_b32 v4, 4, v1')
    MAP = os.environ.get('MAP', '42')
    if MAP == '81':
        E('s_and_b32 s4, s2, 7\ns_lshl_b32 s4, s4, 1\ns_bfe_u32 s5, s2, 0x10003\ns_or_b32 s4, s4, s5\ns_lshr_b32 s5, s2, 4')
    elif MAP == '42':
        E('s_bfe_u32 s4, s2, 0x20001\ns_lshl_b32 s4, s4, 2\ns_lshr_b32 s5, s2, 6\ns_or_b32 s4, s4, s5')
        E('s_and_b32 s5, s2, 1\ns_lshl_b32 s5, s5, 3\ns_bfe_u32 s6, s2, 0x30003\ns_or_b32 s5, s5, s6')
    else:
        E('s_bfe_u32 s4, s2, 0x10002\ns_lshl_b32 s4, s4, 3\ns_lshr_b32 s5, s2, 5\ns_or_b32 s4, s4, s5')
        E('s_and_b32 s5, s2, 3\ns_lshl_b32 s5, s5, 2\ns_bfe_u32 s6, s2, 0x20003\ns_or_b32 s5, s5, s6')
    E('s_waitcnt lgkmcnt(0)')
    for b in bufs:
        r = SRD[b]
        E('s_mov_b32 s%d, s%d\ns_and_b32 s%d, s%d, 0xffff\ns_mov_b32 s%d, 0x%x\ns_mov_b32 s%d, 0x20000' % (
            r, PTR[b], r + 1, PTR[b] + 1, r + 2, SIZE[b], r + 3))


def code_touch(tag):
    E('s_getpc_b64 s[88:89]')
    E('L_pc_%s:' % tag)
    E('s_add_u32 s88, s88, k1_kernel-L_pc_%s' % tag)
    E('s_addc_u32 s89, s89, 0' if tag == 'k0' else 's_addc_u32 s89, s89, -1')
    E('v_lshlrev_b32 v40, 7, v1')
    E('s_lshl_b32 s6, s3, 14')
    E('v_add_u32 v40, s6, v40')
    E('v_add_u32 v41, 0x2000, v40')
    E('s_mov_b32 s6, L_codeend-k1_kernel-4')
    E('v_min_u32 v40, s6, v40')
    E('v_min_u32 v41, s6, v41')
    E('global_load_dword v42, v40, s[88:89]')
    E('global_load_dword v43, v41, s[88:89]')


def kernel0():
    prologue('k0_kernel', 256, list(SRD))
    if STAMPS:
        E('s_memrealtime s[94:95]')
    E('v_lshrrev_b32 v7, 2, v1')
    E('v_and_b32 v8, 3, v1')
    E('s_lshl_b32 s%d, s4, 10' % S_CNTG)
    lw23, lj = lab('W23'), lab('J')
    E('s_cmp_ge_u32 s3, 2')
    E('s_cbranch_scc1 ' + lw23)
    E('v_and_b32 v11, 7, v1')
    E('v_lshrrev_b32 v12, 3, v1')
    E('v_lshlrev_b32 v13, 10, v12')
    E('v_lshl_add_u32 v13, v11, 4, v13')
    E('v_lshlrev_b32 v14, 10, v11')
    E('v_lshl_add_u32 v14, v12, 4, v14')
    E('s_lshl_b32 s6, s4, 7\ns_lshl_b32 s7, s5, 3\ns_add_u32 s6, s6, s7\ns_lshl_b32 s54, s6, 10')
    E('s_lshl_b32 s7, s3, 9\ns_add_u32 s55, s54, s7')
    for i in range(8):
        E('buffer_load_dwordx4 v[%d:%d], v13, %s, s54 offen offset:%d' % (64 + 4 * i, 67 + 4 * i, srd('X'), i * 128))
    for i in range(4):
        E('buffer_load_dwordx4 v[%d:%d], v14, %s, s55 offen offset:%d' % (96 + 4 * i, 99 + 4 * i, srd('X'), i * 128))
    E('v_lshlrev_b32 v16, 7, v1')
    E('v_mov_b32 v19, 0')
    E('s_lshl_b32 s6, s3, 4\ns_or_b32 s6, s6, s5')
    E('s_cmp_eq_u32 s6, 0')
    E('s_cselect_b32 s58, s%d, 0x7f000000' % S_CNTG)
    E('s_mov_b64 exec, 0xff')
    E('buffer_store_dword v19, v16, %s, s58 offen' % srd('WS'))
    E('s_mov_b64 exec, 1')
    for q in range(3):
        E('buffer_load_dword v%d, v4, %s, 0 offen' % (60 + q, srd('C')))
    E('s_mov_b64 exec, -1')
    E('s_branch ' + lj)
    E(lw23 + ':')
    E('s_movk_i32 s6, 6144')
    E('v_mul_lo_u32 v9, v7, s6')
    E('v_lshl_add_u32 v9, v8, 4, v9')
    E('s_and_b32 s63, s2, 3')
    E('s_lshr_b32 s53, s2, 2\ns_lshl_b32 s53, s53, 1\ns_and_b32 s7, s3, 1\ns_add_u32 s53, s53, s7')
    E('v_lshlrev_b32 v10, 1, v7')
    E('s_lshl_b32 s6, s63, 8')
    for n in range(8):
        E('buffer_load_ushort v%d, v10, %s, s6 offen offset:%d' % (16 + n, srd('C'), n * 32))
    E('s_mul_i32 s58, s63, %d\ns_lshl_b32 s59, s53, 6\ns_add_u32 s58, s58, s59' % (128 * 6144))
    E('s_cmp_ge_u32 s2, 192')
    E('s_cselect_b32 s58, 0x7f000000, s58')
    for n in range(8):
        E('s_add_u32 s59, s58, %d' % (n * 16 * 6144))
        E('buffer_load_dwordx4 v[%d:%d], v9, %s, s59 offen' % (64 + 4 * n, 67 + 4 * n, srd('WMOD')))
    E(lj + ':')
    E('s_lshl_b32 s52, s2, 2\ns_add_u32 s52, s52, s3')
    E('s_lshl_b32 s%d, s3, 13' % S_QB)

    def tile_params(rnd):
        d0, d1, nat = 72 + 2 * rnd, 73 + 2 * rnd, 80 + rnd
        la, lb = lab('TA'), lab('TB')
        if rnd == 0:
            E('s_cmp_ge_u32 s52, 768')
            E('s_cbranch_scc1 ' + la)
            E('s_mov_b64 s[56:57], s[%d:%d]\ns_mov_b32 s58, 0x%x' % (SRD['WQKV'], SRD['WQKV'] + 1, SIZE['WQKV']))
            E('s_mul_i32 s6, s52, 1366\ns_lshr_b32 s6, s6, 16\ns_mul_i32 s7, s6, 48\ns_sub_u32 s7, s52, s7')
            E('s_mul_i32 s54, s6, %d\ns_lshl_b32 s60, s7, 6\ns_add_u32 s54, s54, s60\ns_movk_i32 s55, 3072' % (32 * 3072))
            E('s_and_b32 s60, s7, 15\ns_mul_i32 s60, s60, %d\ns_lshr_b32 s61, s7, 4\ns_lshl_b32 s61, s61, 15\ns_add_u32 s60, s60, s61' % (6 * 16384))
            E('s_lshl_b32 s6, s6, 10\ns_add_u32 s60, s60, s6\ns_add_u32 s%d, s60, %d\ns_add_u32 s%d, s%d, 16384' % (d0, OFF_WQ, d1, d0))
            E('s_mov_b32 s%d, 1' % nat)
            E('s_branch ' + lb)
            E(la + ':')
            E('s_mov_b64 s[56:57], s[%d:%d]\ns_mov_b32 s58, 0x%x' % (SRD['WO'], SRD['WO'] + 1, SIZE['WO']))
            E('s_sub_u32 s7, s52, 768\ns_lshr_b32 s6, s7, 4\ns_and_b32 s7, s7, 15')
            E('s_lshl_b32 s54, s6, 15\ns_lshl_b32 s60, s7, 6\ns_add_u32 s54, s54, s60\ns_movk_i32 s55, 1024')
            E('s_lshl_b32 s60, s7, 15\ns_lshl_b32 s6, s6, 10\ns_add_u32 s60, s60, s6\ns_add_u32 s%d, s60, %d\ns_add_u32 s%d, s%d, 16384' % (d0, OFF_WOF, d1, d0))
            E('s_mov_b32 s%d, 0' % nat)
        else:
            if rnd < 3:
                E('s_cmp_ge_u32 s52, 688')
                E('s_cbranch_scc1 ' + la)
                W = 'W1' if rnd == 1 else 'W3'
                E('s_mov_b64 s[56:57], s[%d:%d]\ns_mov_b32 s58, 0x%x' % (SRD[W], SRD[W] + 1, SIZE[W]))
                E('s_mul_i32 s6, s52, 1525\ns_lshr_b32 s6, s6, 16\ns_mul_i32 s7, s6, 43\ns_sub_u32 s7, s52, s7')
                E('s_mul_i32 s54, s6, %d\ns_lshl_b32 s60, s7, 6\ns_add_u32 s54, s54, s60\ns_movk_i32 s55, 2752' % (32 * 2752))
                E('s_lshl_b32 s60, s7, 16\ns_lshl_b32 s6, s6, 10\ns_add_u32 s60, s60, s6\ns_add_u32 s%d, s60, %d\ns_add_u32 s%d, s%d, 16384' % (
                    d0, OFF_WF + (rnd - 1) * 32768, d1, d0))
                E('s_branch ' + lb)
                E(la + ':')
                E('s_add_u32 s7, s52, %d' % ((rnd - 1) * 336 - 688))
            else:
                E('s_add_u32 s7, s52, 672')
            E('s_mov_b64 s[56:57], s[%d:%d]\ns_mov_b32 s58, 0x%x' % (SRD['W2'], SRD['W2'] + 1, SIZE['W2']))
            E('s_and_b32 s6, s7, 15\ns_lshr_b32 s7, s7, 4')
            E('s_lshl_b32 s54, s7, 15\ns_lshl_b32 s60, s6, 6\ns_add_u32 s54, s54, s60\ns_movk_i32 s55, 1024')
            E('s_mul_i32 s60, s6, %d\ns_lshl_b32 s61, s7, 10\ns_add_u32 s60, s60, s61\ns_add_u32 s%d, s60, %d\ns_add_u32 s%d, s%d, %d' % (
                2 * 43 * 1024, d0, OFF_W2F, d1, d0, 43 * 1024))
            E('s_cmp_ge_u32 s7, 43')
            E('s_cselect_b32 s%d, 0x7f000000, s%d\ns_cselect_b32 s%d, 0x7f000000, s%d' % (d0, d0, d1, d1))
            if rnd < 3:
                pass
        E(lb + ':')
        if rnd:
            E('s_mov_b32 s%d, 0' % nat)
        E('s_mov_b32 s59, 0x20000')
        E('v_mul_lo_u32 v44, v7, s55')
        E('v_lshl_add_u32 v44, v8, 4, v44')
        E('s_add_u32 m0, s%d, %d' % (S_QB, rnd * 2048))
        E('buffer_load_dwordx4 v44, s[56:59], s54 offen lds')
        E('s_lshl_b32 s55, s55, 4\ns_add_u32 s54, s54, s55')
        E('s_add_u32 m0, s%d, %d' % (S_QB, rnd * 2048 + 1024))
        E('buffer_load_dwordx4 v44, s[56:59], s54 offen lds')
    for rnd in range(4):
        tile_params(rnd)
    lw23, lj = lab('W23'), lab('J')
    E('s_cmp_ge_u32 s3, 2')
    E('s_cbranch_scc1 ' + lw23)
    E('v_lshlrev_b32 v48, 8, v12')
    E('v_lshl_add_u32 v48, v11, 4, v48')
    E('v_add_u32 v49, 4096, v48')
    E('s_lshl_b32 s6, s4, 3\ns_lshr_b32 s7, s5, 1\ns_add_u32 s6, s6, s7\ns_lshl_b32 s6, s6, 14')
    E('s_and_b32 s7, s5, 1\ns_lshl_b32 s7, s7, 7\ns_add_u32 s6, s6, s7')
    E('s_lshl_b32 s59, s3, 13\ns_add_u32 s6, s6, s59\ns_add_u32 s60, s6, %d' % OFF_XH)
    E('v_lshlrev_b32 v50, 5, v11')
    E('v_mov_b32 v20, 0\nv_mov_b32 v21, 0\nv_mov_b32 v22, 0x3f803f80\nv_mov_b32 v23, 0\nv_mov_b32 v24, 0')
    for i in range(8):
        E('s_waitcnt vmcnt(%d)' % (23 - i))
        for p in range(4):
            r = 64 + 4 * i + p
            E('v_dot2_f32_bf16 v%d, v%d, v22, v%d' % (20 + 3 * (p & 1), r, 20 + 3 * (p & 1)))
            E('v_dot2_f32_bf16 v%d, v%d, v%d, v%d' % (21 + 3 * (p & 1), r, r, 21 + 3 * (p & 1)))
    E('v_add_f32 v20, v20, v23\nv_add_f32 v21, v21, v24')
    for mod_ in ('quad_perm:[1,0,3,2]', 'quad_perm:[2,3,0,1]', 'row_half_mirror'):
        E('v_add_f32_dpp v20, v20, v20 %s row_mask:0xf bank_mask:0xf' % mod_)
        E('v_add_f32_dpp v21, v21, v21 %s row_mask:0xf bank_mask:0xf' % mod_)
    E('v_mul_f32 v20, %s, v20' % f32(1.0 / 512))
    E('v_mul_f32 v21, %s, v21' % f32(1.0 / 512))
    E('v_fma_f32 v21, -v20, v20, v21')
    E('v_max_f32 v21, 0, v21')
    round_bf16(20, 20)
    round_bf16(21, 21)
    E('v_add_f32 v21, %s, v21' % f32(1e-5))
    round_bf16(21, 21)
    E('v_sqrt_f32 v21, v21')
    round_bf16(21, 21)
    E('v_rcp_f32 v21, v21')
    E('ds_bpermute_b32 v20, v50, v20')
    E('ds_bpermute_b32 v21, v50, v21')
    E('s_waitcnt vmcnt(12) lgkmcnt(0)')
    for i in range(4):
        for p in range(4):
            src = 96 + 4 * i + p
            E('v_lshlrev_b32 v%d, 16, v%d' % (24 + 2 * p, src))
            E('v_and_b32 v%d, 0xffff0000, v%d' % (25 + 2 * p, src))
        for e in range(8):
            E('v_sub_f32 v%d, v%d, v20' % (24 + e, 24 + e))
        for p in range(4):
            E('v_cvt_pk_bf16_f32 v%d, v%d, v%d' % (32 + p, 24 + 2 * p, 25 + 2 * p))
        for p in range(4):
            E('v_lshlrev_b32 v%d, 16, v%d' % (24 + 2 * p, 32 + p))
            E('v_and_b32 v%d, 0xffff0000, v%d' % (25 + 2 * p, 32 + p))
        for e in range(8):
            E('v_mul_f32 v%d, v%d, v21' % (24 + e, 24 + e))
        for p in range(4):
            E('v_cvt_pk_bf16_f32 v%d, v%d, v%d' % (32 + p, 24 + 2 * p, 25 + 2 * p))
        for p in range(4):
            E('v_lshlrev_b32 v%d, 16, v%d' % (24 + 2 * p, 32 + p))
            E('v_and_b32 v%d, 0xffff0000, v%d' % (25 + 2 * p, 32 + p))
        for e in range(8):
            E('v_cvt_f16_f32 v%d, v%d' % (24 + e, 24 + e))
        for p in range(4):
            E('v_pack_b32_f16 v%d, v%d, v%d' % (112 + 4 * i + p, 24 + 2 * p, 25 + 2 * p))
        E('buffer_store_dwordx4 v[%d:%d], v%d, %s, s60 offen offset:%d %s' % (
            112 + 4 * i, 115 + 4 * i, 48 + (i >> 1), srd('WS'), (i & 1) * 2048, os.environ.get('K0ST', '')))
    E('s_waitcnt vmcnt(4)')
    E('s_branch ' + lj)
    E(lw23 + ':')
    E('s_waitcnt vmcnt(16)')
    for n in range(8):
        E('v_lshlrev_b32 v%d, 16, v%d' % (16 + n, 16 + n))
    for n in range(8):
        E('v_mul_f32 v%d, %s, v%d' % (24 + n, f32(-LOG2E), 16 + n))
    for n in range(8):
        E('v_exp_f32 v%d, v%d' % (24 + n, 24 + n))
    for n in range(8):
        E('v_add_f32 v%d, 1.0, v%d' % (24 + n, 24 + n))
    for n in range(8):
        E('v_rcp_f32 v%d, v%d' % (24 + n, 24 + n))
    for n in range(8):
        E('v_mul_f32 v%d, v%d, v%d' % (16 + n, 16 + n, 24 + n))
    for n in range(8):
        E('v_cvt_pk_bf16_f32 v%d, v%d, v%d' % (16 + n, 16 + n, 16 + n))
    for n in range(8):
        E('v_and_b32 v%d, 0xffff, v%d' % (100 + 2 * n, 16 + n))
        E('v_and_b32 v%d, 0xffff0000, v%d' % (101 + 2 * n, 16 + n))
    for e in range(8):
        E('v_mov_b32 v%d, 0' % (50 + e))
    for n in range(8):
        E('s_waitcnt vmcnt(%d)' % (15 - n))
        dot_rows(50, 64 + 4 * n, 100 + 2 * n)
    reduce8(50)
    E('v_lshlrev_b32 v28, 5, v8')
    E('v_lshl_add_u32 v28, v3, 3, v28')
    E('s_mul_i32 s58, s63, 12288\ns_lshl_b32 s59, s53, 7\ns_add_u32 s58, s58, s59\ns_add_u32 s58, s58, %d' % OFF_MODP)
    E('s_cmp_ge_u32 s2, 192')
    E('s_cselect_b32 s58, 0x7f000000, s58')
    E('v_cmp_gt_u32 vcc, 4, v2')
    E('s_mov_b64 exec, vcc')
    E('buffer_store_dwordx2 v[50:51], v28, %s, s58 offen' % srd('WS'))
    E('s_mov_b64 exec, -1')
    E('s_waitcnt vmcnt(1)')
    E(lj + ':')
    E('v_lshrrev_b32 v30, 2, v2')
    E('v_lshl_add_u32 v30, v3, 3, v30')
    E('v_lshlrev_b32 v30, 6, v30')
    E('v_add_u32 v30, s%d, v30' % S_QB)
    E('v_and_b32 v31, 3, v2')
    E('v_lshl_add_u32 v32, v31, 4, v30')
    E('v_lshl_add_u32 v33, v31, 3, v30')
    E('s_cmp_eq_u32 s80, 1')
    E('s_cselect_b32 s6, 32, 8')
    E('s_cselect_b64 vcc, -1, 0')
    E('v_cndmask_b32 v34, v32, v33, vcc')
    E('v_add_u32 v35, s6, v34')
    for rnd in range(4):
        for ct in range(2):
            T = 64 + (rnd * 2 + ct) * 4
            if rnd == 0:
                base, off = 34 + ct, 0
            else:
                base, off = 32, rnd * 2048 + ct * 8
            E('ds_read_b64_tr_b16 v[%d:%d], v%d offset:%d' % (T, T + 1, base, off))
            E('ds_read_b64_tr_b16 v[%d:%d], v%d offset:%d' % (T + 2, T + 3, base, off + 256))
        if rnd == 1:
            E('s_waitcnt lgkmcnt(0)')
    E('s_waitcnt lgkmcnt(0)')
    for rnd in range(4):
        for ct in range(2):
            T = 64 + (rnd * 2 + ct) * 4
            E('buffer_store_dwordx4 v[%d:%d], v4, %s, s%d offen %s' % (T, T + 3, srd('WS'), 72 + 2 * rnd + ct, os.environ.get('K0ST', '')))
    if 'a' in os.environ.get('CPF', ''):
        code_touch('k0')
    if STAMPS:
        E('s_memrealtime s[96:97]')
        E('s_waitcnt vmcnt(0)')
        E('s_memrealtime s[98:99]')
        E('s_waitcnt lgkmcnt(0)')
        E('s_lshl_b32 s92, s2, 2\ns_add_u32 s92, s92, s3\ns_lshl_b32 s92, s92, 8\ns_add_u32 s92, s92, %d' % (OFF_STAMP + 160))
        E('v_mov_b32 v5, s92\nv_mov_b32 v6, s94\nv_mov_b32 v7, s96\nv_mov_b32 v8, s98')
        E('s_mov_b64 exec, 1')
        E('buffer_store_dword v6, v5, %s, 0 offen' % srd('WS'))
        E('buffer_store_dword v7, v5, %s, 0 offen offset:4' % srd('WS'))
        E('buffer_store_dword v8, v5, %s, 0 offen offset:8' % srd('WS'))
    E('s_endpgm')


L_STG = 6 * ROWB


def tile_dma(m0a, m0b):
    E('s_mov_b32 s59, 0x20000')
    E('v_mul_lo_u32 v44, v7, s55')
    E('v_lshl_add_u32 v44, v8, 4, v44')
    E(m0a)
    E('buffer_load_dwordx4 v44, s[56:59], s54 offen lds')
    E('s_lshl_b32 s55, s55, 4\ns_add_u32 s54, s54, s55')
    E(m0b)
    E('buffer_load_dwordx4 v44, s[56:59], s54 offen lds')


def k1_prologue():
    prologue('k1_kernel', 256, ['X', 'OUT', 'WS'])
    for n, W in enumerate(('WO', 'W1', 'W3', 'W2')):
        E('s_mov_b32 s%d, s%d\ns_and_b32 s%d, s%d, 0xffff' % (94 + 2 * n, PTR[W], 95 + 2 * n, PTR[W] + 1))
    E('s_mul_i32 s%d, s5, 0x5556\ns_lshr_b32 s%d, s%d, 13' % (S_PS, S_PS, S_PS))
    E('s_lshl_b32 s6, s4, 7\ns_lshr_b32 s7, s5, 3\ns_lshl_b32 s7, s7, 6\ns_add_u32 s%d, s6, s7' % S_R0)
    E('s_and_b32 s%d, s5, 7\ns_lshl_b32 s%d, s%d, 6' % (S_J7, S_C0, S_J7))
    E('s_lshl_b32 s%d, s4, 10' % S_CNTG)
    E('s_lshl_b32 s%d, s5, 10' % S_CNTJ)
    E('s_lshl_b32 s6, s4, 3\ns_lshl_b32 s7, s3, 1\ns_add_u32 s%d, s6, s7' % S_ROW)
    E('s_lshl_b32 s%d, s3, 12' % S_QB)
    E('s_lshl_b32 s%d, s3, 10' % S_W1K)
    ROT = os.environ.get('ROT', 'j')
    if ROT == 'jg':
        E('s_lshl_b32 s6, s4, 2\ns_add_u32 s6, s6, s5\ns_and_b32 s%d, s6, 15' % S_RT)
    elif ROT == 'j':
        E('s_mov_b32 s%d, s5' % S_RT)
    elif ROT == 'j2':
        E('s_lshl_b32 s6, s5, 1\ns_and_b32 s%d, s6, 15' % S_RT)
    else:
        E('s_mov_b32 s%d, 0' % S_RT)


def relayout_issue():
    E('s_max_u32 s6, s3, 1\ns_sub_u32 s6, s6, 1\ns_add_u32 s6, s6, s%d\ns_lshl_b32 s6, s6, 16\ns_lshl_b32 s7, s4, 10\ns_add_u32 s6, s6, s7\ns_add_u32 s6, s6, %d' % (S_PS, OFF_WF))
    for blk in range(4):
        E('s_add_u32 s7, s6, %d' % (blk * 16384))
        vm.op('buffer_load_dwordx4 a[%d:%d], v4, %s, s7 offen' % (152 + 4 * blk, 155 + 4 * blk, srd('WS')), ('rd', 0))


def rot_table():
    E('s_lshl_b32 s%d, s5, 10' % S_ROT)
    for i in range(1, 16):
        E('s_add_u32 s%d, s%d, 1024\ns_and_b32 s%d, s%d, 0x3fff' % (S_ROT + i, S_ROT + i - 1, S_ROT + i, S_ROT + i))


def relayout_process():
    E('v_and_b32 v129, 3, v2')
    l0, l1 = lab('RP'), lab('RP')
    E('s_cmp_eq_u32 s3, 0')
    E('s_cbranch_scc1 ' + l0)
    for r in range(16):
        E('v_accvgpr_read_b32 v%d, a%d' % (140 + r, 152 + r))
    for r in range(8):
        E('v_accvgpr_read_b32 v%d, a%d' % (172 + r, 144 + r))
    E('v_add_f32 v172, v172, v173\nv_add_f32 v174, v174, v175\nv_add_f32 v176, v176, v177\nv_add_f32 v178, v178, v179')
    E('v_add_f32 v172, v172, v174\nv_add_f32 v176, v176, v178')
    round_bf16(172, 172)
    round_bf16(176, 176)
    E('v_cmp_lt_u32 vcc, 31, v1')
    E('v_cndmask_b32 v173, 0, 1.0, vcc')
    E('v_add_f32 v172, v172, v173')
    E('s_cmp_eq_u32 s3, 3')
    E('s_cselect_b32 s6, 1.0, 0')
    E('v_add_f32 v176, s6, v176')
    round_bf16(176, 176)
    E('v_cvt_pk_bf16_f32 v172, v172, v172')
    E('s_lshl_b32 s6, s3, 7\ns_add_u32 s6, s6, %d' % L_SCR)
    E('v_lshlrev_b32 v173, 1, v1')
    E('v_add_u32 v173, s6, v173')
    E('ds_write_b16 v173, v172')
    E('s_lshl_b32 s7, s3, 8\ns_add_u32 s7, s7, %d' % (L_GA - 256))
    E('v_lshlrev_b32 v174, 2, v1')
    E('v_add_u32 v174, s7, v174')
    E('ds_write_b32 v174, v176')
    E('v_lshlrev_b32 v173, 4, v3')
    E('v_add_u32 v173, s6, v173')
    E('s_waitcnt lgkmcnt(0)')
    E('ds_read_b128 v[156:159], v173\nds_read_b128 v[160:163], v173 offset:64')
    E('v_lshrrev_b32 v130, 2, v2')
    E('v_lshl_add_u32 v130, v130, 3, v129')
    E('v_lshlrev_b32 v130, 2, v130')
    E('v_lshrrev_b32 v131, 1, v3')
    E('s_movk_i32 s7, 384')
    E('v_mul_lo_u32 v131, v131, s7')
    E('v_add_u32 v130, v130, v131')
    E('s_lshl_b32 s34, s5, 4\ns_add_u32 s34, s34, s4\ns_mul_i32 s34, s34, 1536\ns_lshl_b32 s6, s3, 7\ns_add_u32 s34, s34, s6\ns_add_u32 s34, s34, %d' % (OFF_UT - 128))
    for blk in range(4):
        E('v_mov_b32 v%d, 0\nv_mov_b32 v%d, 0' % (164 + 2 * blk, 165 + 2 * blk))
    E('s_waitcnt lgkmcnt(0)')
    for p in range(4):
        for blk in range(4):
            E('v_dot2_f32_bf16 v%d, v%d, v%d, v%d' % (164 + 2 * blk, 140 + 4 * blk + p, 160 + p, 164 + 2 * blk))
            E('v_dot2_f32_bf16 v%d, v%d, v%d, v%d' % (165 + 2 * blk, 140 + 4 * blk + p, 156 + p, 165 + 2 * blk))
    for blk in range(4):
        E('v_permlane32_swap_b32 v%d, v%d' % (164 + 2 * blk, 165 + 2 * blk))
    for blk in range(4):
        E('v_add_f32 v%d, v%d, v%d' % (164 + 2 * blk, 164 + 2 * blk, 165 + 2 * blk))
    for blk in range(4):
        E('v_mov_b32 v%d, v%d' % (165 + 2 * blk, 164 + 2 * blk))
    for blk in range(4):
        E('v_permlane16_swap_b32 v%d, v%d' % (164 + 2 * blk, 165 + 2 * blk))
    for blk in range(4):
        E('v_add_f32 v%d, v%d, v%d' % (164 + 2 * blk, 164 + 2 * blk, 165 + 2 * blk))
    for blk in range(4):
        m, ct = blk >> 1, blk & 1
        E('buffer_store_dword v%d, v130, %s, s34 offen offset:%d sc1' % (164 + 2 * blk, srd('WS'), m * 768 + ct * 16))
    E('s_branch ' + l1)
    E(l0 + ':')
    E('s_mov_b64 exec, 1')
    for q in range(4):
        E('buffer_load_dword a%d, v4, %s, 0 offen' % (136 + q, srd('WS')))
    E('s_mov_b64 exec, -1')
    E('s_waitcnt lgkmcnt(0)')
    E(l1 + ':')
    vm.seq += [('rl', 0)] * 4


def a1_grp(i):
    return ['buffer_load_dwordx4 v[%d:%d], v%d, %s, s%d offen' % (128 + i * 8 + b * 4, 131 + i * 8 + b * 4, 16 + b, srd('WS'), S_ROT + i) for b in range(2)]


def b1_grp(c, n):
    return ['s_add_u32 m0, s33, %d' % (c * 4 * 6144 + n * 1024),
            'buffer_load_dwordx4 v%d, %s, s%d offen lds' % (20 + n, srd('WS'), 28 + c)]


A1_PRE = int(os.environ.get('A1P', '5'))

KPB, VPB, QPB = 16, 28, 40
def KP(hh, b): return KPB + hh * 6 + (b + 1) * 2
def VP(hh, b): return VPB + hh * 6 + (b + 1) * 2
def QP(hh, b): return QPB + hh * 4 + b * 2


SKT = {2: 36, 4: 52}
BVO = {2: 8, 4: 248}


def splitk_setup(which):
    NKS = 4 if which == 2 else 11
    KT = 16 if which == 2 else 43
    OFFW = OFF_WOF if which == 2 else OFF_W2F
    SB = 44 if which == 2 else 72
    E('s_mul_i32 s%d, s%d, %d\ns_add_u32 s%d, s%d, %d' % (SB, S_J7, 4 * KT * 1024, SB, SB, OFFW))
    if os.environ.get('HACK'):
        E('s_mov_b32 s%d, %d' % (SB, OFFW))
    E('v_add_u32 v%d, s%d, v4' % (8 if which == 2 else 9, SB))
    if which == 2:
        if os.environ.get('ROT', 'j') == '0':
            E('s_mov_b32 s80, 0')
        else:
            E('s_and_b32 s80, s5, 3')
    else:
        if os.environ.get('ROT', 'j') == '0':
            E('s_mov_b32 s80, 0')
        else:
            E('s_mov_b32 s80, s%d' % S_J7)
    E('s_mul_i32 s81, s3, %d' % NKS)
    for pos in range(NKS):
        d = SKT[which] + pos
        if which == 2:
            E('s_add_u32 s%d, s80, %d' % (d, pos))
            E('s_and_b32 s%d, s%d, 3' % (d, d))
            E('s_add_u32 s%d, s%d, s81\ns_lshl_b32 s%d, s%d, 10' % (d, d, d, d))
        elif pos < 4:
            E('s_add_u32 s7, s3, %d\ns_mul_i32 s7, s7, 0x5556\ns_lshr_b32 s7, s7, 13\ns_lshl_b32 s%d, s7, 10' % (4 * pos, d))
        elif pos < 8:
            E('s_add_u32 s%d, s%d, 1024' % (d, d - 4))
        else:
            E('s_add_u32 s7, s3, %d\ns_lshr_b32 s6, s7, 1\ns_lshl_b32 s6, s6, 3\ns_and_b32 s%d, s7, 1\ns_mul_i32 s%d, s%d, 3\ns_add_u32 s6, s6, s%d\ns_add_u32 s6, s6, 4' % (4 * (pos - 8), d, d, d, d))
            E('s_add_u32 s7, s7, 32\ns_cmp_ge_u32 s7, 42\ns_cselect_b32 s6, s7, s6\ns_lshl_b32 s%d, s6, 10' % d)


def breg(which, pos, q):
    if which == 2:
        return 'a', 64 + (pos * 4 + q) * 4
    if pos < 7:
        return 'a', 128 + (pos * 4 + q) * 4
    return 'v', 176 + ((pos - 7) * 4 + q) * 4


def areg(which, pos, d):
    if pos < 8:
        return 'a', (pos * 4 + d) * 4
    return 'v', 128 + ((pos - 8) * 4 + d) * 4


def splitk_b_grps(which, pos):
    KT = 16 if which == 2 else 43
    grps = []
    for q in range(4):
        k, r = breg(which, pos, q)
        g_ = []
        if which == 4 and q == 0:
            g_ += ['s_cmp_ge_u32 s%d, %d' % (SKT[4] + pos, 43 * 1024), 's_cselect_b32 s63, 0x7f000000, s%d' % (SKT[4] + pos)]
        src = 63 if which == 4 else SKT[2] + pos
        if q:
            g_.append('s_add_u32 s79, s%d, %d' % (src, q * KT * 1024))
            src = 79
        g_.append('buffer_load_dwordx4 %s[%d:%d], v%d, %s, s%d offen sc1' % (k, r, r + 3, 8 if which == 2 else 9, srd('WS'), src))
        grps.append(g_)
    return grps


B4L_ROW = [4, 5, 0, 1]


def b4_lds_grps(pos):
    grps = []
    for q in range(4):
        g_ = []
        if q == 0:
            g_ += ['s_cmp_ge_u32 s%d, %d' % (SKT[4] + pos, 43 * 1024), 's_cselect_b32 s63, 0x7f000000, s%d' % (SKT[4] + pos)]
        src = 63
        if q:
            g_.append('s_add_u32 s79, s63, %d' % (q * 43 * 1024))
            src = 79
        g_ += ['s_add_u32 m0, s%d, %d' % (S_QB, B4L_ROW[pos - 7] * ROWB + q * 1024),
               'buffer_load_dwordx4 v9, %s, s%d offen sc1 lds' % (srd('WS'), src)]
        grps.append(g_)
    return grps


def p3_addr(u):
    return P3_ROW[u >> 2] * ROWB + (u & 3) * 4096


def p3_setup():
    E('s_lshl_b32 s6, s%d, 16\ns_lshl_b32 s7, s3, 14\ns_add_u32 s6, s6, s7\ns_add_u32 s6, s6, %d' % (S_PS, OFF_WF))
    if os.environ.get('HACK'):
        E('s_add_u32 s6, s7, %d' % OFF_WF)
    E('v_add_u32 v12, s6, v4')
    E('v_add_u32 v13, 0x10000, v12')
    E('v_add_u32 v14, 0x20000, v12')


def p3_b_grp(u):
    return ['s_add_u32 m0, s%d, %d' % (S_W1K, p3_addr(u)),
            'buffer_load_dwordx4 v%d, %s, s%d offen sc1 lds' % (12 + (u >> 4), srd('WS'), S_ROT + (u & 15))]


def p3_units_w123(units):
    for n, u in enumerate(units):
        for l in p3_b_grp(u):
            E(l)
    E('s_lshl_b32 s6, s3, 14')
    E('v_subrev_u32 v5, s6, v%d' % (12 + (units[0] >> 4)))
    for w in range(1, 4):
        lsk = lab('H')
        E('s_cmp_lg_u32 s3, %d' % w)
        E('s_cbranch_scc1 ' + lsk)
        for u in units[w - 1::3]:
            assert (u >> 4) == (units[0] >> 4)
            E('s_mov_b32 m0, %d' % p3_addr(u))
            E('buffer_load_dwordx4 v5, %s, s%d offen sc1 lds' % (srd('WS'), S_ROT + (u & 15)))
        E(lsk + ':')


def late_setup():
    E('v_mov_b32 v32, %s' % f32(-1e30))
    E('s_or_b32 s6, s4, s3')
    E('s_cmp_eq_u32 s6, 0')
    E('s_cselect_b32 s7, 64, 0')
    for r in range(4):
        E('v_lshl_add_u32 v33, v3, 2, %d' % r)
        E('v_sub_u32 v33, v2, v33')
        E('v_and_b32 v34, 0x80000001, v33')
        E('v_cmp_eq_u32 vcc, 0, v34')
        E('v_cndmask_b32 v35, v32, 0, vcc')
        E('v_accvgpr_write_b32 a%d, v35' % (240 + r))
        E('v_add_u32 v33, 16, v33')
        E('v_and_b32 v34, 1, v33')
        E('v_lshl_add_u32 v34, v34, 6, v33')
        E('v_cmp_gt_u32 vcc, 15, v34')
        E('v_cndmask_b32 v35, v32, 0, vcc')
        E('v_accvgpr_write_b32 a%d, v35' % (244 + r))
        E('v_add_u32 v34, s7, v34')
        E('v_cmp_gt_u32 vcc, 15, v34')
        E('v_cndmask_b32 v35, v32, 0, vcc')
        E('v_accvgpr_write_b32 a%d, v35' % (248 + r))
    splitk_setup(2)
    splitk_setup(4)
    p3_setup()


def phase1():
    vm.reset()
    stamp(0)
    E('v_lshlrev_b32 v28, 3, v0')
    for q in range(4):
        E('s_mov_b32 s6, %d' % (OFF_MODP + q * 12288))
        for h in range(2):
            r = 64 + (q * 2 + h) * 2
            vm.op('buffer_load_dwordx2 v[%d:%d], v28, %s, s6 offen offset:%d' % (r, r + 1, srd('WS'), h * 2048), ('tb', 0))
    E('s_lshl_b32 s%d, s%d, 10' % (S_ROT, S_RT))
    E('s_add_u32 s%d, s%d, 1024\ns_and_b32 s%d, s%d, 0x3fff' % (S_ROT + 1, S_ROT, S_ROT + 1, S_ROT + 1))
    E('s_mul_i32 s6, s5, %d\ns_add_u32 s6, s6, %d' % (6 * 16384, OFF_WQ))
    if os.environ.get('HACK'):
        E('s_mov_b32 s6, %d' % OFF_WQ)
    E('v_add_u32 v20, s6, v4')
    for t in range(1, 6):
        E('v_add_u32 v%d, %d, v20' % (20 + t, t * 16384))
    E('s_add_u32 s28, s%d, s%d\ns_and_b32 s28, s28, 0x3fff' % (S_ROT, S_W1K))
    E('s_mul_i32 s33, s3, 6144')
    for n in range(6):
        vm.grp(b1_grp(0, n), ('b1', 0))
    E('s_lshl_b32 s6, s%d, 14\ns_add_u32 s6, s6, %d' % (S_ROW, OFF_XH))
    E('v_add_u32 v16, s6, v4')
    E('v_add_u32 v17, 0x4000, v16')
    for i in range(2):
        vm.grp(a1_grp(i), ('a', i))
    for i in range(2, 16):
        E('s_add_u32 s%d, s%d, 1024\ns_and_b32 s%d, s%d, 0x3fff' % (S_ROT + i, S_ROT + i - 1, S_ROT + i, S_ROT + i))
    for c in range(1, 4):
        E('s_add_u32 s%d, s%d, 4096\ns_and_b32 s%d, s%d, 0x3fff' % (28 + c, 27 + c, 28 + c, 28 + c))
    for n in range(6):
        vm.grp(b1_grp(1, n), ('b1', 1))
    for i in range(2, A1_PRE):
        vm.grp(a1_grp(i), ('a', i))
    E('s_lshl_b32 s6, s%d, 4' % S_RT)
    E('v_subrev_u32 v29, s6, v0')
    E('v_and_b32 v29, 0xff, v29')
    E('v_lshrrev_b32 v30, 2, v29')
    E('v_lshlrev_b32 v30, 6, v30')
    E('v_and_b32 v29, 3, v29')
    E('v_lshl_add_u32 v30, v29, 3, v30')
    E('v_add_u32 v30, %d, v30' % L_TAB)
    E('v_add_u32 v19, 0x10000, v4')
    E('v_lshlrev_b32 v26, 6, v3')
    E('v_add_u32 v26, %d, v26' % L_TAB)
    E('s_waitcnt vmcnt(%d)' % vm.n_after([('tb', 0)]))
    for r in range(4):
        E('v_add_f32 v%d, v%d, v%d' % (64 + r, 64 + r, 68 + r))
        E('v_add_f32 v%d, v%d, v%d' % (72 + r, 72 + r, 76 + r))
    for r in range(4):
        E('v_add_f32 v%d, v%d, v%d' % (64 + r, 64 + r, 72 + r))
    for r in range(4):
        round_bf16(64 + r, 64 + r)
    for e in range(2):
        E('v_add_f32 v%d, 1.0, v%d' % (66 + e, 66 + e))
        round_bf16(66 + e, 66 + e)
    E('ds_write_b64 v30, v[66:67]\nds_write_b64 v30, v[64:65] offset:32')
    E('v_and_b32 v29, 31, v1')
    E('v_lshrrev_b32 v31, 5, v1')
    E('v_lshlrev_b32 v31, 11, v31')
    E('v_lshl_add_u32 v29, v29, 2, v31')
    E('s_lshl_b32 s35, s4, 7')
    for q in range(4):
        E('s_add_u32 s6, s35, %d' % (OFF_MODP + q * 12288 + 1536 * 4))
        vm.op('buffer_load_dword a%d, v29, %s, s6 offen' % (144 + q, srd('WS')), ('sm', 0))
    E('v_lshlrev_b32 v29, 2, v1')
    E('s_cmp_eq_u32 s3, 2')
    E('s_cselect_b32 s6, 5, 2')
    E('s_cmp_eq_u32 s3, 3')
    E('s_cselect_b32 s6, 4, s6')
    E('s_lshl_b32 s6, s6, 9')
    E('s_add_u32 s6, s6, s%d\ns_lshl_b32 s35, s6, 2' % S_C0)
    for q in range(4):
        E('s_add_u32 s6, s35, %d' % (OFF_MODP + q * 12288))
        vm.op('buffer_load_dword a%d, v29, %s, s6 offen' % (148 + q, srd('WS')), ('sm', 0))
    relayout_issue()
    stamp(1)
    ACC = 64
    TB = (32, 232)

    def bread(pos, buf, ts=range(6), dyn=None):
        out = []
        for t in ts:
            off = pos * 6144 + t * 1024
            d = buf * 24 + t * 4
            if dyn is not None:
                out.append('ds_read_b128 a[%d:%d], v%d offset:%d' % (d, d + 3, dyn, off))
            else:
                out.append('ds_read_b128 a[%d:%d], v%d offset:%d' % (d, d + 3, 4 if off < 65536 else 19, off & 0xffff))
        return out

    def tread(ks, T, base=26):
        return ['ds_read_b128 v[%d:%d], v%d offset:%d' % (T + 4 * q + (2 if q >= 2 else 0), T + 4 * q + 3 + (2 if q >= 2 else 0), base, ks * 256 + q * 16) for q in range(4)]

    TMP = {48: [51 + e for e in range(8)], 56: [59, 60, 61, 62, 63, 40, 41, 50]}
    TMP[56] = [59, 60, 61, 62, 63, 248, 249, 250] if False else [59, 60, 61, 62, 63, 28, 29, 30]

    def modulate(src, T, tmp):
        t = TMP[tmp]
        un, fm, cv = [], [], []
        for e in range(8):
            fm.append('v_fma_mix_f32 v%d, v%d, v%d, v%d op_sel:[%d,0,0] op_sel_hi:[1,0,0]' % (t[e], src + e // 2, T + e, T + 10 + e, e & 1))
        for p in range(4):
            cv.append('v_cvt_pk_bf16_f32 v%d, v%d, v%d' % (src + p, t[2 * p], t[2 * p + 1]))
        return un, fm, cv

    def mm(acc, af, bf, seg, first):
        c = '0' if first else 'v[%d:%d]' % (acc, acc + 3)
        if seg < 2:
            return 'v_mfma_f32_16x16x32_bf16 v[%d:%d], a[%d:%d], v[%d:%d], %s' % (acc, acc + 3, bf, bf + 3, af, af + 3, c)
        return 'v_mfma_f32_16x16x32_bf16 v[%d:%d], v[%d:%d], a[%d:%d], %s' % (acc, acc + 3, af, af + 3, bf, bf + 3, c)

    def mod2(ks):
        u0, f0, c0 = modulate(128 + ks * 8, 32, 48)
        u1, f1, c1 = modulate(132 + ks * 8, 32, 56)
        return u0 + u1, f0 + f1, c0 + c1

    bg = {ks: [] for ks in range(16)}
    for i in range(A1_PRE, 16):
        bg[i - A1_PRE].append((a1_grp(i), ('a', i)))
    for n in range(6):
        bg[n // 2].append((b1_grp(2, n), ('b1', 2)))
        bg[4 + n // 2].append((b1_grp(3, n), ('b1', 3)))
    for q in range(4):
        bg[11 + q // 2].append((['buffer_load_dwordx4 a[%d:%d], v18, %s, s%d offen' % (48 + 4 * q, 51 + 4 * q, srd('WS'), 82 + q)], ('h', 0)))
    k = 0
    for pos in range(4):
        for g_ in splitk_b_grps(2, pos):
            bg[(8, 9, 10, 13, 14, 15)[k // 3]].append((g_, ('b2', pos)))
            k += 1
    global BGS
    BGS = [p3_b_grp(u) for u in range(0, 12)]
    BGS2 = [p3_b_grp(u) for u in range(12, 24)]
    E('s_lshl_b32 s6, s4, 17\ns_add_u32 s6, s6, %d' % (OFF_XH - 16384))
    E('s_cmp_eq_u32 s4, 0')
    E('s_cselect_b32 s6, 0x7f000000, s6')
    E('v_add_u32 v18, s6, v4')
    for q in range(4):
        E('s_lshl_b32 s6, s3, 12\ns_add_u32 s6, s6, s%d\ns_add_u32 s6, s6, %d\ns_and_b32 s%d, s6, 0x3fff' % (S_ROT, q * 1024, 82 + q))
    late_setup()
    E('s_waitcnt vmcnt(%d) lgkmcnt(0)' % vm.n_after([('b1', 0), ('a', 0)]))
    E('s_barrier')
    stamp(3)
    stamp(30, True)
    for o in tread(0, 32) + bread(0, 0):
        E(o)
    E('s_waitcnt lgkmcnt(6)')
    u0_, m0_, c0_ = mod2(0)
    for o in u0_ + m0_ + tread(1, 32) + c0_:
        E(o)
    for ks in range(16):
        buf = ks & 1
        if ks in (3, 7, 11):
            E('s_waitcnt vmcnt(%d)' % vm.n_after([('b1', (ks + 1) // 4)]  + ([('rd', 0), ('sm', 0)] if ks == 7 else [])))
            E('s_barrier')
            if ks == 7:
                relayout_process()
        if ks + 1 < 16:
            E('s_waitcnt lgkmcnt(4)')
            u_, m_, c_ = mod2(ks + 1)
            valu = m_ + c_
            br = bread(ks + 1, buf ^ 1)
            tr = tread(ks + 2, 32) if ks + 2 < 16 else []
        else:
            E('s_waitcnt lgkmcnt(0)')
            valu, br, tr = [], [], []
        mf = [mm(ACC + (b * 6 + t) * 4, 128 + ks * 8 + 4 * b, buf * 24 + t * 4, t // 2, ks == 0) for t in range(6) for b in range(2)]
        grp = list(bg[ks])
        for i, x_ in enumerate(mf):
            E(x_)
            if i < 6 and br:
                E(br.pop(0))
            if i == 2 and valu:
                E('s_waitcnt vmcnt(%d) lgkmcnt(3)' % vm.n_after([('a', ks + 1)]))
            if 2 <= i < 6:
                for o in valu[4 * (i - 2):4 * (i - 2) + 4]:
                    E(o)
            if 6 <= i < 10:
                if tr:
                    E(tr.pop(0))
                for o in valu[16 + 2 * (i - 6):16 + 2 * (i - 6) + 2]:
                    E(o)
            if grp and i % 3 == 1:
                g_, tag = grp.pop(0)
                vm.grp(g_, tag)
        assert not grp
    stamp(19)
    stamp(31, True)
    pace_on(PACE0)
    E('s_mul_i32 s6, s3, %d' % (4 * 6144))
    E('v_add_u32 v27, s6, v4')
    E('s_lshl_b32 s6, s3, 10')
    E('v_add_u32 v31, s6, v26')
    for q in range(4):
        for o in tread(q, 128 + 20 * q, 31):
            E(o)
    for q in range(2):
        for o in bread(q, q, range(2, 6), 27):
            E(o)
    E('s_waitcnt vmcnt(%d)' % vm.n_after([('h', 0)]))
    for r in range(16):
        E('v_accvgpr_read_b32 v%d, a%d' % (208 + r, 48 + r))
    E('s_waitcnt lgkmcnt(8)')
    for q2 in range(2):
        u0, f0, c0 = modulate(208 + 8 * q2, 128 + 40 * q2, 48)
        u1, f1, c1 = modulate(212 + 8 * q2, 148 + 40 * q2, 56)
        for o in u0 + u1 + f0 + f1 + c0 + c1:
            E(o)
    E('s_waitcnt lgkmcnt(0)')
    for q in range(2):
        for t in range(2, 6):
            E(mm(112 + (t - 2) * 4, 208 + 4 * q, q * 24 + t * 4, t // 2, q == 0))
    for q in range(2, 4):
        for o in bread(q, q & 1, range(2, 6), 27):
            E(o)
    for b in range(2):
        for hh in range(2):
            for seg, fn in ((0, QP), (1, KP), (2, VP)):
                a = ACC + (b * 6 + seg * 2 + hh) * 4
                d = fn(hh, b)
                E('v_cvt_pk_bf16_f32 v%d, v%d, v%d' % (d, a, a + 1))
                E('v_cvt_pk_bf16_f32 v%d, v%d, v%d' % (d + 1, a + 2, a + 3))
    E('s_waitcnt lgkmcnt(0)')
    for q in range(2, 4):
        for t in range(2, 6):
            E(mm(112 + (t - 2) * 4, 208 + 4 * q, (q & 1) * 24 + t * 4, t // 2, False))
    E('v_lshlrev_b32 v52, 3, v1')
    E('s_lshl_b32 s6, s3, 11\ns_add_u32 s6, s6, %d' % L_XCH)
    E('v_add_u32 v53, s6, v52')
    E('s_add_u32 s6, s3, 1\ns_and_b32 s6, s6, 3\ns_lshl_b32 s6, s6, 11\ns_add_u32 s6, s6, %d' % L_XCH)
    E('v_add_u32 v55, s6, v52')
    E('ds_write_b64 v55, v[%d:%d]' % (KP(0, 1), KP(0, 1) + 1))
    E('ds_write_b64 v55, v[%d:%d] offset:512' % (KP(1, 1), KP(1, 1) + 1))
    E('ds_write_b64 v55, v[%d:%d] offset:1024' % (VP(0, 1), VP(0, 1) + 1))
    E('ds_write_b64 v55, v[%d:%d] offset:1536' % (VP(1, 1), VP(1, 1) + 1))
    for r in range(12):
        E('v_accvgpr_read_b32 v%d, a%d' % (64 + r, 240 + r))
    E('v_add_u32 v54, s%d, v4' % S_QB)
    E('s_barrier')
    stamp(4)
    arrive_u(CW, barrier=False, soff=S_CNTJ)
    pace_on(PACE0)
    for t in range(4):
        E('ds_write_b128 v54, v[%d:%d] offset:%d' % (112 + 4 * t, 115 + 4 * t, L_HP + 1024 * t))
    BGS += BGS2
    E('s_mov_b32 s6, %s' % f32(0.25 * LOG2E))
    E('v_and_b32 v77, 1, v3')
    E('v_lshlrev_b32 v77, 9, v77')
    E('v_lshrrev_b32 v78, 1, v3')
    E('v_lshl_add_u32 v77, v78, 8, v77')
    E('v_lshl_add_u32 v77, v2, 4, v77')
    E('s_lshl_b32 s34, s%d, 14\ns_lshl_b32 s35, s5, 10\ns_add_u32 s34, s34, s35\ns_add_u32 s34, s34, %d' % (S_ROW, OFF_O))
    E('s_add_u32 s35, s34, 16384')
    E('s_waitcnt lgkmcnt(0)')
    E('s_barrier')
    pace_off()
    lw0, ljn = lab('A0'), lab('AJ')
    E('s_cmp_eq_u32 s3, 0')
    E('s_cbranch_scc1 ' + lw0)
    E('ds_read_b64 v[%d:%d], v53' % (KP(0, -1), KP(0, -1) + 1))
    E('ds_read_b64 v[%d:%d], v53 offset:512' % (KP(1, -1), KP(1, -1) + 1))
    E('ds_read_b64 v[%d:%d], v53 offset:1024' % (VP(0, -1), VP(0, -1) + 1))
    E('ds_read_b64 v[%d:%d], v53 offset:1536' % (VP(1, -1), VP(1, -1) + 1))
    E('s_waitcnt lgkmcnt(0)')
    E('s_branch ' + ljn)
    E(lw0 + ':')
    for w in range(1, 4):
        for t in range(4):
            E('ds_read_b128 v[%d:%d], v54 offset:%d' % (128 + 16 * w + 4 * t, 131 + 16 * w + 4 * t, L_HP + w * 4096 + t * 1024))
    E('s_waitcnt lgkmcnt(0)')
    for r in range(16):
        E('v_add_f32 v%d, v%d, v%d' % (112 + r, 112 + r, 144 + r))
        E('v_add_f32 v%d, v%d, v%d' % (160 + r, 160 + r, 176 + r))
    for r in range(16):
        E('v_add_f32 v%d, v%d, v%d' % (112 + r, 112 + r, 160 + r))
    for t, d in enumerate((KP(0, -1), KP(1, -1), VP(0, -1), VP(1, -1))):
        E('v_cvt_pk_bf16_f32 v%d, v%d, v%d' % (d, 112 + 4 * t, 113 + 4 * t))
        E('v_cvt_pk_bf16_f32 v%d, v%d, v%d' % (d + 1, 114 + 4 * t, 115 + 4 * t))
    E(ljn + ':')
    pace_on(PACE1)
    combos = [(b, hh) for b in (1, 0) for hh in range(2)]
    for c, (b, hh) in enumerate(combos):
        S = 128 + c * 8
        E('v_mfma_f32_16x16x16_bf16 v[%d:%d], v[%d:%d], v[%d:%d], 0' % (S, S + 3, KP(hh, b - 1), KP(hh, b - 1) + 1, QP(hh, b), QP(hh, b) + 1))
        E('v_mfma_f32_16x16x16_bf16 v[%d:%d], v[%d:%d], v[%d:%d], 0' % (S + 4, S + 7, KP(hh, b), KP(hh, b) + 1, QP(hh, b), QP(hh, b) + 1))

    def each(fn):
        for c, (b, hh) in enumerate(combos):
            fn(c, b, hh, 128 + c * 8, 160 + c * 2, 168 + c * 4)
    each(lambda c, b, hh, S, M, PB: [E('v_fma_f32 v%d, v%d, s6, v%d' % (S + r, S + r, ((72 + r if b == 0 else 68 + r) if r < 4 else 64 + r - 4))) for r in range(8)])
    each(lambda c, b, hh, S, M, PB: (E('v_max3_f32 v%d, v%d, v%d, v%d' % (M, S, S + 1, S + 2)), E('v_max3_f32 v%d, v%d, v%d, v%d' % (M + 1, S + 3, S + 4, S + 5))))
    each(lambda c, b, hh, S, M, PB: (E('v_max3_f32 v%d, v%d, v%d, v%d' % (M, M, S + 6, S + 7)), E('v_max_f32 v%d, v%d, v%d' % (M, M, M + 1))))
    for sw in ('v_permlane32_swap_b32', 'v_permlane16_swap_b32'):
        each(lambda c, b, hh, S, M, PB: E('v_mov_b32 v%d, v%d' % (M + 1, M)))
        each(lambda c, b, hh, S, M, PB: E('%s v%d, v%d' % (sw, M, M + 1)))
        each(lambda c, b, hh, S, M, PB: E('v_max_f32 v%d, v%d, v%d' % (M, M, M + 1)))
    each(lambda c, b, hh, S, M, PB: [E('v_sub_f32 v%d, v%d, v%d' % (S + r, S + r, M)) for r in range(8)])
    each(lambda c, b, hh, S, M, PB: [E('v_exp_f32 v%d, v%d' % (S + r, S + r)) for r in range(8)])
    each(lambda c, b, hh, S, M, PB: (E('v_add_f32 v%d, v%d, v%d' % (M, S, S + 1)), E('v_add_f32 v%d, v%d, v%d' % (M + 1, S + 2, S + 3)),
                                     E('v_add_f32 v%d, v%d, v%d' % (PB, S + 4, S + 5)), E('v_add_f32 v%d, v%d, v%d' % (PB + 1, S + 6, S + 7))))
    each(lambda c, b, hh, S, M, PB: (E('v_add_f32 v%d, v%d, v%d' % (M, M, M + 1)), E('v_add_f32 v%d, v%d, v%d' % (PB, PB, PB + 1))))
    each(lambda c, b, hh, S, M, PB: E('v_add_f32 v%d, v%d, v%d' % (M, M, PB)))
    each(lambda c, b, hh, S, M, PB: [E('v_cvt_pk_bf16_f32 v%d, v%d, v%d' % (PB + p, S + 2 * p, S + 2 * p + 1)) for p in range(4)])
    each(lambda c, b, hh, S, M, PB: E('v_mfma_f32_16x16x32_bf16 v[%d:%d], v[%d:%d], v[%d:%d], 0' % (184 + c * 4, 187 + c * 4, VP(hh, b - 1), VP(hh, b - 1) + 3, PB, PB + 3)))
    for sw in ('v_permlane32_swap_b32', 'v_permlane16_swap_b32'):
        each(lambda c, b, hh, S, M, PB: E('v_mov_b32 v%d, v%d' % (M + 1, M)))
        each(lambda c, b, hh, S, M, PB: E('%s v%d, v%d' % (sw, M, M + 1)))
        each(lambda c, b, hh, S, M, PB: E('v_add_f32 v%d, v%d, v%d' % (M, M, M + 1)))
    each(lambda c, b, hh, S, M, PB: E('v_rcp_f32 v%d, v%d' % (M, M)))
    each(lambda c, b, hh, S, M, PB: [E('v_mul_f32 v%d, v%d, v%d' % (184 + c * 4 + r, 184 + c * 4 + r, M)) for r in range(4)])
    pace_off()
    for i, b in enumerate((1, 0)):
        O = 184 + i * 8
        D = 200 + i * 4
        for q in range(4):
            E('v_cvt_pk_bf16_f32 v%d, v%d, v%d' % (D + q, O + 2 * q, O + 2 * q + 1))
    for i, b in enumerate((1, 0)):
        D = 200 + i * 4
        E('v_permlane16_swap_b32 v%d, v%d' % (D, D + 2))
        E('v_permlane16_swap_b32 v%d, v%d' % (D + 1, D + 3))
        E('buffer_store_dwordx4 v[%d:%d], v77, %s, s%d offen sc1' % (D, D + 3, srd('WS'), 34 + b))
    stamp(5)


def ut_loads():
    E('s_sub_u32 s63, s3, 1')
    E('v_lshlrev_b32 v28, 5, v3')
    E('s_lshl_b32 s35, s4, 7')
    for q in range(4):
        E('s_add_u32 s6, s35, %d' % (OFF_MODP + q * 12288 + 1536 * 4))
        for h in range(4):
            r = 192 + (q * 4 + h) * 4
            E('buffer_load_dwordx4 v[%d:%d], v28, %s, s6 offen offset:%d' % (r, r + 3, srd('WS'), (h >> 1) * 2048 + (h & 1) * 16))
    E('v_lshlrev_b32 v29, 4, v2')
    E('s_cmp_eq_u32 s3, 2')
    E('s_cselect_b32 s6, 5, 2')
    E('s_cmp_eq_u32 s3, 3')
    E('s_cselect_b32 s6, 4, s6')
    E('s_lshl_b32 s6, s6, 9')
    E('s_add_u32 s6, s6, s%d\ns_lshl_b32 s35, s6, 2' % S_C0)
    for q in range(4):
        E('s_add_u32 s6, s35, %d' % (OFF_MODP + q * 12288))
        E('buffer_load_dwordx4 v[%d:%d], v29, %s, s6 offen' % (64 + 4 * q, 67 + 4 * q, srd('WS')))


def ut_compute():
    for r in range(16):
        E('v_add_f32 v%d, v%d, v%d' % (192 + r, 192 + r, 208 + r))
        E('v_add_f32 v%d, v%d, v%d' % (224 + r, 224 + r, 240 + r))
    for r in range(16):
        E('v_add_f32 v%d, v%d, v%d' % (192 + r, 192 + r, 224 + r))
    for e in range(8):
        round_bf16(200 + e, 200 + e)
        E('v_add_f32 v%d, 1.0, v%d' % (200 + e, 200 + e))
    for p in range(4):
        E('v_cvt_pk_bf16_f32 v%d, v%d, v%d' % (208 + p, 192 + 2 * p, 193 + 2 * p))
        E('v_cvt_pk_bf16_f32 v%d, v%d, v%d' % (212 + p, 200 + 2 * p, 201 + 2 * p))
    for r in range(8):
        E('v_accvgpr_write_b32 a%d, v%d' % (128 + r, 208 + r))
    E('s_cmp_eq_u32 s3, 3')
    E('s_cselect_b32 s6, 1.0, 0')
    for r in range(4):
        E('v_add_f32 v%d, v%d, v%d' % (64 + r, 64 + r, 68 + r))
        E('v_add_f32 v%d, v%d, v%d' % (72 + r, 72 + r, 76 + r))
        E('v_add_f32 v%d, v%d, v%d' % (64 + r, 64 + r, 72 + r))
        round_bf16(64 + r, 64 + r)
        E('v_add_f32 v%d, s6, v%d' % (64 + r, 64 + r))
        round_bf16(64 + r, 64 + r)
    E('s_lshl_b32 s6, s63, 8\ns_add_u32 s6, s6, %d' % L_GA)
    E('v_add_u32 v5, s6, v29')
    E('ds_write_b128 v5, v[64:67]')


def gather_ut(half):
    E('s_mul_i32 s34, s5, %d\ns_add_u32 s34, s34, %d' % (16 * 1536, OFF_UT + half * 1024))
    if half:
        E('s_mov_b32 exec_lo, -1\ns_mov_b32 exec_hi, 0')
    for kg in range(16):
        E('s_add_u32 s35, s34, %d' % (kg * 1536))
        E('buffer_load_dwordx4 v[%d:%d], v4, %s, s35 offen sc1' % (128 + 4 * kg, 131 + 4 * kg, srd('WS')))
    E('s_waitcnt vmcnt(0)')
    for step in (8, 4, 2, 1):
        for kg in range(step):
            for r in range(4):
                E('v_add_f32 v%d, v%d, v%d' % (128 + 4 * kg + r, 128 + 4 * kg + r, 128 + 4 * (kg + step) + r))
    E('v_add_u32 v5, %d, v1' % (64 * half))
    E('v_mov_b32 v6, 1.0')
    E('v_mov_b32 v132, %s' % f32(-LOG2E))
    E('v_mov_b32 v133, %s' % f32(-1.0 / LOG2E))
    E('v_subrev_u32 v134, 24, v5')
    E('v_cmp_gt_u32 vcc, 24, v134')
    E('v_cndmask_b32 v6, v6, v132, vcc')
    E('v_cmp_lt_u32 vcc, 71, v5')
    E('v_cndmask_b32 v6, v6, v133, vcc')
    for r in range(4):
        E('v_mul_f32 v%d, v%d, v6' % (128 + r, 128 + r))
    E('v_add_u32 v5, %d, v4' % (L_UT + half * 1024))
    E('ds_write_b128 v5, v[128:131]')
    E('s_mov_b64 exec, -1')
    E('s_waitcnt lgkmcnt(0)')


def sync_window(cnt, common, jobs):
    E('s_waitcnt vmcnt(0)')
    E('s_barrier')
    lo, le = lab('SO'), lab('SE')
    E('s_cmp_lg_u32 s3, 0')
    E('s_cbranch_scc1 ' + lo)
    arrive(S_CNTG, cnt)
    poll_ge(S_CNTG, cnt, 16)
    E('s_branch ' + le)
    E(lo + ':')
    if common:
        common()
    for w in jobs:
        lsk = lab('SJ')
        E('s_cmp_lg_u32 s3, %d' % w)
        E('s_cbranch_scc1 ' + lsk)
        jobs[w]()
        E(lsk + ':')
    E(le + ':')
    E('s_barrier')


def splitk_phase(which, nb_pre, bg_loop=(), bg_red=()):
    NKS = 4 if which == 2 else 11
    KTOT = 16 if which == 2 else 43
    AOFF = OFF_O if which == 2 else OFF_HH
    APRE = int(os.environ.get('APRE', '4'))
    st0 = 6 if which == 2 else 11
    stamp(st0)
    if which == 2:
        vm.reset()
    E('s_lshr_b32 s6, s%d, 4' % S_R0)
    for d in range(4):
        E('s_add_u32 s7, s3, %d\ns_and_b32 s7, s7, 3\ns_add_u32 s7, s7, s6\ns_mul_i32 s7, s7, %d\ns_add_u32 s7, s7, %d' % (d, KTOT * 1024, AOFF))
        E('v_add_u32 v%d, s7, v4' % (20 + d))

    def a_grps(pos):
        grps = []
        for d in range(4):
            g_ = []
            so = SKT[which] + pos
            if which == 4:
                if d == 0:
                    g_.append('s_min_u32 s35, s%d, %d' % (so, 42 * 1024))
                so = 35
            k, r = areg(which, pos, d)
            g_.append('buffer_load_dwordx4 %s[%d:%d], v%d, %s, s%d offen sc1' % (k, r, r + 3, 20 + d, srd('WS'), so))
            grps.append(g_)
        return grps
    TA = 'a' if which == 2 else 'a4'
    if which == 4:
        E('s_waitcnt vmcnt(%d)' % vm.n_after([('cka', 0)]))
        check_or_poll(7, CHA)
    for pos in range(min(APRE, NKS)):
        for g_ in a_grps(pos):
            vm.grp(g_, (TA, pos))
    if which == 4:
        E('v_mov_b32 v6, %d' % CHB)
        vm.op('buffer_load_dword v7, v6, %s, s%d offen sc1' % (srd('WS'), S_CNTG), ('ckb', 0))
        E('s_waitcnt vmcnt(%d)' % vm.n_after([('hs2', 0)]))
        arrive_u(CH)
    E('s_lshl_b32 s34, s3, 4\ns_add_u32 s34, s34, s%d' % S_R0)
    E('v_add_u32 v24, s34, v2')
    E('v_lshlrev_b32 v25, 10, v24')
    E('v_lshl_add_u32 v25, v3, 4, v25')
    E('v_add_u32 v16, s%d, v4' % S_QB)
    ACC = 64
    if which == 2:
        vm.grp(['s_lshl_b32 s35, s%d, 1' % S_C0, 'buffer_load_dwordx4 v[160:163], v25, %s, s35 offen' % srd('X'),
                'buffer_load_dwordx4 v[164:167], v25, %s, s35 offen offset:64' % srd('X')], ('x', 0))
    bgq = list(bg_loop)
    nb = nb_pre
    for pos in range(NKS):
        if which == 4 and pos == 0:
            E('s_waitcnt vmcnt(%d)' % vm.n_after([('ckb', 0)]))
            check_or_poll(7, CHB)
        if which == 4 and pos == 3:
            E('v_mov_b32 v6, %d' % CH)
            vm.op('buffer_load_dword v7, v6, %s, s%d offen sc1' % (srd('WS'), S_CNTG), ('ckc', 0))
        if which == 4 and pos == 4:
            E('s_waitcnt vmcnt(%d)' % vm.n_after([('ckc', 0)]))
            check_or_poll(7, CH)
        E('s_waitcnt vmcnt(%d)' % vm.n_after([(TA, pos), ('b', pos)]))
        if which == 4 and pos == 1:
            E('v_add_u32 v17, 0x10000, v16')
            for pp in range(7, 11):
                for q in range(4):
                    k_, r_ = breg(4, pp, q)
                    off = B4L_ROW[pp - 7] * ROWB + q * 1024
                    E('ds_read_b128 v[%d:%d], v%d offset:%d' % (r_, r_ + 3, 16 + (off >> 16), off & 0xffff))
        if which == 4 and pos == 7:
            E('s_waitcnt lgkmcnt(0)')
        grp = []
        if pos + APRE < NKS:
            grp += [(g_, (TA, pos + APRE)) for g_ in a_grps(pos + APRE)]
        if nb < NKS:
            grp += [(g_, ('b', nb)) for g_ in splitk_b_grps(which, nb)]
            nb += 1
        while bgq and len(grp) < 8 and pos + APRE >= NKS:
            grp.append((bgq.pop(0), ('bg', 0)))
        i = 0
        for d in range(4):
            for ct in range(4):
                acc = ACC + (d * 4 + ct) * 4
                bk, bf = breg(which, pos, ct)
                ak, af = areg(which, pos, d)
                c = '0' if pos == 0 else 'v[%d:%d]' % (acc, acc + 3)
                E('v_mfma_f32_16x16x32_bf16 v[%d:%d], %s[%d:%d], %s[%d:%d], %s' % (acc, acc + 3, bk, bf, bf + 3, ak, af, af + 3, c))
                if grp and i % 2 == 1:
                    g_, tag = grp.pop(0)
                    vm.grp(g_, tag)
                i += 1
        assert not grp
    assert not bgq
    stamp(st0 + 1)
    for d in range(1, 4):
        E('s_add_u32 s7, s3, %d\ns_and_b32 s7, s7, 3\ns_lshl_b32 s7, s7, 12\ns_add_u32 s7, s7, %d' % (d, (RED_ROW + d - 1) * ROWB))
        E('v_add_u32 v%d, s7, v4' % (26 + d))
    E('v_lshlrev_b32 v22, 5, v3')
    E('v_add_u32 v22, %d, v22' % L_GA)
    go = 0 if which == 2 else 256
    for c in range(2):
        for hlf in range(2):
            E('ds_read_b128 v[%d:%d], v22 offset:%d' % (168 + c * 8 + hlf * 4, 171 + c * 8 + hlf * 4, go + c * 128 + hlf * 16))
    if which == 2:
        for c in range(2):
            for hlf in range(2):
                E('ds_read_b128 v[%d:%d], v22 offset:%d' % (208 + c * 8 + hlf * 4, 211 + c * 8 + hlf * 4, 512 + c * 128 + hlf * 16))
    if which == 4:
        E('s_barrier')
    for d in range(1, 4):
        for ct in range(4):
            acc = ACC + (d * 4 + ct) * 4
            E('ds_write_b128 v%d, v[%d:%d] offset:%d' % (26 + d, acc, acc + 3, ct * 1024))
    for g_ in bg_red:
        vm.grp(g_, ('bg', 0))
    if which == 4:
        for r in range(8):
            E('v_accvgpr_read_b32 v%d, a%d' % (160 + r, 240 + r))
    else:
        E('s_waitcnt vmcnt(%d)' % vm.n_after([('x', 0)]))
    for i in range(16):
        src = 160 + i // 2
        if i % 2 == 0:
            E('v_lshlrev_b32 v%d, 16, v%d' % (192 + i, src))
        else:
            E('v_and_b32 v%d, 0xffff0000, v%d' % (192 + i, src))
    if which == 2:
        E('s_lshr_b32 s34, s%d, 4\ns_add_u32 s34, s34, s3\ns_lshl_b32 s34, s34, 14' % S_R0)
        E('s_lshl_b32 s35, s%d, 5\ns_add_u32 s34, s34, s35\ns_add_u32 s34, s34, %d' % (S_C0, OFF_X1))
    E('v_add_u32 v26, %d, v16' % (RED_ROW * ROWB))
    E('s_waitcnt lgkmcnt(0)')
    E('s_barrier')
    for d in range(1, 4):
        for ct in range(4):
            acc = ACC + (d * 4 + ct) * 4
            E('ds_read_b128 v[%d:%d], v26 offset:%d' % (acc, acc + 3, (d - 1) * ROWB + ct * 1024))
    E('s_waitcnt lgkmcnt(8)')
    for r in range(16):
        E('v_add_f32 v%d, v%d, v%d' % (ACC + r, ACC + r, ACC + 16 + r))
    E('s_waitcnt lgkmcnt(0)')
    for r in range(16):
        E('v_add_f32 v%d, v%d, v%d' % (ACC + 32 + r, ACC + 32 + r, ACC + 48 + r))
    for r in range(16):
        E('v_add_f32 v%d, v%d, v%d' % (ACC + r, ACC + r, ACC + 32 + r))
    for i in range(16):
        E('v_fma_f32 v%d, v%d, v%d, v%d' % (ACC + i, ACC + i, 168 + i, 192 + i))
    if which == 4:
        for p in range(8):
            E('v_cvt_pk_bf16_f32 v%d, v%d, v%d' % (184 + p, ACC + 2 * p, ACC + 2 * p + 1))
    if which == 2:
        for i in range(16):
            E('v_mul_f32 v%d, v%d, v%d' % (208 + i, ACC + i, 208 + i))
        for p in range(8):
            E('v_cvt_pk_bf16_f32 v%d, v%d, v%d' % (224 + p, 208 + 2 * p, 209 + 2 * p))
        E('buffer_store_dwordx4 v[224:227], v4, %s, s34 offen sc1' % srd('WS'))
        E('buffer_store_dwordx4 v[228:231], v4, %s, s34 offen offset:1024 sc1' % srd('WS'))
        for p in range(8):
            E('v_cvt_pk_bf16_f32 v%d, v%d, v%d' % (184 + p, ACC + 2 * p, ACC + 2 * p + 1))
        for step in (8, 4, 2, 1):
            for i in range(step):
                E('v_add_f32 v%d, v%d, v%d' % (96 + i, (ACC if step == 8 else 96) + i, (ACC if step == 8 else 96) + i + step))
        allreduce_lg('v_add_f32', 96, 28)
        E('v_mul_f32 v26, %s, v96' % f32(1.0 / 64))
        for i in range(16):
            E('v_sub_f32 v%d, v%d, v26' % (ACC + i, ACC + i))
        for i in range(4):
            E('v_mul_f32 v%d, v%d, v%d' % (96 + i, ACC + i, ACC + i))
        for i in range(4, 16):
            E('v_fmac_f32 v%d, v%d, v%d' % (96 + (i & 3), ACC + i, ACC + i))
        E('v_add_f32 v96, v96, v97\nv_add_f32 v98, v98, v99\nv_add_f32 v27, v96, v98')
        allreduce_lg('v_add_f32', 27, 28)
        E('v_lshlrev_b32 v28, 3, v24')
        E('s_lshl_b32 s35, s%d, 14\ns_add_u32 s35, s35, %d' % (S_J7, OFF_ST))
        E('s_mov_b64 exec, 0xffff')
        E('buffer_store_dwordx2 v[26:27], v28, %s, s35 offen sc1' % srd('WS'))
        E('s_mov_b64 exec, -1')
        for r in range(8):
            E('v_accvgpr_write_b32 a%d, v%d' % (240 + r, 184 + r))
    else:
        E('s_lshl_b32 s35, s%d, 1' % S_C0)
        E('buffer_store_dwordx4 v[184:187], v25, %s, s35 offen' % srd('OUT'))
        E('buffer_store_dwordx4 v[188:191], v25, %s, s35 offen offset:64' % srd('OUT'))
    stamp(st0 + 2)


A3_PRE = int(os.environ.get('A3P', '6'))
NB4_EARLY = int(os.environ.get('NB4E', '2'))


def arrive_u(cnt, barrier=True, soff=None, n=1):
    if barrier:
        E('s_barrier')
    E('s_cmp_eq_u32 s3, 0')
    E('s_cselect_b32 s6, s%d, 0x7f000000' % (soff if soff is not None else S_CNTG))
    E('s_mov_b64 exec, 1')
    E('v_mov_b32 v5, 1')
    E('v_mov_b32 v6, %d' % cnt)
    vm.op('buffer_atomic_add v5, v6, %s, s6 offen' % srd('WS'), ('arr', 0))
    E('s_mov_b64 exec, -1')


def check_or_poll(reg, cnt):
    lok = lab('CK')
    E('v_cmp_gt_u32 vcc, 16, v%d' % reg)
    E('s_cbranch_vccz ' + lok)
    poll_ge(S_CNTG, cnt, 16)
    E(lok + ':')


def phase3():
    stamp(9)
    vm.reset()
    E('s_lshl_b32 s6, s%d, 14\ns_add_u32 s6, s6, %d' % (S_ROW, OFF_X1))
    E('v_add_u32 v20, s6, v4')
    E('v_add_u32 v21, 0x4000, v20')
    E('s_lshl_b32 s7, s%d, 7\ns_add_u32 s7, s7, %d' % (S_ROW, OFF_ST))
    E('v_lshlrev_b32 v22, 3, v2')
    E('v_add_u32 v22, s7, v22')

    def a_grp(i):
        return ['buffer_load_dwordx4 a[%d:%d], v%d, %s, s%d offen sc1' % (i * 8 + b * 4, i * 8 + b * 4 + 3, 20 + b, srd('WS'), S_ROT + i) for b in range(2)]
    for i in range(A3_PRE):
        vm.grp(a_grp(i), ('a', i))
    stg = []
    for t in range(8):
        stg.append((['s_mov_b32 s35, %d' % (t * 16384)] + ['buffer_load_dwordx2 v[%d:%d], v22, %s, s35 offen offset:%d sc1' % (192 + b * 16 + 2 * t, 193 + b * 16 + 2 * t, srd('WS'), b * 128) for b in range(2)], ('st', 0)))
    E('v_add_u32 v16, 0x10000, v4')
    E('v_add_u32 v17, 0x20000, v4')
    E('v_lshlrev_b32 v18, 5, v3')
    E('v_add_u32 v18, %d, v18' % L_UT)
    E('s_mul_i32 s6, s%d, %d\ns_lshl_b32 s7, s%d, 10\ns_add_u32 s6, s6, s7\ns_add_u32 s6, s6, %d' % (S_ROW, 43 * 1024, S_PS, OFF_HH))
    E('v_add_u32 v23, s6, v4')
    E('v_add_u32 v24, %d, v23' % (43 * 1024))
    E('s_add_u32 s6, s5, 1\ns_mul_i32 s6, s6, 0x5556\ns_lshr_b32 s6, s6, 13\ns_sub_u32 s6, s6, s%d' % S_PS)
    E('s_cmp_eq_u32 s5, 15')
    E('s_cselect_b32 s6, 3, s6')
    E('s_cmp_eq_u32 s6, 2')
    E('s_cselect_b32 s32, 0x7f000000, 0')
    E('s_mov_b32 s34, %s' % f32(-LOG2E))
    E('s_waitcnt vmcnt(%d)' % vm.n_after([('a', 0)]))
    E('s_barrier')

    def stats_ops():
        ops = []
        for b in range(2):
            B = 192 + b * 16
            mean, rs, t1, t2 = 26 + 2 * b, 27 + 2 * b, 30 + 2 * b, 31 + 2 * b
            ops.append('v_add_f32 v%d, v%d, v%d' % (mean, B, B + 2))
            ops.append('v_add_f32 v%d, v%d, v%d' % (rs, B + 1, B + 3))
            for t in range(2, 8):
                ops.append('v_add_f32 v%d, v%d, v%d' % (mean, mean, B + 2 * t))
                ops.append('v_add_f32 v%d, v%d, v%d' % (rs, rs, B + 2 * t + 1))
            ops.append('v_mul_f32 v%d, %s, v%d' % (mean, f32(0.125), mean))
            ops.append('v_mov_b32 v%d, 0' % t2)
            for t in range(8):
                ops.append('v_sub_f32 v%d, v%d, v%d' % (t1, B + 2 * t, mean))
                ops.append('v_fmac_f32 v%d, v%d, v%d' % (t2, t1, t1))
            ops.append('v_mov_b32 v%d, %s' % (t1, f32(64.0)))
            ops.append('v_fmac_f32 v%d, v%d, v%d' % (rs, t2, t1))
            ops.append('v_mul_f32 v%d, %s, v%d' % (rs, f32(1.0 / 512), rs))

            def rnd(x):
                ops.append('v_cvt_pk_bf16_f32 v%d, v%d, v%d' % (x, x, x))
                ops.append('v_and_b32 v%d, 0xffff0000, v%d' % (x, x))
            rnd(mean); rnd(rs)
            ops.append('v_add_f32 v%d, %s, v%d' % (rs, f32(1e-5), rs))
            rnd(rs)
            ops.append('v_sqrt_f32 v%d, v%d' % (rs, rs))
            rnd(rs)
            ops.append('v_rcp_f32 v%d, v%d' % (rs, rs))
            ops.append('v_mul_f32 v%d, %s, v%d' % (t1, f32(-1.0 / LOG2E), rs))
            ops.append('v_mul_f32 v%d, %s, v%d' % (rs, f32(-LOG2E), rs))
        return ops

    def bread(u):
        out = []
        for q in range(4):
            d = 128 + (u % 3) * 16 + q * 4
            off = p3_addr(u) + q * 1024
            out.append('ds_read_b128 v[%d:%d], v%d offset:%d' % (d, d + 3, (4, 16, 17)[off >> 16], off & 0xffff))
        return out

    def utread(p):
        ops = []
        for m in range(2):
            for ut in range(2):
                d = 176 + (m * 2 + ut) * 8
                off = (m * 2 + ut) * 384 + p * 128
                ops.append('ds_read_b128 v[%d:%d], v18 offset:%d' % (d, d + 3, off))
                ops.append('ds_read_b128 v[%d:%d], v18 offset:%d' % (d + 4, d + 7, off + 16))
        return ops

    def epilogue(p):
        ops = []
        A0 = 64 + (p & 1) * 32
        for b in range(2):
            mean, rs = 26 + 2 * b, 27 + 2 * b
            T = 208 + b * 8
            regs = []
            for e in range(8):
                ct, r = e >> 2, e & 3
                regs.append((A0 + (b * 4 + 0 + ct) * 4 + r, A0 + (b * 4 + 2 + ct) * 4 + r))
            for e, (ga, ua) in enumerate(regs):
                ops.append('v_fma_f32 v%d, -v%d, v%d, v%d' % (ga, mean, 176 + e, ga))
                ops.append('v_fma_f32 v%d, -v%d, v%d, v%d' % (ua, mean, 192 + e, ua))
            for e, (ga, ua) in enumerate(regs):
                ops.append('v_fma_f32 v%d, v%d, v%d, v%d' % (ga, ga, rs, 184 + e))
                ops.append('v_fma_f32 v%d, v%d, v%d, v%d' % (ua, ua, 30 + 2 * b, 200 + e))
            for e, (ga, ua) in enumerate(regs):
                ops.append('v_exp_f32 v%d, v%d' % (T + e, ga))
                ops.append('v_mul_f32 v%d, v%d, v%d' % (ga, ga, ua))
            for e, (ga, ua) in enumerate(regs):
                ops.append('v_add_f32 v%d, 1.0, v%d' % (T + e, T + e))
            for e, (ga, ua) in enumerate(regs):
                ops.append('v_rcp_f32 v%d, v%d' % (T + e, T + e))
            for e, (ga, ua) in enumerate(regs):
                ops.append('v_mul_f32 v%d, v%d, v%d' % (T + e, T + e, ga))
            D = 224 + b * 4
            for q in range(4):
                ops.append('v_cvt_pk_bf16_f32 v%d, v%d, v%d' % (D + q, T + 2 * q, T + 2 * q + 1))
            ops.append('buffer_store_dwordx4 v[%d:%d], v%d, %s, %s offen offset:%d sc1' % (D, D + 3, 23 + b, srd('WS'), 's32' if p == 2 else '0', p * 1024))
        return ops

    for o in bread(0) + bread(1):
        E(o)
    pend = []
    bgq = [(p3_b_grp(uu), ('b3a', 0)) for uu in range(24, 36)]
    for p in range(3):
        A0 = 64 + (p & 1) * 32
        for ks in range(16):
            u = p * 16 + ks
            if ks == 0 and p >= 1:
                for o in utread(p - 1):
                    E(o)
                E('s_waitcnt lgkmcnt(0)')
                if p == 2:
                    E('s_waitcnt vmcnt(%d)' % vm.n_after([('b3', 0), ('hs', 0)]))
                E('s_barrier')
                stamp(20 + p)
                if p == 2:
                    arrive_u(CHA, barrier=False)
                if p == 1:
                    bgq = [(p3_b_grp(uu), ('b3', 0)) for uu in range(36, 48)] + [(g_, ('b4', 0)) for pos in range(0, 3) for g_ in splitk_b_grps(4, pos)]
                else:
                    bgq = [(g_, ('b4', 0)) for pos in range(3, 7) for g_ in splitk_b_grps(4, pos)] + [(g_, ('b4l', 0)) for pos in range(7, 11) for g_ in b4_lds_grps(pos)]
                pend = epilogue(p - 1)
            if p == 1 and ks == 4:
                E('s_waitcnt vmcnt(%d)' % vm.n_after([('b3a', 0)]))
                E('s_barrier')
            if p == 0 and ks == 11:
                E('s_waitcnt vmcnt(%d)' % vm.n_after([('st', 0)]))
                pend = stats_ops()
            lds = bread(u + 2) if u + 2 < 48 else []
            nl = 4 if u + 1 < 48 else 0
            if p == 0:
                E('s_waitcnt vmcnt(%d) lgkmcnt(%d)' % (vm.n_after([('a', ks)]), nl))
            else:
                E('s_waitcnt lgkmcnt(%d)' % nl)
            grp = []
            if p == 0 and ks + A3_PRE < 16:
                grp.append((a_grp(ks + A3_PRE), ('a', ks + A3_PRE)))
                if stg:
                    grp.append(stg.pop(0))
            else:
                for _ in range(2):
                    if bgq:
                        grp.append(bgq.pop(0))
            i = 0
            for q in range(4):
                for b in range(2):
                    acc = A0 + (b * 4 + q) * 4
                    bf = 128 + (u % 3) * 16 + q * 4
                    af = ks * 8 + b * 4
                    c = '0' if ks == 0 else 'v[%d:%d]' % (acc, acc + 3)
                    E('v_mfma_f32_16x16x32_bf16 v[%d:%d], v[%d:%d], a[%d:%d], %s' % (acc, acc + 3, bf, bf + 3, af, af + 3, c))
                    n = 3
                    if i < len(lds):
                        E(lds[i]); n = 2
                    if i in (4, 6) and grp:
                        g_, tag = grp.pop(0)
                        vm.grp(g_, tag)
                        n = 0
                    i += 1
                    for _ in range(n):
                        if pend:
                            o = pend.pop(0)
                            if o.startswith('buffer_'):
                                vm.op(o, ('hs', 0))
                            else:
                                E(o)
        for o in pend:
            if o.startswith('buffer_'):
                vm.op(o, ('hs', 0))
            else:
                E(o)
        pend = []
        assert not bgq
    stamp(23)
    for o in utread(2):
        E(o)
    E('s_waitcnt vmcnt(%d) lgkmcnt(0)' % vm.n_after([('hs', 0)]))
    arrive_u(CHB)
    E('v_mov_b32 v6, %d' % CHA)
    vm.op('buffer_load_dword v7, v6, %s, s%d offen sc1' % (srd('WS'), S_CNTG), ('cka', 0))
    for o in epilogue(2):
        if o.startswith('buffer_'):
            vm.op(o, ('hs2', 0))
        else:
            E(o)
    stamp(10)


def stop_here(n):
    if STOP == n:
        E('s_waitcnt vmcnt(0)')
        finish()
        return True
    return False


def main():
    kernel0()
    k1_prologue()
    phase1()
    if stop_here(1):
        return
    left = list(BGS)
    del BGS[:]
    sys.stderr.write('bg left after P1: %d\n' % len(left))
    sync_window(CO, None, {})
    allbg = left
    splitk_phase(2, 4, bg_loop=allbg[:32], bg_red=allbg[32:])
    if stop_here(2):
        return
    sync_window(C1, None, {1: lambda: (poll_ge(S_CNTJ, CW, 16), gather_ut(0)), 2: lambda: (poll_ge(S_CNTJ, CW, 16), gather_ut(1))})
    phase3()
    if stop_here(3):
        return
    splitk_phase(4, 11)
    E('s_waitcnt vmcnt(0)')
    finish()


main()
hdr = ['; @launch kernel=k0_kernel grid=(256,1,1) block=(256,1,1) lds=32768',
       '; @launch kernel=k1_kernel grid=(256,1,1) block=(256,1,1) lds=%d' % LDS_TOTAL,
       '.amdgcn_target "amdgcn-amd-amdhsa--gfx950"', '.text']
tail = ''
for name, nv, ao in (('k0_kernel', 128, 128), ('k1_kernel', 512, 256)):
    tail += """.section .rodata,"a"
.p2align 6
.amdhsa_kernel %s
  .amdhsa_next_free_vgpr %d
  .amdhsa_next_free_sgpr 102
  .amdhsa_accum_offset %d
  .amdhsa_group_segment_fixed_size 0
  .amdhsa_kernarg_size 96
  .amdhsa_user_sgpr_count 2
  .amdhsa_user_sgpr_kernarg_segment_ptr 1
  .amdhsa_system_sgpr_workgroup_id_x 1
.end_amdhsa_kernel
""" % (name, nv, ao)
print('\n'.join(hdr) + '\n' + E.text() + 'L_codeend:\n' + tail)
sys.stderr.write('instructions: %d\n' % E.nins)
```
